```python
import torch

def _softmax(x, axis=-1):
    return torch.softmax(x, dim=axis)
def _gelu(x):
    return torch.nn.functional.gelu(x, approximate="tanh")
def _silu(x):
    return torch.nn.functional.silu(x)
def _sigmoid(x):
    return torch.sigmoid(x)
def _layernorm(x, axis=-1, eps=1e-5):
    m = x.mean(dim=axis, keepdim=True)
    v = x.var(dim=axis, keepdim=True, unbiased=False)
    return (x - m) / torch.sqrt(v + eps)
def _scatter_add(tgt, idx, src, axis=0):
    return tgt.clone().index_add_(axis, idx, src)
def _segment_sum(src, seg, n):
    out = torch.zeros((n,) + src.shape[1:], dtype=src.dtype)
    return out.index_add_(0, seg, src)
def _pad(x, pw):
    flat = tuple(v for pair in reversed(pw) for v in pair)
    return torch.nn.functional.pad(x, flat)

kernel_name = 'recurrent_scan__linear_attn_block__dense_activation_silu__prompt'

def setup_inputs():

    _w = (lambda a: (lambda t: t.to(torch.bfloat16) if t.is_floating_point() else t)(torch.as_tensor(a)))
    def _A_setup():
        B, S, D = 1, 2048, 448
        return {
            "x": _w((lambda *s: torch.randn(*s, dtype=torch.bfloat16) * 0.05)(B, S, D)),
            "wqkv": _w((lambda *s: torch.randn(*s, dtype=torch.bfloat16) * 0.2)(D, 3 * D)),
            "wo": _w((lambda *s: torch.randn(*s, dtype=torch.bfloat16) * 0.2)(D, D)),
        }
    _A_in = _A_setup()

    def _B_setup():
        B, S, D, F = 1, 2048, 448, 1792
        return {
            "x": _w((lambda *s: torch.randn(*s, dtype=torch.bfloat16) * 0.05)(B, S, D)),
            "w1": _w((lambda *s: torch.randn(*s, dtype=torch.bfloat16) * 0.8)(D, F) * (D ** -0.5)),
            "w2": _w((lambda *s: torch.randn(*s, dtype=torch.bfloat16) * 0.1)(F, D) * (F ** -0.5)),
        }
    _B_in = _B_setup()

    return {
        "A_x": _A_in["x"],
        "A_wqkv": _A_in["wqkv"],
        "A_wo": _A_in["wo"],
        "B_x": _B_in["x"],
        "B_w1": _B_in["w1"],
        "B_w2": _B_in["w2"],
    }

def reference(A_x, A_wqkv, A_wo, B_x, B_w1, B_w2):
    def _A_ref(x, wqkv, wo):
        B, S, D = x.shape
        H = 16; Dh = D // H
        qkv = (lambda x, *d: x.permute(*d))((x @ wqkv).reshape(B, S, 3, H, Dh), 2, 0, 3, 1, 4)
        q, k, v = qkv[0], qkv[1], qkv[2]
        phi = lambda t: torch.where(t > 0, t + 1, torch.exp(t)) + 1e-6
        pq, pk = phi(q), phi(k)
        kv = torch.einsum("bhsd,bhse->bhde", pk, v)
        z = torch.einsum("bhsd->bhd", pk)
        num = torch.einsum("bhqd,bhde->bhqe", pq, kv)
        den = torch.einsum("bhqd,bhd->bhq", pq, z)[..., None] + 1e-6
        o = num / den
        return (lambda x, *d: x.permute(*d))(o, 0, 2, 1, 3).reshape(B, S, D) @ wo

    def _B_ref(x, w1, w2):
        h = torch.einsum("bsd,df->bsf", x, w1)
        h = _silu(h)
        out = torch.einsum("bsf,fd->bsd", h, w2)
        return out

    x = A_x
    xn = _layernorm(x, axis=-1)
    s = _A_ref(xn, A_wqkv, A_wo)
    g = _silu(_B_ref(xn, B_w1, B_w2))
    return x + s * g
```

```python
class R:
    __slots__ = ("k", "n", "c")
    def __init__(self, k, n, c=1):
        self.k, self.n, self.c = k, n, c
    def __str__(self):
        if self.k == 'm': return "m0"
        if self.k == 'x': return "exec"
        if self.k == 'c': return "vcc"
        return f"{self.k}{self.n}" if self.c == 1 else f"{self.k}[{self.n}:{self.n + self.c - 1}]"
    def regs(self):
        if self.k == 'c': return {('c', 0), ('c', 1)}
        return {(self.k, self.n + i) for i in range(self.c)}
    def __getitem__(self, i):
        if isinstance(i, slice):
            a = i.start or 0
            b = self.c if i.stop is None else i.stop
            assert 0 <= a < b <= self.c
            return R(self.k, self.n + a, b - a)
        assert 0 <= i < self.c, (self, i)
        return R(self.k, self.n + i, 1)

def v(n, c=1): return R('v', n, c)
def a(n, c=1): return R('a', n, c)
def s(n, c=1): return R('s', n, c)
M0 = R('m', 0); EXEC = R('x', 0); VCC = R('c', 0)

def regs_of(ops):
    out = set()
    for o in ops:
        if isinstance(o, R): out |= o.regs()
    return out

def lit(x):
    if isinstance(x, R): return str(x)
    if isinstance(x, float):
        import struct
        if x in (0.5, 1.0, 2.0, 4.0, -0.5, -1.0, -2.0, -4.0): return repr(x)
        if x == 0.0: return "0"
        return hex(struct.unpack('<I', struct.pack('<f', x))[0])
    if isinstance(x, int):
        return str(x) if -16 <= x <= 64 else hex(x & 0xffffffff)
    return str(x)

TRANS = ("v_exp_f32", "v_rcp_f32", "v_rsq_f32", "v_sqrt_f32", "v_log_f32")

class Ins:
    __slots__ = ("text", "cls", "rd", "wr", "cin", "wide")
    def __init__(self, text, cls, rd, wr, cin=frozenset(), wide=False):
        self.text, self.cls, self.rd, self.wr, self.cin, self.wide = text, cls, rd, wr, cin, wide

class Alloc:
    def __init__(self, kind, lo, hi):
        self.kind, self.free, self.hi, self.top = kind, set(range(lo, hi)), hi, 0
        self.names = {}
    def get(self, c=1, align=None, name=None):
        align = align or (1 if c == 1 else 2)
        for n in sorted(self.free):
            if n % align == 0 and all((n + i) in self.free for i in range(c)):
                for i in range(c): self.free.discard(n + i)
                self.top = max(self.top, n + c)
                return R(self.kind, n, c)
        raise RuntimeError(f"out of {self.kind} registers for {name} x{c}")
    def put(self, *rs):
        for r in rs:
            for _, n in r.regs():
                assert n not in self.free
                self.free.add(n)
    def snapshot(self): return set(self.free)
    def restore(self, snap): self.free = set(snap)

class K:
    def __init__(self):
        self.out = []
        self.hist = []
        self.pos = 0
        self.vm = []
        self.lg = []
        self.nops = 0; self.waits = 0
        self.log = []
        self.nlabel = 0
    def raw(self, text): self.out.append(text)
    def comment(self, text): self.out.append("  ; " + text)
    def label(self, name): self.out.append(name + ":")
    def newlabel(self, p="L"):
        self.nlabel += 1
        return f"{p}_{self.nlabel}"
    def _need(self, I):
        need = 0
        for P, pos in reversed(self.hist):
            d = self.pos - pos - 1
            if d >= 20: break
            n = 0
            pv = P.cls in ('valu', 'trans', 'dot', 'perm')
            if I.cls in ('m32', 'm16'):
                if pv and (P.wr & I.rd): n = max(n, 3 if P.cls == 'dot' else 2)
                if P.cls in ('m32', 'm16'):
                    big = P.cls == 'm32'
                    if P.wr & (I.rd - I.cin): n = max(n, 12 if big else 8)
                    if P.wr & I.cin:
                        if not (P.wr == I.cin and P.cls == I.cls): n = max(n, 10 if big else 6)
                    if (P.wr & I.wr) and not (P.wr == I.cin and P.cls == I.cls): n = max(n, 12 if big else 8)
            elif P.cls in ('m32', 'm16') and I.cls in ('valu', 'trans', 'dot', 'perm', 'ds', 'vmem'):
                big = P.cls == 'm32'
                if P.wr & (I.rd | I.wr): n = max(n, 12 if big else 8)
                if I.cls in ('valu', 'trans', 'dot', 'perm') and (P.cin & I.wr): n = max(n, 7 if big else 3)
            if pv and I.cls in ('valu', 'trans', 'dot', 'perm'):
                sg = {r for r in P.wr if r[0] in 'sc'}
                if sg & I.rd: n = max(n, 2)
                if P.cls == 'trans' and I.cls != 'trans' and (P.wr & I.rd): n = max(n, 1)
                if I.cls == 'perm' and (P.wr & I.rd): n = max(n, 2)
                if P.cls == 'dot' and (P.wr & (I.rd | I.wr)):
                    if not (I.cls == 'dot' and not (P.wr & (I.rd - I.cin))): n = max(n, 3)
            if pv and I.cls == 'rdlane' and (P.wr & I.rd): n = max(n, 1)
            if P.cls in ('valu', 'rdlane') and I.cls in ('vmem', 'ds'):
                sg = {r for r in P.wr if r[0] in 'sc'}
                if sg & I.rd: n = max(n, 5)
            if P.cls == 'rdlane' and I.cls in ('valu', 'trans', 'dot', 'perm'):
                if P.wr & I.rd: n = max(n, 2)
            if P.cls in ('valu', 'rdlane') and I.cls == 'salu':
                sg = {r for r in P.wr if r[0] in 'sc'}
                if sg & I.rd: n = max(n, 1)
            if P.cls == 'trans' and I.cls in ('vmem', 'ds') and (P.wr & I.rd): n = max(n, 1)
            if P.cls == 'vmem' and P.wide and (P.cin & I.wr): n = max(n, 2)
            if P.cls == 'salu' and ('m', 0) in P.wr and ('m', 0) in I.rd and I.cls in ('vmem', 'ds'): n = max(n, 1)
            need = max(need, n - d)
        return need
    def _push(self, I, states=1):
        self.out.append("  " + I.text)
        self.hist.append((I, self.pos))
        self.pos += states
        if len(self.hist) > 40: self.hist.pop(0)
    def nop(self, n):
        while n > 0:
            k = min(n, 16)
            self.out.append(f"  s_nop {k - 1}")
            self.pos += k; n -= k
    def flush_hazards(self): self.nop(12); self.hist = []
    def _pending(self, q, regs=None, toks=None):
        last = -1
        for i, e in enumerate(q):
            if (regs and (e['regs'] & regs)) or (toks and (e['tok'] in toks or (e.get('toks') and e['toks'] & toks))): last = i
        return last
    def _wait(self, vm=None, lg=None):
        parts = []
        if vm is not None:
            n = len(self.vm) - 1 - vm
            assert n <= 63
            parts.append(f"vmcnt({n})"); self.vm = self.vm[vm + 1:]
        if lg is not None:
            n = len(self.lg) - 1 - lg
            if n > 15:
                n = 15; lg = len(self.lg) - 1 - n
            parts.append(f"lgkmcnt({n})"); self.lg = self.lg[lg + 1:]
        if parts:
            self.waits += 1
            self._push(Ins("s_waitcnt " + " ".join(parts), 'wait', set(), set()))
    def wait_regs(self, *rs):
        regs = regs_of(rs)
        i = self._pending(self.vm, regs=regs); j = self._pending(self.lg, regs=regs)
        self._wait(i if i >= 0 else None, j if j >= 0 else None)
    def wait_tok(self, *toks, lg_all=False):
        i = self._pending(self.vm, toks=set(toks))
        j = len(self.lg) - 1 if (lg_all and self.lg) else -1
        self._wait(i if i >= 0 else None, j if j >= 0 else None)
    def wait_lg_all(self):
        if self.lg: self._wait(None, len(self.lg) - 1)
    def wait_lg_tok(self, *toks):
        j = self._pending(self.lg, toks=set(toks))
        self._wait(None, j if j >= 0 else None)
    def wait_all(self):
        self._wait(len(self.vm) - 1 if self.vm else None, len(self.lg) - 1 if self.lg else None)
    def hard_wait(self, text):
        self._push(Ins(text, 'wait', set(), set()))
    def emit(self, text, cls, rd=(), wr=(), cin=(), wide=False):
        I = Ins(text, cls, regs_of(rd), regs_of(wr), regs_of(cin), wide)
        touch = I.rd | I.wr
        i = self._pending(self.vm, regs=touch); j = self._pending(self.lg, regs=touch)
        if i >= 0 or j >= 0:
            self._wait(i if i >= 0 else None, j if j >= 0 else None)
        n = self._need(I)
        if n > 0:
            self.nops += n; self.log.append(f"nop{n} before: {text}")
            self.nop(n)
        self._push(I)
        return I
    def S(self, op, dst, *src):
        if op == "s_cselect_b32" and all(isinstance(x, int) and not -16 <= x <= 64 for x in src):
            self.S("s_mov_b32", dst, src[1])
            src = (src[0], dst)
        wr = [dst] if isinstance(dst, R) else []
        txt = f"{op} " + ", ".join(lit(x) for x in (dst,) + src)
        rd = list(src)
        if op.startswith("s_cmp") or op.startswith("s_bitcmp"):
            rd = [dst] + rd; wr = []
        self.emit(txt, 'salu', rd=rd, wr=wr)
    def sraw(self, text, rd=(), wr=()): self.emit(text, 'salu', rd=rd, wr=wr)
    def branch(self, op, target): self.emit(f"{op} {target}", 'br')
    def barrier(self): self.emit("s_barrier", 'bar')
    def V(self, op, dst, *src, mod=""):
        base = op.replace("_e64", "").replace("_e32", "")
        cls = 'trans' if base in TRANS else 'valu'
        rd = list(src); cin = []
        if base.startswith("v_dot2"):
            cls = 'dot'; rd.append(dst); cin = [dst]
        if base in ("v_fmac_f32",): rd.append(dst)
        if base.startswith("v_readfirstlane"): cls = 'rdlane'
        wr = [dst]
        if base.startswith("v_permlane"):
            cls = 'perm'; rd = [dst] + rd; wr = [dst, src[0]]
        if base.startswith("v_cndmask") and len(src) == 2: rd.append(VCC)
        txt = f"{op} " + ", ".join(lit(x) for x in (dst,) + src)
        if base.startswith("v_cndmask") and len(src) == 2: txt += ", vcc"
        if mod: txt += " " + mod
        self.emit(txt, cls, rd=rd, wr=wr, cin=cin)
    def Vneg(self, op, dst, a0, a1, a2=None, neg=(False, False, False)):
        src = [x for x in (a0, a1, a2) if x is not None]
        t = ", ".join(("-" if n else "") + lit(x) for x, n in zip(src, neg))
        self.emit(f"{op} {dst}, {t}", 'valu', rd=src, wr=[dst])
    def mfma(self, big, D, A, B, C):
        op = "v_mfma_f32_32x32x16_bf16" if big else "v_mfma_f32_16x16x32_bf16"
        cin = [C] if isinstance(C, R) else []
        self.emit(f"{op} {D}, {A}, {B}, {lit(C)}", 'm32' if big else 'm16', rd=[A, B] + cin, wr=[D], cin=cin)
    def ds_read(self, op, dst, addr, off, tok=None):
        assert 0 <= off <= 65535, off
        self.emit(f"{op} {dst}, {addr} offset:{off}", 'ds', rd=[addr], wr=[dst])
        self.lg.append(dict(regs=dst.regs(), tok=tok))
    def ds_write(self, op, addr, src, off, tok=None):
        assert 0 <= off <= 65535, off
        self.emit(f"{op} {addr}, {src} offset:{off}", 'ds', rd=[addr, src])
        self.lg.append(dict(regs=set(), tok=tok))
    @staticmethod
    def _w(c): return {1: "dword", 2: "dwordx2", 4: "dwordx4"}[c]
    def dma(self, voff, srd, soff, imm, tok, mod=""):
        assert 0 <= imm <= 4095
        o = f" offset:{imm}" if imm else ""
        self.emit(f"buffer_load_dwordx4 {voff}, {srd}, {lit(soff)} offen{o}{mod} lds", 'vmem', rd=[voff, srd, soff, M0])
        self.vm.append(dict(regs=set(), tok=tok))
    def gload(self, dst, voff, srd, soff, imm=0, mod="", tok=None):
        assert 0 <= imm <= 4095
        o = f" offset:{imm}" if imm else ""
        self.emit(f"buffer_load_{self._w(dst.c)} {dst}, {voff}, {srd}, {lit(soff)} offen{o}{mod}", 'vmem', rd=[voff, srd, soff], wr=[dst])
        self.vm.append(dict(regs=dst.regs(), tok=tok))
    def gstore(self, src, voff, srd, soff, imm=0, mod="", tok=None):
        assert 0 <= imm <= 4095
        o = f" offset:{imm}" if imm else ""
        self.emit(f"buffer_store_{self._w(src.c)} {src}, {voff}, {srd}, {lit(soff)} offen{o}{mod}", 'vmem', rd=[src, voff, srd, soff], cin=[src], wide=src.c >= 3)
        self.vm.append(dict(regs=set(), tok=tok))
    def text(self): return "\n".join(self.out) + "\n"

class Fill:
    def __init__(self): self.q = []; self.credit = 0
    def add(self, cost, fn): self.q.append((cost, fn))
    def extend(self, items): self.q.extend(items)
    def cost(self): return sum(c for c, _ in self.q)
    def run(self, budget):
        self.credit += budget
        while self.q and self.credit >= self.q[0][0]:
            c, fn = self.q.pop(0); self.credit -= c; fn()
        if not self.q: self.credit = 0
    def drain(self):
        while self.q: self.q.pop(0)[1]()
        self.credit = 0
```

```python
import sys, math
from asmlib import *

NAME = "recurrent_scan__linear_attn_block__dense_activation_silu__prompt"
NV, NA = 120, 136
EPOCH, FLH, FLQ, FLP, FLK = 0, 4096, 12288, 20480, 28672
KVB, PB, QB, HB, WSEND = 32768, 0x10000, 0x200000, 0x400000, 0xB00000
STAMPS = 0xC00000
XR, W0R, WB, MISC = 0, 65536, 98304, 155648
KVR, EXA = 90112, 65536
CSA, STA, R2A = MISC, MISC + 4096, MISC + 3072
LDS_BYTES = 163840
OOB = 0x40000000
LOG2E = 1.4426950408889634
LN2 = 0.6931471805599453
ONES = 0x3f803f80

DEF = dict(LA=3, bud=26, stamps=False, spin=200000, warm=True, codepf=True, look=6, stop=None, sleep=0)

class Gen:
    def __init__(self, **cfg):
        self.c = dict(DEF); self.c.update(cfg)
        self.k = K()
        self.sa = Alloc('s', 52, 100)
        self.joinA, self.joinB = [], []
        self.lane = v(0); self.vFA = v(1); self.vFV = v(2, 2); self.vP2d = [v(4 + i) for i in range(4)]
        self.vRowp, self.vColb, self.vST, self.vWD = v(8), v(9), v(10), v(11)
        self.cc, self.irs, self.sum, self.sq, self.vCSW, self.vCSR = v(15), v(16), v(17), v(18), v(19), v(20)
        self.vStampA, self.vStampD, self.vWH = v(21), v(22), v(23)
        self.IND, self.mneg, self.et, self.xt = v(24, 4), v(28, 4), v(32, 4), v(36, 8)
        self.sp = v(34, 2); self.eo = self.xt
        self.vTX = [v(44 + i) for i in range(4)]; self.vXR = [v(48 + i) for i in range(4)]
        self.vXT = [v(52), v(53)]; self.vXD = [v(54), v(55)]; self.vTY = [v(56 + i) for i in range(4)]
        self.blk = [v(60, 16), v(76, 16), v(92, 16)]
        self.cs = [v(108, 4), v(112, 4), v(116, 4)]
        self.tmp = [v(92), v(93), v(94), v(95), v(12), v(13), v(14), v(96)]
        self.vDummy, self.vDummy2 = v(32), v(33)

    STAMP_PAIRS = [4, 6, 8, 10, 12, 14, 16, 18, 44, 46, 48, 50]
    def stamp(self, name):
        if not self.c['stamps']: return
        names = self.c['stamps']
        if name not in names: return
        idx = names.index(name)
        if idx == 0: self.k.raw(f"  s_memrealtime s[{self.STAMP_PAIRS[10]}:{self.STAMP_PAIRS[10] + 1}]")
        self.k.raw(f"  s_memtime s[{self.STAMP_PAIRS[idx]}:{self.STAMP_PAIRS[idx] + 1}]")
    def stamp_flush(self):
        if not self.c['stamps']: return
        k, T, P = self.k, self.sT, self.STAMP_PAIRS
        k.raw(f"  s_memtime s[{P[9]}:{P[9] + 1}]")
        k.raw(f"  s_memrealtime s[{P[11]}:{P[11] + 1}]")
        k.raw("  s_waitcnt lgkmcnt(0)")
        k.raw("  s_mov_b32 s38, 0xd00000")
        k.raw(f"  s_lshl_b32 {T[0]}, s2, 3\n  s_add_u32 {T[0]}, {T[0]}, {self.sWv}\n  s_lshl_b32 {T[0]}, {T[0]}, 7\n  s_add_u32 {T[0]}, {T[0]}, {STAMPS}")
        k.raw(f"  v_mov_b32 v12, 0x40000000\n  v_mov_b32 v13, 0\n  v_cmp_eq_u32 vcc, 0, v0\n  s_nop 1\n  v_cndmask_b32 v12, v12, v13, vcc")
        for i, p in enumerate(P):
            k.raw(f"  v_mov_b32 v14, s{p}\n  buffer_store_dword v14, v12, s[36:39], {T[0]} offen offset:{4 * i}\n  s_nop 1")

    def flag_store(self, val, toks):
        k = self.k
        self.stamp(f'f{val}a')
        k.wait_tok(*toks)
        self.stamp(f'f{val}b')
        k.S("s_add_u32", self.sT[4], self.sTag[0], val)
        k.V("v_mov_b32", self.vFV[0], self.sT[4])
        k.gstore(self.vFV, self.vFA, self.sWS, 0, mod=" sc1", tok=('flag',))

    def poll_issue(self, vP, vPA):
        self.k.gload(vP, vPA, self.sWS, 0, mod=" sc1")

    def poll_check(self, vP, vPA, vD, need, mask):
        k = self.k
        top, done = k.newlabel("Lspin"), k.newlabel("Lok")
        k.wait_regs(vP)
        k.label(top)
        k.V("v_subrev_u32", vD, self.sTag[0], vP[0])
        k.V("v_cmp_eq_u32", VCC, self.sTag[1], vP[1])
        k.V("v_subrev_u32", vD, need, vD)
        k.V("v_cmp_ge_u32_e64", self.sM0, 15 - need, vD)
        k.S("s_and_b64", self.sM0, self.sM0, VCC)
        k.S("s_mov_b64", self.sM1, mask) if not isinstance(mask, tuple) else (k.S("s_mov_b32", self.sM1[0], mask[0]), k.S("s_mov_b32", self.sM1[1], mask[1]))
        k.S("s_and_b64", self.sM0, self.sM0, self.sM1)
        k.S("s_cmp_eq_u64", self.sM0, self.sM1)
        k.branch("s_cbranch_scc1", done)
        k.S("s_sub_u32", self.sSpin, self.sSpin, 1)
        k.branch("s_cbranch_scc1", done + "x")
        if self.c['sleep']: k.raw(f"  s_sleep {self.c['sleep']}")
        k.raw(f"  buffer_load_dwordx2 {vP}, {vPA}, {self.sWS}, 0 offen sc1")
        k.raw("  s_waitcnt vmcnt(0)")
        k.raw(f"  s_branch {top}")
        k.label(done + "x")
        k.raw(f"  s_mov_b32 {self.sSpin}, 0")
        k.label(done)

    def prologue(self):
        k, sa, c = self.k, self.sa, self.c
        self.sX, self.sW, self.sP2, self.sWS, self.sOUT, self.sDBG, self.sTMP = (s(n, 4) for n in (24, 28, 32, 36, 40, 44, 48))
        k.S("s_cmp_ge_u32", s(2), 256)
        k.branch("s_cbranch_scc1", "L_end")
        k.raw("  s_load_dwordx4 s[4:7], s[0:1], 0")
        k.raw("  s_load_dwordx2 s[8:9], s[0:1], 16")
        k.raw("  s_load_dwordx4 s[12:15], s[0:1], 32")
        k.raw("  s_load_dwordx4 s[16:19], s[0:1], 48")
        k.raw("  s_load_dwordx2 s[20:21], s[0:1], 64")
        g = sa.get
        self.sTag = g(2); self.sM0 = g(2); self.sM1 = g(2); self.sPad = g(2); self.sHi = g(2)
        self.sT = [g() for _ in range(6)]
        (self.sWv, self.sRt, self.sGrp, self.sI, self.sIdx, self.sIsH, self.sIsRed, self.sRho, self.sI2, self.sC,
         self.sRot2, self.sSpin, self.sXb, self.sMx, self.sMw, self.sRS) = [g() for _ in range(16)]
        self.sAs = [g() for _ in range(7)]
        self.sCol = [g() for _ in range(4)]
        self.sMp = [g() for _ in range(2)]
        self.sUW = [g() for _ in range(3)]
        T = self.sT
        lane, tmp = self.lane, self.tmp
        if c['codepf']:
            k.comment("pull this kernel's code into L2: 1/32 of its lines per workgroup")
            k.raw("  s_getpc_b64 s[48:49]")
            k.label("L_pc")
            k.S("s_and_b32", s(49), s(49), 0xffff)
            k.raw("  s_mov_b32 s50, L_end-L_pc")
            k.S("s_mov_b32", s(51), 0x20000)
            k.S("s_lshr_b32", T[0], s(2), 3)
            k.S("s_lshl_b32", T[0], T[0], 7)
            k.V("v_lshlrev_b32", tmp[0], 12, v(0))
            k.V("v_cmp_gt_u32", VCC, 16, v(0))
            k.V("v_mov_b32", tmp[1], OOB)
            k.V("v_cndmask_b32", tmp[0], tmp[1], tmp[0])
            k.gload(self.vDummy, tmp[0], self.sTMP, T[0])
        k.V("v_lshrrev_b32", tmp[0], 6, v(0))
        k.V("v_and_b32", lane, 63, v(0))
        k.V("v_readfirstlane_b32", self.sWv, tmp[0])
        xcd, n, q, sub = T[0], T[1], T[2], T[3]
        k.S("s_and_b32", xcd, s(2), 7)
        k.S("s_lshr_b32", n, s(2), 3)
        k.S("s_lshr_b32", q, xcd, 1)
        k.S("s_lshr_b32", sub, n, 3)
        k.S("s_and_b32", T[4], xcd, 1)
        k.S("s_lshl_b32", T[4], T[4], 3)
        k.S("s_and_b32", T[5], n, 7)
        k.S("s_add_u32", self.sI, T[4], T[5])
        k.S("s_lshr_b32", self.sIsH, sub, 1)
        k.S("s_and_b32", T[4], sub, 1)
        k.S("s_lshl_b32", self.sIdx, q, 1)
        k.S("s_add_u32", self.sIdx, self.sIdx, T[4])
        k.S("s_and_b32", self.sRt, self.sWv, 3)
        k.S("s_lshr_b32", self.sGrp, self.sWv, 2)
        k.S("s_lshl_b32", T[4], sub, 1)
        k.S("s_add_u32", T[4], T[4], T[5])
        k.S("s_cmp_ge_u32", T[4], 7); k.S("s_cselect_b32", T[5], 7, 0); k.S("s_sub_u32", T[4], T[4], T[5])
        k.S("s_cmp_ge_u32", T[4], 7); k.S("s_cselect_b32", T[5], 7, 0); k.S("s_sub_u32", self.sAs[0], T[4], T[5])
        for p in range(1, 7):
            k.S("s_add_u32", self.sAs[p], self.sAs[p - 1], 1)
            k.S("s_cmp_eq_u32", self.sAs[p], 7)
            k.S("s_cselect_b32", self.sAs[p], 0, self.sAs[p])
        k.S("s_cmp_eq_u32", q, 3); k.S("s_cselect_b32", T[4], 0, 8)
        k.S("s_sub_u32", T[5], n, T[4])
        k.S("s_cmp_lt_u32", T[5], 4); k.S("s_cselect_b32", self.sIsRed, 1, 0)
        k.S("s_lshl_b32", self.sRho, xcd, 2); k.S("s_and_b32", T[5], n, 3); k.S("s_add_u32", self.sRho, self.sRho, T[5])
        k.S("s_add_u32", T[4], T[4], 4)
        k.S("s_cmp_ge_u32", n, T[4]); k.S("s_cselect_b32", T[4], 4, 0); k.S("s_sub_u32", T[4], n, T[4])
        k.S("s_lshr_b32", self.sC, T[4], 2)
        k.S("s_and_b32", T[4], T[4], 3)
        k.S("s_lshl_b32", self.sI2, xcd, 2); k.S("s_add_u32", self.sI2, self.sI2, T[4])
        k.S("s_add_u32", self.sRot2, T[4], self.sC); k.S("s_and_b32", self.sRot2, self.sRot2, 3)
        k.S("s_cmp_eq_u32", self.sIsH, 1); k.S("s_cselect_b32", self.sRS, 3584, 2688)
        k.S("s_lshl_b32", T[4], self.sI, 2); k.S("s_add_u32", T[4], T[4], self.sRt)
        k.S("s_mul_i32", self.sXb, T[4], 32 * 896)
        k.S("s_lshl_b32", self.sMx, self.sRt, 12); k.S("s_lshl_b32", T[4], self.sGrp, 11); k.S("s_add_u32", self.sMx, self.sMx, T[4])
        k.S("s_lshl_b32", self.sMw, self.sWv, 10)
        k.S("s_mov_b32", self.sSpin, c['spin'])
        l3, c7, l4, cs = tmp[0], tmp[1], tmp[2], tmp[3]
        k.V("v_lshrrev_b32", l3, 3, lane)
        k.V("v_and_b32", c7, 7, lane)
        k.V("v_lshrrev_b32", l4, 4, lane)
        k.V("v_xor_b32", tmp[4], c7, l4)
        k.V("v_lshlrev_b32", tmp[4], 4, tmp[4])
        k.S("s_movk_i32", T[4], 896)
        k.V("v_mad_u32_u24", tmp[5], l3, T[4], tmp[4])
        k.S("s_mul_i32", T[5], self.sGrp, 14336)
        k.V("v_add_u32", self.vXD[0], T[5], tmp[5])
        k.V("v_xor_b32", tmp[4], 64, tmp[4])
        k.V("v_mad_u32_u24", tmp[5], l3, T[4], tmp[4])
        k.S("s_add_u32", T[5], T[5], 6144)
        k.V("v_add_u32", self.vXD[1], T[5], tmp[5])
        k.V("v_and_b32", tmp[4], 1, l4)
        k.V("v_lshlrev_b32", tmp[4], 2, tmp[4])
        k.V("v_xor_b32", cs, c7, tmp[4])
        k.S("s_cmp_eq_u32", self.sIsH, 1); k.S("s_cselect_b32", T[5], 7, 6)
        k.V("v_min_u32", tmp[4], T[5], cs)
        k.V("v_lshlrev_b32", tmp[4], 4, tmp[4])
        k.S("s_lshl_b32", T[5], self.sWv, 3)
        k.V("v_add_u32", tmp[5], T[5], l3)
        k.V("v_mad_u32_u24", self.vWD, tmp[5], self.sRS, tmp[4])
        k.V("v_lshlrev_b32", tmp[4], 4, cs)
        k.V("v_mad_u32_u24", tmp[4], l3, T[4], tmp[4])
        k.S("s_lshl_b32", T[5], self.sC, 7)
        k.V("v_add_u32", self.vP2d[0], T[5], tmp[4])
        k.V("v_add_u32", self.vP2d[1], 6144, self.vP2d[0])
        k.V("v_add_u32", self.vP2d[2], 14336, self.vP2d[0])
        k.V("v_add_u32", self.vP2d[3], 14336 + 6144, self.vP2d[0])
        k.hard_wait("s_waitcnt lgkmcnt(0)")
        def srd(d, lo, hi, size):
            k.S("s_mov_b32", d[0], lo); k.S("s_and_b32", d[1], hi, 0xffff)
            k.S("s_mov_b32", d[2], size); k.S("s_mov_b32", d[3], 0x20000)
        srd(self.sX, s(4), s(5), 2048 * 896)
        k.S("s_cmp_eq_u32", self.sIsH, 1)
        k.S("s_cselect_b32", self.sW[0], s(12), s(6)); k.S("s_cselect_b32", self.sW[1], s(13), s(7))
        k.S("s_cselect_b32", self.sW[2], 448 * 3584, 448 * 2688)
        k.S("s_and_b32", self.sW[1], self.sW[1], 0xffff); k.S("s_mov_b32", self.sW[3], 0x20000)
        k.raw("  s_load_dwordx2 %s, s[20:21], %d" % (self.sTag, EPOCH))
        self.sRS64 = self.sRS
        k.S("s_lshl_b32", self.sRS64, self.sRS, 6)
        self.sOnes, self.sLn2 = s(22), s(23)
        k.S("s_mov_b32", self.sOnes, ONES); k.S("s_mov_b32", self.sLn2, LN2)

    def prologue2(self):
        k, c, T, tmp, lane = self.k, self.c, self.sT, self.tmp, self.lane
        def srd(d, lo, hi, size):
            k.S("s_mov_b32", d[0], lo); k.S("s_and_b32", d[1], hi, 0xffff)
            k.S("s_mov_b32", d[2], size); k.S("s_mov_b32", d[3], 0x20000)
        if c['warm']:
            k.comment("touch the weights once, spread over all workgroups, so later misses are served on-die")
            k.S("s_and_b32", T[0], self.sWv, 3)
            k.S("s_cmp_eq_u32", T[0], 0); k.S("s_cselect_b32", s(48), s(14), s(12)); k.S("s_cselect_b32", s(49), s(15), s(13))
            k.S("s_cmp_eq_u32", T[0], 2); k.S("s_cselect_b32", s(48), s(8), s(48)); k.S("s_cselect_b32", s(49), s(9), s(49))
            k.S("s_cselect_b32", T[1], 13, 49); k.S("s_cselect_b32", s(50), 448 * 896, 1792 * 896)
            k.S("s_cmp_eq_u32", T[0], 3); k.S("s_cselect_b32", s(48), s(6), s(48)); k.S("s_cselect_b32", s(49), s(7), s(49))
            k.S("s_cselect_b32", T[1], 37, T[1]); k.S("s_cselect_b32", s(50), 448 * 2688, s(50))
            k.S("s_and_b32", s(49), s(49), 0xffff); k.S("s_mov_b32", s(51), 0x20000)
            k.S("s_cmp_eq_u32", self.sGrp, 0); k.S("s_cselect_b32", T[2], T[1], 0)
            k.S("s_mul_i32", T[1], T[1], s(2)); k.S("s_lshl_b32", T[1], T[1], 7)
            k.V("v_lshlrev_b32", tmp[4], 7, lane)
            k.V("v_cmp_gt_u32", VCC, T[2], lane)
            k.V("v_mov_b32", tmp[5], OOB)
            k.V("v_cndmask_b32", tmp[4], tmp[5], tmp[4])
            k.gload(self.vDummy2, tmp[4], self.sTMP, T[1])
        k.S("s_cmp_eq_u32", self.sGrp, 0)
        k.S("s_cselect_b32", self.sP2[0], s(14), s(8)); k.S("s_cselect_b32", self.sP2[1], s(15), s(9))
        k.S("s_cselect_b32", self.sP2[2], 1792 * 896, 448 * 896)
        k.S("s_and_b32", self.sP2[1], self.sP2[1], 0xffff); k.S("s_mov_b32", self.sP2[3], 0x20000)
        k.S("s_xor_b32", T[0], self.sIsH, 1); k.S("s_and_b32", self.sIsRed, self.sIsRed, T[0])
        k.S("s_cmp_eq_u32", self.sIsRed, 1); k.S("s_cselect_b32", self.sP2[2], 0, self.sP2[2])
        srd(self.sWS, s(20), s(21), WSEND)
        srd(self.sOUT, s(16), s(17), 2048 * 896)
        k.S("s_mov_b32", self.sPad[0], 0xf0000000); k.S("s_mov_b32", self.sPad[1], 0xf0000000)
        k.S("s_mov_b32", self.sHi[0], 0); k.S("s_mov_b32", self.sHi[1], -1)
        if c['stamps']:
            for p in self.STAMP_PAIRS: k.S("s_mov_b32", s(p), 0)
        row, hf, gx, base = tmp[0], tmp[1], tmp[2], tmp[3]
        k.V("v_and_b32", row, 31, lane)
        k.V("v_lshrrev_b32", hf, 5, lane)
        k.V("v_bfe_u32", gx, lane, 1, 3)
        k.S("s_lshl_b32", T[0], self.sRt, 12)
        k.V("v_lshl_add_u32", base, row, 7, T[0])
        def xaddr(dst, sp_reg_or_int):
            k.S("s_add_u32", T[1], self.sRt, sp_reg_or_int); k.S("s_and_b32", T[1], T[1], 3); k.S("s_lshl_b32", T[1], T[1], 1)
            k.V("v_add_u32", tmp[4], T[1], hf); k.V("v_xor_b32", tmp[4], tmp[4], gx)
            k.V("v_lshl_add_u32", dst, tmp[4], 4, base)
        for sp in range(4): xaddr(self.vXR[sp], sp)
        k.S("s_lshl_b32", T[2], self.sGrp, 1); xaddr(self.vXT[0], T[2])
        k.S("s_add_u32", T[2], T[2], 1); xaddr(self.vXT[1], T[2])
        k.S("s_lshl_b32", T[0], self.sGrp, 9); k.S("s_add_u32", T[0], T[0], CSA)
        k.V("v_lshl_add_u32", self.vCSR, row, 4, T[0])
        k.S("s_lshl_b32", T[0], self.sRt, 2)
        k.V("v_add_u32", self.vCSW, T[0], self.vCSR)
        k.V("v_lshrrev_b32", tmp[4], 4, lane); k.V("v_lshrrev_b32", tmp[5], 2, lane)
        k.V("v_xor_b32", tmp[4], tmp[4], tmp[5]); k.V("v_and_b32", tmp[4], 1, tmp[4])
        k.V("v_cmp_eq_u32", VCC, 0, tmp[4]); k.V("v_mov_b32", tmp[5], ONES)
        k.V("v_cndmask_b32", self.IND[0], 0, tmp[5])
        for i in range(1, 4): k.V("v_mov_b32", self.IND[i], self.IND[0])
        k.V("v_bfe_u32", tmp[4], lane, 2, 2)
        k.V("v_lshl_add_u32", self.vRowp, hf, 3, tmp[4])
        k.V("v_bfe_u32", tmp[4], lane, 4, 1); k.V("v_lshlrev_b32", tmp[4], 5, tmp[4])
        k.V("v_and_b32", tmp[5], 3, lane); k.V("v_lshl_add_u32", tmp[4], tmp[5], 3, tmp[4])
        k.V("v_bfe_u32", tmp[5], lane, 3, 1); k.V("v_lshl_add_u32", self.vColb, tmp[5], 6, tmp[4])
        k.V("v_mov_b32", self.sum, 0); k.V("v_mov_b32", self.sq, 0)
        k.hard_wait("s_waitcnt lgkmcnt(0)")
        k.S("s_and_b32", self.sTag[0], self.sTag[0], -16); k.S("s_add_u32", self.sTag[0], self.sTag[0], 16)
        k.V("v_mov_b32", self.vFV[1], self.sTag[1])

    def tr_addrs(self, dst, omul, base):
        k, T, tmp = self.k, self.sT, self.tmp
        items = []
        items.append((8, lambda: (k.S("s_mul_i32", T[3], self.sGrp, omul), k.V("v_add_u32", tmp[6], T[3], self.vColb))))
        items.append((4, lambda: k.V("v_and_b32", tmp[6], 127, tmp[6])))
        items.append((4, lambda: k.V("v_lshl_add_u32", tmp[6], self.vRowp, 7, tmp[6])))
        for sp in range(4):
            def f(sp=sp):
                k.S("s_add_u32", T[3], self.sRt, sp); k.S("s_and_b32", T[3], T[3], 3); k.S("s_lshl_b32", T[3], T[3], 11)
                k.S("s_add_u32", T[3], T[3], base)
                k.V("v_add_u32", dst[sp], T[3], tmp[6])
            items.append((20, f))
        return items

    def job_x(self, p):
        k, T = self.k, self.sT
        def f():
            k.S("s_add_u32", M0, self.sMx, XR + (p % 4) * 16384)
            k.S("s_lshl_b32", T[0], self.sAs[p], 7); k.S("s_add_u32", T[0], T[0], self.sXb)
            k.dma(self.vXD[0], self.sX, T[0], 0, ('x', p)); k.dma(self.vXD[1], self.sX, T[0], 1024, ('x', p))
        return f
    def job_w(self, name, p, col, lds):
        k, T = self.k, self.sT
        def f():
            k.S("s_add_u32", M0, self.sMw, lds)
            k.S("s_mul_i32", T[0], self.sAs[p], self.sRS64); k.S("s_add_u32", T[0], T[0], col)
            k.dma(self.vWD, self.sW, T[0], 0, (name, p))
        return f
    def unit_ra(self, pos):
        k, T = self.k, self.sT
        G, q = pos // 4, pos % 4
        k.S("s_add_u32", T[1], self.sRot2, q); k.S("s_and_b32", T[1], T[1], 3 if G < 3 else 1)
        k.S("s_lshr_b32", T[2], T[1], 1); k.S("s_add_u32", T[2], T[2], 2 * G)
        k.S("s_and_b32", T[1], T[1], 1)
    def unit_w(self, pos):
        k, T, U = self.k, self.sT, self.sUW
        self.unit_ra(pos)
        k.S("s_add_u32", T[2], T[2], T[1])
        k.S("s_cmp_eq_u32", T[2], 7); k.S("s_cselect_b32", T[2], 0, T[2])
        k.S("s_mul_i32", T[1], T[1], 7); k.S("s_add_u32", T[2], T[2], T[1])
        k.S("s_mul_i32", T[1], self.sRt, 14); k.S("s_add_u32", T[2], T[2], T[1])
        k.S("s_mul_i32", U[0], T[2], 32 * 896)
    def unit_a(self, pos):
        k, T, U = self.k, self.sT, self.sUW
        self.unit_ra(pos)
        k.S("s_mul_i32", T[1], T[1], 7); k.S("s_add_u32", T[2], T[2], T[1]); k.S("s_lshl_b32", U[1], T[2], 11)
    def a_pos(self, n):
        pos = n % 11
        return (0, pos * 2048) if pos < 3 else (1, (pos - 3) * 2048)
    def job_p2_shared(self, n):
        k, T = self.k, self.sT
        def f():
            if n % 2 == 0:
                self.unit_w(n // 2)
                k.S("s_mul_i32", T[1], self.sRt, 112 * 896); k.S("s_add_u32", T[1], T[1], (n // 2) * 28 * 896)
                k.S("s_cmp_eq_u32", self.sGrp, 0); k.S("s_cselect_b32", self.sUW[2], self.sUW[0], T[1])
            k.S("s_add_u32", M0, self.sMp[0], n * 2048)
            b = 2 * (n % 2)
            k.dma(self.vP2d[b], self.sP2, self.sUW[2], 0, ('p2', n)); k.dma(self.vP2d[b + 1], self.sP2, self.sUW[2], 1024, ('p2', n))
        return f
    def p2_bases(self):
        k, T = self.k, self.sT
        k.S("s_mul_i32", T[1], self.sRt, 6144); k.S("s_add_u32", T[1], T[1], WB + 32768)
        k.S("s_lshl_b32", T[2], self.sRt, 13); k.S("s_add_u32", T[3], T[2], WB)
        k.S("s_cmp_eq_u32", self.sGrp, 0)
        k.S("s_cselect_b32", self.sMp[0], T[1], T[3])
        k.S("s_lshl_b32", T[1], self.sRt, 14); k.S("s_add_u32", T[2], T[2], W0R)
        k.S("s_cmp_eq_u32", self.sGrp, 0)
        k.S("s_cselect_b32", self.sMp[1], T[1], T[2])

    def x_reads(self, p):
        k = self.k
        off = XR + (p % 4) * 16384
        for t in range(2): k.ds_read("ds_read_b128", self.xt[4 * t:4 * t + 4], self.vXT[t], off)
        for sp in range(4): k.ds_read("ds_read_b128", a(16 * p + 4 * sp, 4), self.vXR[sp], off)
    def dots(self):
        k = self.k
        for i in range(8):
            k.V("v_dot2c_f32_bf16", self.sq, self.xt[i], self.xt[i])
            k.V("v_dot2c_f32_bf16", self.sum, self.sOnes, self.xt[i])
    def run_slots(self, slots, pre_read, pre_mfma, post_mfma, fill, dq, first_ring=0, tail_reads=None):
        k, LA = self.k, self.c['LA']
        NF = 6
        def frag(n): return a(112 + 4 * ((n + first_ring) % NF), 4)
        def read(n):
            if n in pre_read: pre_read[n]()
            sl = slots[n]
            k.ds_read("ds_read_b64_tr_b16", frag(n)[0:2], sl['addr'], sl['off'])
            k.ds_read("ds_read_b64_tr_b16", frag(n)[2:4], sl['addr'], sl['off'] + sl['second'])
        for n in range(min(LA, len(slots))): read(n)
        for n, sl in enumerate(slots):
            if n in pre_mfma: pre_mfma[n]()
            x = a(4 * sl['xi'], 4)
            C = 0 if sl['first'] else sl['acc']
            if n % 2 == 0 and n + 1 < len(slots): k.wait_regs(frag(n), frag(n + 1), x)
            if sl['wfirst']: k.mfma(True, sl['acc'], frag(n), x, C)
            else: k.mfma(True, sl['acc'], x, frag(n), C)
            if sl['cs'] is not None: k.mfma(False, sl['cs'], self.IND, frag(n), 0 if sl['csfirst'] else sl['cs'])
            if n + LA < len(slots): read(n + LA)
            if n in post_mfma: post_mfma[n]()
            while dq and dq[0][0] <= n: dq.pop(0)[1]()
            fill.run(sl.get('bud', self.c['bud']))
    def bar_wait(self, *toks, lg=False):
        def f():
            self.k.wait_tok(*toks)
            if lg: self.k.wait_lg_all()
            self.k.barrier()
        return f
    def stats_part1(self):
        k, T, tmp = self.k, self.sT, self.tmp
        it = []
        def a0():
            k.S("s_lshl_b32", T[3], self.sWv, 9); k.S("s_add_u32", T[3], T[3], STA)
            k.V("v_lshl_add_u32", tmp[4], self.lane, 3, T[3])
        it.append((12, a0))
        def a1():
            k.V("v_mov_b32", self.sp[0], self.sum); k.V("v_mov_b32", self.sp[1], self.sq)
        it.append((8, a1))
        it.append((4, lambda: k.ds_write("ds_write_b64", tmp[4], self.sp, 0, tok='st')))
        it.append((4, lambda: k.V("v_xor_b32", tmp[4], 2048, tmp[4])))
        return it
    def stats_part2(self):
        k, T, tmp = self.k, self.sT, self.tmp
        it = []
        it.append((4, lambda: k.ds_read("ds_read_b64", self.sp, tmp[4], 0)))
        it.append((4, lambda: k.V("v_add_f32", self.sum, self.sum, self.sp[0])))
        it.append((4, lambda: k.V("v_add_f32", self.sq, self.sq, self.sp[1])))
        it.append((8, lambda: (k.V("v_mov_b32", self.sp[0], self.sum), k.V("v_mov_b32", self.sp[1], self.sq))))
        it.append((8, lambda: (k.V("v_permlane32_swap_b32", self.sum, self.sp[0]), k.V("v_permlane32_swap_b32", self.sq, self.sp[1]))))
        it.append((8, lambda: (k.V("v_add_f32", self.sum, self.sum, self.sp[0]), k.V("v_add_f32", self.sq, self.sq, self.sp[1]))))
        mean, var = self.sum, self.sq
        it.append((8, lambda: (k.V("v_mul_f32", mean, -1.0 / 448, mean), k.V("v_mul_f32", var, 1.0 / 448, var))))
        it.append((4, lambda: k.Vneg("v_fma_f32", var, mean, mean, var, (True, False, False))))
        it.append((8, lambda: (k.V("v_max_f32", var, 0, var), k.V("v_add_f32", var, 1e-5, var))))
        it.append((8, lambda: k.V("v_sqrt_f32", self.irs, var)))
        it.append((4, lambda: k.V("v_cvt_pk_bf16_f32", self.sp[0], mean, mean)))
        it.append((8, lambda: k.V("v_rcp_f32", self.cc, self.irs)))
        it.append((4, lambda: k.V("v_and_b32", self.sp[1], 0xffff0000, self.sp[0])))
        it.append((4, lambda: k.V("v_sub_f32", self.sp[1], mean, self.sp[1])))
        it.append((4, lambda: k.V("v_mul_f32", self.cc, self.ccmul, self.cc)))
        it.append((4, lambda: k.V("v_cvt_pk_bf16_f32", self.sp[1], self.sp[1], self.sp[1])))
        for i in range(4):
            it.append((4, lambda i=i: k.V("v_cndmask_b32_e64", self.mneg[i], self.sp[0], self.sp[1], self.sHi)))
        return it
    def cs_pack(self, cs, idx, dst=None):
        k = self.k
        it = []
        it.append((4, lambda: k.V("v_cvt_pk_bf16_f32", cs[1], cs[0], cs[0])))
        it.append((4, lambda: k.V("v_and_b32", cs[1], 0xffff0000, cs[1])))
        it.append((4, lambda: k.V("v_sub_f32", cs[1], cs[0], cs[1])))
        if dst is None:
            it.append((4, lambda: k.V("v_cvt_pk_bf16_f32", cs[1], cs[0], cs[1])))
            it.append((4, lambda: k.ds_write("ds_write_b32", self.vCSW, cs[1], idx * 1024, tok='cs')))
        else:
            it.append((4, lambda: k.V("v_cvt_pk_bf16_f32", dst[0], cs[0], cs[1])))
            it.append((12, lambda: [k.V("v_mov_b32", dst[i], 0) for i in (1, 2, 3)]))
        return it
    def cs_apply(self, cs, idx, acc, wfirst, read=True):
        k = self.k
        it = []
        if read: it.append((4, lambda: k.ds_read("ds_read_b128", cs, self.vCSR, idx * 1024)))
        it.append((8, (lambda: k.mfma(True, acc, cs, self.mneg, acc)) if wfirst else (lambda: k.mfma(True, acc, self.mneg, cs, acc))))
        return it
    def epi_silu(self, acc, sbyte, tok):
        k, T = self.k, self.sT
        it = []; t = self.et; O = self.eo
        for g4 in range(4):
            A = [acc[4 * g4 + i] for i in range(4)]
            for i in range(4): it.append((4, lambda i=i, A=A: k.V("v_mul_f32", t[i], self.cc, A[i])))
            for i in range(4): it.append((8, lambda i=i: k.V("v_exp_f32", t[i], t[i])))
            for i in range(4): it.append((4, lambda i=i: k.V("v_fma_f32", t[i], t[i], self.irs, self.irs)))
            for i in range(4): it.append((8, lambda i=i: k.V("v_rcp_f32", t[i], t[i])))
            for i in range(4): it.append((4, lambda i=i, A=A: k.V("v_mul_f32", t[i], t[i], A[i])))
            for i in range(2): it.append((4, lambda i=i, g4=g4: k.V("v_cvt_pk_bf16_f32", O[2 * g4 + i], t[2 * i], t[2 * i + 1])))
            if g4 % 2 == 1:
                h = g4 // 2
                def st(h=h):
                    k.S("s_mov_b32", T[3], sbyte)
                    k.gstore(O[4 * h:4 * h + 4], self.vST, self.sWS, T[3], imm=1024 * h, mod=" sc1", tok=tok)
                it.append((8, st))
        return it
    def phi4(self, A, sc, dst2):
        k, t = self.k, self.et
        it = []
        for i in range(4): it.append((4, lambda i=i: k.V("v_mul_f32", A[i], sc[i], A[i])))
        for i in range(4): it.append((8, lambda i=i: k.V("v_exp_f32_e64", t[i], A[i], mod="clamp")))
        for i in range(4): it.append((4, lambda i=i: k.V("v_max_f32", A[i], 1e-6 * LOG2E, A[i])))
        for i in range(4): it.append((4, lambda i=i: k.V("v_fmac_f32", t[i], self.sLn2, A[i])))
        for i in range(2): it.append((4, lambda i=i: k.V("v_cvt_pk_bf16_f32", dst2[i], t[2 * i], t[2 * i + 1])))
        return it

    QOFF = [49152, 57344, 0, 8192, 16384, 24576, 32768]
    def flag_addr(self, base, sline, shift, sidx):
        k, T, tmp = self.k, self.sT, self.tmp
        k.S("s_lshl_b32", T[1], sline, shift); k.S("s_lshl_b32", T[2], sidx, 3); k.S("s_add_u32", T[1], T[1], T[2]); k.S("s_add_u32", T[1], T[1], base)
        k.V("v_mov_b32", tmp[4], OOB); k.V("v_mov_b32", tmp[5], T[1])
        k.V("v_cmp_eq_u32", VCC, 0, self.lane); k.V("v_cndmask_b32", self.vFA, tmp[4], tmp[5])

    def role_h(self):
        k, T, tmp, c = self.k, self.sT, self.tmp, self.c
        k.label("L_roleH")
        self.ccmul = -LOG2E
        col = self.sCol
        k.S("s_and_b32", T[1], self.sIdx, 1); k.S("s_mul_i32", T[2], self.sIdx, 448)
        k.S("s_lshl_b32", T[3], T[1], 6); k.S("s_add_u32", col[0], T[2], T[3])
        for f in (self.job_x(0), self.job_w('w0', 0, col[0], W0R), self.job_x(1), self.job_w('w0', 1, col[0], W0R + 8192)): f()
        k.S("s_add_u32", col[1], col[0], 128); k.S("s_add_u32", col[2], col[0], 256)
        k.S("s_xor_b32", T[1], T[1], 1); k.S("s_mul_i32", T[1], T[1], 384); k.S("s_add_u32", col[3], T[2], T[1])
        self.prologue2()
        self.stamp('start')
        acc = self.blk[0:2]; cs = self.cs; vWH = self.vWH
        for _, f in self.tr_addrs(self.vTX, 64, W0R): f()
        k.V("v_lshrrev_b32", tmp[4], 2, self.lane); k.S("s_lshl_b32", T[1], self.sRt, 4); k.V("v_add_u32", tmp[4], T[1], tmp[4])
        k.V("v_and_b32", tmp[5], 3, self.lane); k.V("v_lshlrev_b32", tmp[5], 4, tmp[5])
        k.S("s_movk_i32", T[1], 3584); k.V("v_mad_u32_u24", vWH, tmp[4], T[1], tmp[5])
        k.S("s_lshl_b32", T[1], self.sI, 2); k.S("s_add_u32", T[1], T[1], self.sRt)
        k.S("s_mul_i32", T[2], T[1], 112 * 1024); k.S("s_mul_i32", T[3], self.sIdx, 14 * 1024); k.S("s_add_u32", T[2], T[2], T[3])
        k.S("s_lshl_b32", T[3], self.sGrp, 11); k.S("s_add_u32", T[2], T[2], T[3]); k.S("s_add_u32", T[2], T[2], HB)
        k.V("v_lshl_add_u32", self.vST, self.lane, 4, T[2])
        k.S("s_mov_b32", T[0], T[1]); k.S("s_lshl_b32", T[3], self.sIdx, 1); k.S("s_add_u32", T[3], T[3], self.sGrp)
        self.flag_addr(FLH, T[0], 7, T[3])
        self.p2_bases()
        for _, f in self.tr_addrs(self.vTY, 64, WB): f()

        def job_h(m):
            def f():
                k.S("s_cmp_eq_u32", self.sGrp, 0)
                k.S("s_cselect_b32", T[0], self.sAs[2 * m], self.sAs[min(2 * m + 1, 6)])
                k.S("s_mul_i32", T[0], T[0], self.sRS64); k.S("s_add_u32", T[0], T[0], col[3])
                k.S("s_add_u32", M0, self.sMw, W0R + ((3 + m) % 4) * 8192) if m < 3 else (
                    k.S("s_lshl_b32", T[1], self.sRt, 10), k.S("s_add_u32", M0, T[1], W0R + 2 * 8192))
                k.dma(vWH, self.sW, T[0], 0, ('wh', m))
            return f
        slots = []
        for ps in range(3):
            for n in range(28):
                p, sp = divmod(n, 4)
                off = [(p % 4) * 8192, p * 8192, self.QOFF[p]][ps]
                slots.append(dict(acc=acc[ps % 2], wfirst=True, addr=(self.vTY if ps == 1 else self.vTX)[sp], off=off, second=512, xi=n,
                                  cs=cs[ps % 2] if sp == 0 else None, csfirst=p == 0, first=n == 0))
        fill = Fill(); dq = []
        pre_read, pre_mfma, post = {}, {}, {}
        for p in range(7):
            def br(p=p): self.bar_wait(('x', p), ('w0', p))(); self.stamp(f'B{p}'); self.x_reads(p)
            pre_read[4 * p] = br
            pre_mfma[4 * p] = self.dots
        for p in range(5):
            dq.append((4 * p, self.job_x(p + 2))); dq.append((4 * p + 2, self.job_w('w0', p + 2, col[0], W0R + ((p + 2) % 4) * 8192)))
        for p in range(7): dq.append((20 + p, self.job_w('w1', p, col[1], WB + p * 8192)))
        for p in range(7): dq.append((31 + 3 * p, self.job_w('w2', p, col[2], XR + self.QOFF[p])))
        for m in range(4): dq.append((50 + 2 * m, job_h(m)))
        for n in range(3): dq.append((62 + 4 * n, self.job_p2_shared(n)))
        def end1():
            self.stamp('p1end')
            fill.extend(self.stats_part1()); fill.extend(self.cs_pack(cs[0], 0))
        post[27] = end1
        pre_read[28] = self.bar_wait(('w1', 0), ('w1', 1))
        def b2():
            fill.drain(); self.bar_wait(('w1', 2), ('w1', 3), ('w1', 4), lg=True)()
            fill.extend(self.stats_part2()); fill.extend(self.cs_apply(cs[0], 0, acc[0], True))
            fill.extend(self.tr_addrs(self.vTX, 64, XR))
            fill.extend(self.epi_silu(acc[0], 0, ('h', 0)))
        pre_read[34] = b2
        pre_read[48] = self.bar_wait(('w1', 5), ('w1', 6))
        def end2():
            fill.drain(); self.stamp('p2end'); fill.extend(self.cs_pack(cs[1], 1))
        post[55] = end2
        pre_read[56] = self.bar_wait(*[('w2', p) for p in range(4)])
        def b3():
            fill.drain(); self.bar_wait(('w2', 4), ('w2', 5), ('w2', 6), lg=True)()
            fill.extend(self.cs_apply(cs[1], 1, acc[1], True)); fill.extend(self.epi_silu(acc[1], 4096, ('h', 1)))
        pre_read[62] = b3
        post[72] = lambda: self.flag_store(1, [('h', 0)])
        self.run_slots(slots, pre_read, pre_mfma, post, fill, dq)
        fill.drain(); self.stamp('p3end')
        for _, f in self.cs_pack(cs[0], 2): f()
        self.bar_wait(*[('wh', m) for m in range(4)], lg=True)()
        k.S("s_cmp_eq_u32", self.sGrp, 1)
        k.branch("s_cbranch_scc1", "L_hB")
        st = self.save()
        for _, f in self.cs_apply(cs[0], 2, acc[0], True): f()
        epi = self.epi_silu(acc[0], 8192, ('fin',))
        self.p2a_preamble(epi, mid=lambda: self.flag_store(2, [('h', 1)]))
        k.S("s_add_u32", T[4], self.sTag[0], 3); k.V("v_mov_b32", self.vFV[0], T[4])
        self.stamp('tail')
        self.joinA.append(self.exit_state()); k.branch("s_branch", "L_p2a")
        self.restore(st)
        k.label("L_hB")
        vTH = self.vTY
        k.V("v_lshlrev_b32", tmp[6], 6, self.vRowp); k.V("v_and_b32", tmp[5], 63, self.vColb); k.V("v_add_u32", tmp[6], tmp[6], tmp[5])
        for sp in range(4):
            k.S("s_add_u32", T[3], self.sRt, sp); k.S("s_and_b32", T[3], T[3], 3); k.S("s_lshl_b32", T[3], T[3], 10)
            k.S("s_add_u32", T[3], T[3], W0R); k.V("v_add_u32", vTH[sp], T[3], tmp[6])
        hoff = [3 * 8192, 3 * 8192 + 4096, 0, 4096, 8192, 8192 + 4096, 2 * 8192]
        slots = [dict(acc=acc[1], wfirst=True, addr=vTH[n % 4], off=hoff[n // 4], second=256, xi=n, cs=cs[1], csfirst=n == 0, first=n == 0) for n in range(28)]
        fill = Fill()
        fill.extend(self.cs_apply(cs[0], 2, acc[0], True)); fill.extend(self.epi_silu(acc[0], 8192, ('h', 2)))
        self.run_slots(slots, {}, {}, {10: lambda: self.flag_store(2, [('h', 1)])}, fill, [(4, self.job_p2_b(3))])
        fill.drain(); self.stamp('p4end')
        for _, f in self.cs_pack(cs[1], 0, dst=cs[0]): f()
        for _, f in self.cs_apply(cs[0], 0, acc[1], True, read=False): f()
        epi = self.epi_silu(acc[1], 10240, ('fin',))
        half = len(epi) // 2
        for _, f in epi[:half - 1]: f()
        self.flag_store(3, [('h', 2)])
        for _, f in epi[half - 1:]: f()
        k.S("s_add_u32", T[4], self.sTag[0], 4); k.V("v_mov_b32", self.vFV[0], T[4])
        self.stamp('tail')
        self.joinB.append(self.exit_state()); k.branch("s_branch", "L_p2b")

    def save(self):
        import copy
        k = self.k
        return (copy.deepcopy(k.vm), copy.deepcopy(k.lg), list(k.hist), k.pos)
    def restore(self, st):
        k = self.k
        k.vm, k.lg, k.hist, k.pos = [dict(e) for e in st[0]], [dict(e) for e in st[1]], list(st[2]), st[3]
    def exit_state(self):
        self.k.wait_lg_all()
        self.k.flush_hazards()
        return [dict(e) for e in self.k.vm]
    def merge(self, states):
        k = self.k
        young = {}
        for st in states:
            for i, e in enumerate(st):
                y = len(st) - 1 - i
                keys = [('t', e['tok'])] + [('r', r) for r in e['regs']]
                for key in keys: young[key] = min(young.get(key, 99), y)
        L = max(young.values()) + 1 if young else 0
        q = []
        for key, y in young.items(): q.append((L - 1 - y, key))
        k.vm = []
        for pos in range(L):
            es = [key for p_, key in q if p_ == pos]
            k.vm.append(dict(regs={x[1] for x in es if x[0] == 'r'}, tok=None, toks={x[1] for x in es if x[0] == 't'}))
        k.lg = []; k.hist = []

    def role_qkv(self):
        k, T, tmp, c = self.k, self.sT, self.tmp, self.c
        k.label("L_roleQ")
        self.ccmul = LOG2E
        col = self.sCol
        k.S("s_mul_i32", col[2], self.sIdx, 112); k.S("s_add_u32", col[0], col[2], 896); k.S("s_add_u32", col[1], col[2], 1792)
        for p in range(2):
            for f in (self.job_x(p), self.job_w('k', p, col[0], KVR + p * 16384), self.job_w('v', p, col[1], KVR + p * 16384 + 8192)): f()
        self.prologue2()
        self.stamp('start')
        accQ, accK, accV = self.blk
        csK, csV, csQ = self.cs
        R2 = [v(44), v(45), v(46), v(47), v(48), v(49), v(50), v(51), v(52), v(53), v(54), v(55), v(112), v(113), v(114), v(115)]
        R2q = [v(44, 4), v(48, 4), v(52, 4), v(112, 4)]
        for _, f in self.tr_addrs(self.vTX, 56, KVR): f()
        for _, f in self.tr_addrs(self.vTY, 56, XR): f()
        head = col[3]
        k.S("s_lshl_b32", head, self.sIdx, 1); k.S("s_add_u32", head, head, self.sGrp)
        k.S("s_lshl_b32", T[1], head, 4); k.S("s_add_u32", T[1], T[1], self.sI); k.S("s_lshl_b32", T[1], T[1], 2); k.S("s_add_u32", T[1], T[1], self.sRt)
        k.S("s_lshl_b32", T[1], T[1], 10); k.S("s_add_u32", T[1], T[1], PB)
        k.V("v_lshl_add_u32", self.vST, self.lane, 4, T[1])
        k.S("s_lshl_b32", T[0], head, 1); k.S("s_lshr_b32", T[3], self.sRt, 1); k.S("s_add_u32", T[0], T[0], T[3])
        k.S("s_lshl_b32", T[3], self.sI, 1); k.S("s_and_b32", T[4], self.sRt, 1); k.S("s_add_u32", T[3], T[3], T[4])
        self.flag_addr(FLP, T[0], 8, T[3])
        self.p2_bases()
        slots = []
        for n in range(56):
            p, r = divmod(n, 8); sp, sub = divmod(r, 2)
            slots.append(dict(acc=(accK, accV)[sub], wfirst=False, addr=self.vTX[sp], off=(p % 4) * 16384 + 8192 * sub, second=512, xi=4 * p + sp,
                              cs=(csK, csV)[sub] if sp == 0 else None, csfirst=p == 0, first=n < 2))
        for n in range(28):
            p, sp = divmod(n, 4)
            slots.append(dict(acc=accQ, wfirst=True, addr=self.vTY[sp], off=self.QOFF[p], second=512, xi=n,
                              cs=csQ if sp == 0 else None, csfirst=p == 0, first=n == 0, bud=30))
        fill = Fill(); dq = []
        pre_read, pre_mfma, post = {}, {}, {}
        for p in range(7):
            def br(p=p): self.bar_wait(('x', p), ('k', p), ('v', p))(); self.stamp(f'B{p}'); self.x_reads(p)
            pre_read[8 * p] = br
            pre_mfma[8 * p] = self.dots
        for p in range(5):
            o = KVR + ((p + 2) % 4) * 16384
            dq += [(8 * p, self.job_x(p + 2)), (8 * p + 3, self.job_w('k', p + 2, col[0], o)), (8 * p + 5, self.job_w('v', p + 2, col[1], o + 8192))]
        for p, n in enumerate((40, 42, 44, 46, 49, 52, 54)): dq.append((n, self.job_w('q', p, col[2], XR + self.QOFF[p])))
        for n in range(3): dq.append((64 + 4 * n, self.job_p2_shared(n)))
        pk = self.xt; pv = accV[0:8]
        def end1():
            self.stamp('p1end')
            fill.extend(self.stats_part1()); fill.extend(self.cs_pack(csK, 0)); fill.extend(self.cs_pack(csV, 1))
        post[55] = end1
        pre_read[56] = self.bar_wait(('q', 0), ('q', 1))
        def b2():
            fill.drain(); self.bar_wait(('q', 2), ('q', 3), lg=True)()
            fill.extend(self.stats_part2())
            def r2w():
                k.S("s_lshl_b32", T[3], self.sWv, 7); k.S("s_add_u32", T[3], T[3], R2A)
                k.V("v_and_b32", tmp[4], 31, self.lane); k.V("v_lshl_add_u32", tmp[4], tmp[4], 2, T[3])
                k.ds_write("ds_write_b32", tmp[4], self.cc, 0)
                k.V("v_lshrrev_b32", tmp[4], 5, self.lane); k.V("v_lshl_add_u32", tmp[4], tmp[4], 4, T[3])
                for q in range(4): k.ds_read("ds_read_b128", R2q[q], tmp[4], 32 * q)
            fill.add(40, r2w)
            fill.extend(self.cs_apply(csK, 0, accK, False)); fill.extend(self.cs_apply(self.et, 1, accV, False))
            for g4 in range(4):
                fill.extend(self.phi4([accK[4 * g4 + i] for i in range(4)], [R2[4 * g4 + i] for i in range(4)], pk[2 * g4:2 * g4 + 2]))
            fill.add(4, lambda: k.V("v_mov_b32", self.et[0], ONES))
            for i in range(16): fill.add(4, lambda i=i: k.V("v_mul_f32", accV[i], R2[i], accV[i]))
            for i in range(8): fill.add(4, lambda i=i: k.V("v_cvt_pk_bf16_f32", pv[i], accV[2 * i], accV[2 * i + 1]))
            for i in range(8): fill.add(4, lambda i=i: k.V("v_cndmask_b32_e64", pv[i], pv[i], self.et[0], self.sPad))
            fill.add(8, lambda: k.mfma(True, accK, pk[0:4], pv[0:4], 0))
            fill.add(8, lambda: k.mfma(True, accK, pk[4:8], pv[4:8], accK))
        pre_read[62] = b2
        pre_read[72] = self.bar_wait(('q', 4), ('q', 5), ('q', 6))
        self.run_slots(slots, pre_read, pre_mfma, post, fill, dq)
        fill.drain(); self.stamp('p2end')
        for _, f in self.cs_pack(csQ, 2): f()
        k.S("s_lshl_b32", T[3], self.sGrp, 14); k.S("s_lshl_b32", T[4], self.sRt, 10); k.S("s_add_u32", T[4], T[4], T[3]); k.S("s_add_u32", T[4], T[4], EXA)
        k.V("v_lshl_add_u32", tmp[4], self.lane, 4, T[4])
        for d in range(4): k.ds_write("ds_write_b128", tmp[4], accK[4 * d:4 * d + 4], d * 4096)
        k.S("s_lshl_b32", T[4], self.sRt, 12); k.S("s_add_u32", T[4], T[4], T[3]); k.S("s_add_u32", T[4], T[4], EXA)
        k.V("v_lshl_add_u32", tmp[5], self.lane, 4, T[4])
        self.bar_wait(lg=True)()
        for sw in range(4): k.ds_read("ds_read_b128", accV[4 * sw:4 * sw + 4], tmp[5], sw * 1024)
        for _, f in self.cs_apply(csQ, 2, accQ, True): f()
        for i in range(4):
            k.V("v_add_f32", accV[i], accV[i], accV[4 + i]); k.V("v_add_f32", accV[8 + i], accV[8 + i], accV[12 + i])
        for i in range(4): k.V("v_add_f32", accV[i], accV[i], accV[8 + i])
        k.gstore(accV[0:4], self.vST, self.sWS, 0, mod=" sc1", tok=('pst',))
        self.stamp('p3end')
        k.S("s_lshl_b32", T[1], self.sI, 2); k.S("s_add_u32", T[1], T[1], self.sRt)
        k.S("s_lshl_b32", T[2], T[1], 4); k.S("s_add_u32", T[2], T[2], head); k.S("s_lshl_b32", T[2], T[2], 11); k.S("s_add_u32", T[2], T[2], QB)
        vSQ = self.vWH
        k.V("v_lshl_add_u32", vSQ, self.lane, 4, T[2])
        k.S("s_mov_b32", self.sCol[0], T[1])
        def qepi():
            it = []
            for g4 in range(4):
                it += self.phi4([accQ[4 * g4 + i] for i in range(4)], [self.cc] * 4, pk[2 * g4:2 * g4 + 2])
                if g4 % 2 == 1:
                    h = g4 // 2
                    it.append((4, lambda h=h: k.gstore(pk[4 * h:4 * h + 4], vSQ, self.sWS, 0, imm=1024 * h, mod=" sc1", tok=('fin',))))
            return it
        def pflag_then_qaddr():
            self.flag_store(1, [('pst',)])
            self.flag_addr(FLQ, self.sCol[0], 7, head)
            k.S("s_add_u32", T[4], self.sTag[0], 1); k.V("v_mov_b32", self.vFV[0], T[4])
        k.S("s_cmp_eq_u32", self.sIsRed, 1)
        k.branch("s_cbranch_scc1", "L_red")
        k.S("s_cmp_eq_u32", self.sGrp, 1)
        k.branch("s_cbranch_scc1", "L_qB")
        st = self.save()
        self.p2a_preamble(qepi(), mid=None)
        pflag_then_qaddr()
        self.stamp('tail')
        self.joinA.append(self.exit_state()); k.branch("s_branch", "L_p2a")
        self.restore(st)
        k.label("L_qB")
        for _, f in qepi(): f()
        self.job_p2_b(3)()
        pflag_then_qaddr()
        self.stamp('tail')
        self.joinB.append(self.exit_state()); k.branch("s_branch", "L_p2b")
        self.restore(st)
        k.label("L_red")
        for _, f in qepi(): f()
        pflag_then_qaddr()
        self.flag_store(1, [('fin',)])
        self.stamp('tail')
        self.reducer()

    def reducer(self):
        k, T, tmp, lane = self.k, self.sT, self.tmp, self.lane
        vP, vPA, vD = v(44, 2), v(46), v(47)
        k.S("s_lshl_b32", T[1], self.sRho, 8); k.S("s_add_u32", T[1], T[1], FLP)
        k.V("v_lshl_add_u32", tmp[4], lane, 3, T[1]); k.V("v_mov_b32", tmp[5], OOB)
        k.V("v_cmp_gt_u32", VCC, 32, lane); k.V("v_cndmask_b32", vPA, tmp[5], tmp[4])
        self.poll_issue(vP, vPA)
        k.S("s_lshr_b32", T[1], self.sRho, 1); k.S("s_lshl_b32", T[1], T[1], 16); k.S("s_and_b32", T[2], self.sRho, 1); k.S("s_lshl_b32", T[2], T[2], 11)
        k.S("s_add_u32", T[1], T[1], T[2]); k.S("s_lshl_b32", T[2], self.sWv, 7); k.S("s_add_u32", T[1], T[1], T[2]); k.S("s_add_u32", T[1], T[1], PB)
        k.V("v_lshrrev_b32", tmp[4], 3, lane); k.V("v_and_b32", tmp[5], 7, lane)
        k.V("v_lshlrev_b32", tmp[4], 12, tmp[4]); k.V("v_lshl_add_u32", tmp[4], tmp[5], 4, tmp[4]); k.V("v_add_u32", tmp[4], T[1], tmp[4])
        self.poll_check(vP, vPA, vD, 1, (-1, 0))
        self.stamp('c1')
        A, B = v(60, 8), v(68, 8)
        k.S("s_mov_b32", T[2], 32768)
        for i2, dst in enumerate((A, B)):
            for qq in range(2): k.gload(dst[4 * qq:4 * qq + 4], tmp[4], self.sWS, T[2] if i2 else 0, imm=1024 * qq, mod=" sc1")
        k.S("s_and_b32", T[3], self.sWv, 3); k.S("s_cmp_eq_u32", T[3], 3); k.S("s_cselect_b32", T[3], 4, 8)
        k.V("v_cmp_gt_u32", VCC, T[3], tmp[5]); k.V("v_mov_b32", tmp[6], 1.0); k.V("v_mov_b32", tmp[7], self.sLn2)
        k.V("v_cndmask_b32", tmp[6], tmp[6], tmp[7])
        k.S("s_and_b32", T[3], self.sRho, self.sGrp); k.S("s_and_b32", T[3], T[3], 1); k.S("s_cmp_eq_u32", T[3], 1); k.S("s_cselect_b32", T[3], 0, 1.0)
        k.V("v_mul_f32", tmp[7], T[3], tmp[6])
        k.S("s_lshl_b32", T[1], self.sRho, 10); k.S("s_lshl_b32", T[2], self.sWv, 7); k.S("s_add_u32", T[1], T[1], T[2]); k.S("s_add_u32", T[1], T[1], KVB)
        k.V("v_lshl_add_u32", tmp[4], lane, 4, T[1]); k.V("v_mov_b32", tmp[5], OOB)
        k.V("v_cmp_gt_u32", VCC, 8, lane); k.V("v_cndmask_b32", tmp[4], tmp[5], tmp[4])
        for i in range(8): k.V("v_add_f32", A[i], A[i], B[i])
        for i in range(8): k.emit(f"v_add_f32_dpp {B[i]}, {A[i]}, {A[i]} row_ror:8 row_mask:0xf bank_mask:0xf", 'perm', rd=[A[i]], wr=[B[i]])
        for op in ("v_permlane16_swap_b32", "v_permlane32_swap_b32"):
            for i in range(8): k.V("v_mov_b32", A[i], B[i])
            for i in range(8): k.V(op, A[i], B[i])
            for i in range(8): k.V("v_add_f32", B[i], A[i], B[i])
        for i in range(8): k.V("v_mul_f32", B[i], tmp[6] if i < 4 else tmp[7], B[i])
        for i in range(4): k.V("v_cvt_pk_bf16_f32", A[i], B[2 * i], B[2 * i + 1])
        k.gstore(A[0:4], tmp[4], self.sWS, 0, mod=" sc1", tok=('kv',))
        k.wait_tok(('kv',)); k.barrier()
        k.S("s_cmp_eq_u32", self.sWv, 0)
        k.branch("s_cbranch_scc0", "L_fin")
        k.S("s_lshr_b32", T[0], self.sRho, 3); k.S("s_and_b32", T[3], self.sRho, 7)
        self.flag_addr(FLK, T[0], 7, T[3])
        self.flag_store(1, [])
        self.stamp('c2')
        k.S("s_cmp_eq_u32", self.sRho, 0)
        k.branch("s_cbranch_scc0", "L_fin")
        k.V("v_lshrrev_b32", tmp[4], 3, lane); k.V("v_lshlrev_b32", tmp[4], 7, tmp[4]); k.V("v_and_b32", tmp[5], 7, lane)
        k.V("v_lshl_add_u32", tmp[4], tmp[5], 3, tmp[4]); k.V("v_add_u32", vPA, FLK, tmp[4])
        self.poll_issue(vP, vPA); self.poll_check(vP, vPA, vD, 1, (-1, 0))
        k.V("v_lshrrev_b32", tmp[4], 2, lane); k.V("v_lshlrev_b32", tmp[4], 9, tmp[4]); k.V("v_and_b32", tmp[5], 3, lane)
        k.V("v_lshl_add_u32", tmp[4], tmp[5], 4, tmp[4])
        for h in range(2):
            k.V("v_add_u32", vPA, FLH + 64 * h, tmp[4])
            self.poll_issue(vP, vPA); self.poll_check(vP, vPA, vD, 1, (-1, -1))
        k.V("v_mov_b32", tmp[4], 0); k.V("v_mov_b32", tmp[5], OOB); k.V("v_cmp_eq_u32", VCC, 0, lane); k.V("v_cndmask_b32", tmp[4], tmp[5], tmp[4])
        k.V("v_mov_b32", self.vFV[0], self.sTag[0])
        k.gstore(self.vFV, tmp[4], self.sWS, 0, imm=EPOCH, mod=" sc1")
        k.branch("s_branch", "L_fin")

    def t2_base(self, dst0, dst1, base):
        k, tmp = self.k, self.tmp
        return [(4, lambda: k.V("v_bfe_u32", tmp[4], self.lane, 2, 2)),
                (4, lambda: k.V("v_lshrrev_b32", tmp[5], 5, self.lane)),
                (4, lambda: k.V("v_lshl_add_u32", tmp[4], tmp[5], 2, tmp[4])),
                (4, lambda: k.V("v_lshl_add_u32", tmp[4], tmp[4], 7, base)),
                (4, lambda: k.V("v_add_u32", dst0, tmp[4], self.vColb)),
                (4, lambda: k.V("v_xor_b32", tmp[5], 64, self.vColb)),
                (4, lambda: k.V("v_add_u32", dst1, tmp[4], tmp[5]))]
    def job_p2_a(self, n):
        k = self.k
        def f():
            if n % 2 == 0: self.unit_w(n // 2)
            src = self.sUW[2] if n == 1 else self.sUW[0]
            r, off = self.a_pos(n)
            k.S("s_add_u32", M0, self.sMp[r], off)
            b = 2 * (n % 2)
            k.dma(self.vP2d[b], self.sP2, src, 0, ('p2', n)); k.dma(self.vP2d[b + 1], self.sP2, src, 1024, ('p2', n))
        return f
    def job_p2_b(self, n):
        k, T = self.k, self.sT
        def f():
            k.S("s_mul_i32", T[1], self.sRt, 112 * 896); k.S("s_add_u32", T[1], T[1], (n // 2) * 28 * 896)
            k.S("s_add_u32", M0, self.sMp[0 if n < 4 else 1], (n % 4) * 2048)
            b = 2 * (n % 2)
            k.dma(self.vP2d[b], self.sP2, T[1], 0, ('p2', n)); k.dma(self.vP2d[b + 1], self.sP2, T[1], 1024, ('p2', n))
        return f
    def act(self, n, rt): return a(8 * (n % 14) + 4 * rt, 4)
    def act_load(self, n):
        k = self.k
        if n % 2 == 0: self.unit_a(n // 2)
        for rt in range(2): k.gload(self.act(n, rt), self.vAct[rt], self.sWS, self.sUW[1], imm=1024 * (n % 2), mod=" sc1")
    def p2a_regs(self):
        self.vAct = [v(76), v(77)]; self.aP, self.aPA, self.aD = v(78, 2), v(80), v(81)
        self.vT2 = [v(82), v(83), v(84), v(85)]
    def p2a_preamble(self, epi, mid):
        k, T, tmp, lane = self.k, self.sT, self.tmp, self.lane
        self.p2a_regs()
        k.V("v_and_b32", tmp[4], 1, lane); k.V("v_lshlrev_b32", tmp[4], 7, tmp[4])
        k.V("v_bfe_u32", tmp[5], lane, 1, 1); k.V("v_lshl_add_u32", tmp[4], tmp[5], 4, tmp[4])
        k.V("v_bfe_u32", tmp[5], lane, 2, 1); k.V("v_lshl_add_u32", tmp[4], tmp[5], 3, tmp[4])
        k.S("s_lshl_b32", T[1], self.sI2, 8); k.S("s_lshl_b32", T[2], self.sRt, 5); k.S("s_add_u32", T[1], T[1], T[2]); k.S("s_add_u32", T[1], T[1], FLH)
        k.V("v_add_u32", tmp[4], T[1], tmp[4]); k.V("v_mov_b32", tmp[5], OOB)
        k.V("v_cmp_gt_u32", VCC, 8, lane); k.V("v_cndmask_b32", self.aPA, tmp[5], tmp[4])
        self.poll_issue(self.aP, self.aPA)
        k.S("s_mul_i32", T[1], self.sI2, 224 * 1024); k.S("s_mul_i32", T[2], self.sRt, 28 * 1024); k.S("s_add_u32", T[1], T[1], T[2]); k.S("s_add_u32", T[1], T[1], HB)
        k.V("v_lshl_add_u32", self.vAct[0], lane, 4, T[1]); k.V("v_add_u32", self.vAct[1], 112 * 1024, self.vAct[0])
        self.job_p2_a(3)()
        for _, f in self.t2_base(self.vT2[0], self.vT2[1], self.sMp[0]) + self.t2_base(self.vT2[2], self.vT2[3], self.sMp[1]): f()
        n1 = (len(epi) * 2) // 5
        for _, f in epi[:n1]: f()
        if mid: mid()
        self.stamp('preG0')
        self.poll_check(self.aP, self.aPA, self.aD, 1, 0xff)
        self.stamp('G0')
        rest = epi[n1:]
        step = max(1, len(rest) // 5)
        for n in range(4):
            self.act_load(n)
            for _, f in rest[n * step:(n + 1) * step]: f()
        for _, f in rest[4 * step:]: f()
        self.pre_acts = 4
    def final_write_addrs(self, regs, base):
        k, tmp = self.k, self.tmp
        k.V("v_and_b32", tmp[4], 31, self.lane); k.V("v_lshl_add_u32", tmp[4], tmp[4], 8, base)
        k.V("v_lshrrev_b32", tmp[5], 5, self.lane); k.V("v_and_b32", tmp[6], 7, self.lane); k.V("v_xor_b32", tmp[5], tmp[5], tmp[6])
        for q in range(4):
            k.V("v_xor_b32", tmp[6], 2 * q, tmp[5]); k.V("v_lshl_add_u32", regs[q], tmp[6], 4, tmp[4])
    def x_res_load(self):
        k, T, tmp = self.k, self.sT, self.tmp
        self.vXO, self.xres = v(4), v(8, 4)
        k.S("s_lshl_b32", T[1], self.sI2, 3); k.S("s_add_u32", T[1], T[1], self.sWv); k.S("s_mul_i32", T[1], T[1], 8 * 896)
        k.S("s_lshl_b32", T[2], self.sC, 7); k.S("s_add_u32", T[1], T[1], T[2])
        k.V("v_lshrrev_b32", tmp[4], 3, self.lane); k.V("v_and_b32", tmp[5], 7, self.lane); k.V("v_lshlrev_b32", tmp[5], 4, tmp[5])
        k.S("s_movk_i32", T[2], 896); k.V("v_mad_u32_u24", tmp[4], tmp[4], T[2], tmp[5]); k.V("v_add_u32", self.vXO, T[1], tmp[4])
        k.gload(self.xres, self.vXO, self.sX, 0)

    def phase2a(self):
        k, T, c = self.k, self.sT, self.c
        k.label("L_p2a")
        self.merge(self.joinA)
        self.p2a_regs()
        look, wl = c['look'], 9
        accF = [[v(28, 16), v(44, 16)], [v(60, 16), v(92, 16)]]
        def wf(n, ct): return a(112 + 4 * ((2 * n + ct) % 6), 4)
        def wread(n):
            k.wait_tok(('p2', n))
            r, off = self.a_pos(n)
            for ct in range(2):
                k.ds_read("ds_read_b64_tr_b16", wf(n, ct)[0:2], self.vT2[2 * r + ct], off)
                k.ds_read("ds_read_b64_tr_b16", wf(n, ct)[2:4], self.vT2[2 * r + ct], off + 1024)
        wread(0); wread(1)
        nw, na = 4, self.pre_acts
        checks = {8: (2, 0xff), 16: (3, 0xff), 24: (4, 0xf0)}
        for n in range(28):
            if n == 4: self.stamp('hook'); k.barrier(); self.stamp('J')
            k.wait_regs(wf(n, 0), wf(n, 1), self.act(n, 0), self.act(n, 1))
            i = 0
            for rt in range(2):
                for ct in range(2):
                    k.mfma(True, accF[ct][rt], wf(n, ct), self.act(n, rt), 0 if n == 0 else accF[ct][rt])
                    if i == 0 and n + 2 < 28: wread(n + 2)
                    if i == 1:
                        cnt = 0
                        while na < 28 and na <= n + look and cnt < 2:
                            if na in checks:
                                self.poll_check(self.aP, self.aPA, self.aD, *checks[na])
                                self.stamp(f'c{na // 8}')
                            self.act_load(na); na += 1; cnt += 1
                        if na + 2 in checks or (na + 3 in checks and False): self.poll_issue(self.aP, self.aPA)
                    if i == 3:
                        cnt = 0
                        while nw < 28 and nw <= n + wl and nw - 11 <= n and cnt < 2:
                            self.job_p2_a(nw)(); nw += 1; cnt += 1
                    i += 1
            if n == 2: self.flag_hook()
            if n == 22: self.x_res_load()
        self.stamp('mainend')
        W = [v(12 + 0), v(13), v(14), v(15)]
        W = [v(108), v(109), v(110), v(111)]
        self.final_write_addrs(W, self.sMp[1])
        for rt in range(2):
            for ct in range(2):
                for q in range(4): k.ds_write("ds_write_b128", W[q], accF[ct][rt][4 * q:4 * q + 4], 8192 * rt + 128 * ct)
        self.joinF.append(self.exit_state()); k.branch("s_branch", "L_final")
    def flag_hook(self):
        k = self.k
        k.wait_tok(('fin',))
        k.gstore(self.vFV, self.vFA, self.sWS, 0, mod=" sc1", tok=('flag',))

    def phase2b(self):
        k, T, tmp, lane, c = self.k, self.sT, self.tmp, self.lane, self.c
        k.label("L_p2b")
        self.merge(self.joinB)
        vPQ, vKV, vP, vPA, vD = [v(10), v(11)], v(15), v(16, 2), v(18), v(19)
        vT2 = [v(20), v(23), v(108), v(109)]
        rc, rc2, den = v(12), v(13), v(14)
        kv = lambda hh, s_: v(24 + 8 * hh + 4 * s_, 4)
        pq = lambda hh, rt, s_: a(64 + 16 * hh + 8 * rt + 4 * s_, 4)
        N = [v(56, 16), v(72, 16)]; O = [v(88, 8), v(96, 8)]
        accS = [[a(0, 16), a(16, 16)], [a(32, 16), a(48, 16)]]
        k.V("v_and_b32", tmp[4], 1, lane); k.V("v_lshlrev_b32", tmp[4], 7, tmp[4])
        k.V("v_bfe_u32", tmp[5], lane, 1, 2); k.V("v_lshl_add_u32", tmp[4], tmp[5], 3, tmp[4])
        k.S("s_lshl_b32", T[1], self.sI2, 8); k.S("s_lshl_b32", T[2], self.sRt, 5); k.S("s_add_u32", T[1], T[1], T[2]); k.S("s_add_u32", T[1], T[1], FLQ)
        k.V("v_add_u32", tmp[4], T[1], tmp[4])
        k.S("s_lshl_b32", T[1], self.sRt, 7); k.S("s_add_u32", T[1], T[1], FLK - 64)
        k.V("v_lshl_add_u32", tmp[5], lane, 3, T[1])
        k.V("v_cmp_gt_u32", VCC, 8, lane); k.V("v_cndmask_b32", tmp[4], tmp[5], tmp[4])
        k.V("v_mov_b32", tmp[5], OOB); k.V("v_cmp_gt_u32", VCC, 16, lane); k.V("v_cndmask_b32", vPA, tmp[5], tmp[4])
        k.S("s_lshl_b32", T[1], self.sI2, 16); k.S("s_lshl_b32", T[2], self.sRt, 13); k.S("s_add_u32", T[1], T[1], T[2]); k.S("s_add_u32", T[1], T[1], QB)
        k.V("v_lshl_add_u32", vPQ[0], lane, 4, T[1]); k.V("v_add_u32", vPQ[1], 32768, vPQ[0])
        k.S("s_add_u32", T[1], T[2], KVB); k.V("v_lshl_add_u32", vKV, lane, 4, T[1])
        self.flag_hook()
        self.stamp('hook')
        k.barrier()
        self.stamp('J')
        for n in range(4, 8): self.job_p2_b(n)()
        self.poll_issue(vP, vPA)
        self.poll_check(vP, vPA, vD, 1, 0xff)
        self.stamp('c1')
        k.S("s_movk_i32", T[0], 4096)
        for hh in range(4):
            for rt in range(2):
                for s_ in range(2):
                    k.gload(pq(hh, rt, s_), vPQ[rt], self.sWS, T[0] if hh >= 2 else 0, imm=2048 * (hh % 2) + 1024 * s_, mod=" sc1")
        self.poll_issue(vP, vPA)
        for _, f in self.t2_base(vT2[0], vT2[1], self.sMp[0]) + self.t2_base(vT2[2], vT2[3], self.sMp[1]): f()
        self.x_res_load()
        self.poll_check(vP, vPA, vD, 1, 0xff00)
        self.stamp('c2')
        k.S("s_movk_i32", T[0], 4096)
        for hh in range(4):
            for s_ in range(2):
                k.gload(kv(hh, s_), vKV, self.sWS, T[0] if hh >= 2 else 0, imm=2048 * (hh % 2) + 1024 * s_, mod=" sc1")
        Wf = [v(104, 4), v(112, 4), v(116, 4), v(4 + 0, 4)]
        Wf = [v(104, 4), v(112, 4), v(116, 4), v(16, 4)]
        def wread(hh, f):
            s_, ct = divmod(f, 2); n = 2 * hh + s_
            k.wait_tok(('p2', n))
            r = 0 if n < 4 else 1
            k.ds_read("ds_read_b64_tr_b16", Wf[f][0:2], vT2[2 * r + ct], (n % 4) * 2048)
            k.ds_read("ds_read_b64_tr_b16", Wf[f][2:4], vT2[2 * r + ct], (n % 4) * 2048 + 1024)
        def num(u):
            hh, rt = divmod(u, 2)
            k.mfma(True, N[u % 2], kv(hh, 0), pq(hh, rt, 0), 0)
            k.mfma(True, N[u % 2], kv(hh, 1), pq(hh, rt, 1), N[u % 2])
        def val(u):
            n_, o_ = N[u % 2], O[u % 2]
            it = [(4, lambda: k.V("v_mov_b32", den, n_[12])),
                  (4, lambda: k.V("v_permlane32_swap_b32", n_[12], den)),
                  (4, lambda: k.V("v_add_f32", den, 1e-6, den)),
                  (8, lambda: k.V("v_rcp_f32", rc, den)),
                  (4, lambda: k.V("v_cndmask_b32_e64", rc2, rc, 0, self.sHi))]
            for i in range(8):
                it.append((8, lambda i=i: [k.V("v_mul_f32", n_[j], rc if j < 12 else rc2, n_[j]) for j in (2 * i, 2 * i + 1)]))
                it.append((4, lambda i=i: k.V("v_cvt_pk_bf16_f32", o_[i], n_[2 * i], n_[2 * i + 1])))
            return it
        for f in range(4): wread(0, f)
        num(0); num(1)
        self.stamp('c3')
        for _, f in val(0): f()
        for u in range(8):
            hh, rt = divmod(u, 2)
            fill = Fill()
            if u + 1 < 8: fill.extend(val(u + 1))
            for f in range(4):
                s_, ct = divmod(f, 2)
                k.mfma(True, accS[ct][rt], Wf[f], O[u % 2][4 * s_:4 * s_ + 4], 0 if (hh == 0 and s_ == 0) else accS[ct][rt])
                if rt == 1 and hh < 3: wread(hh + 1, f)
                if f == 0 and u + 2 < 8: num(u + 2)
                fill.run(30)
            fill.drain()
        self.stamp('mainend')
        W = [v(24), v(25), v(26), v(27)]
        self.final_write_addrs(W, self.sMp[0])
        k.S("s_sub_u32", T[1], self.sMp[1], self.sMp[0])
        for rt in range(2):
            if rt == 1:
                for q in range(4): k.V("v_add_u32", W[q], T[1], W[q])
            for ct in range(2):
                for q in range(4): k.ds_write("ds_write_b128", W[q], accS[ct][rt][4 * q:4 * q + 4], 128 * ct)
        self.joinF.append(self.exit_state())

    def final(self):
        k, T, tmp, lane = self.k, self.sT, self.tmp, self.lane
        k.label("L_final")
        self.merge(self.joinF)
        vF, vS = [v(24), v(25)], [v(26), v(27)]
        k.V("v_lshrrev_b32", tmp[4], 3, lane); k.V("v_and_b32", tmp[5], 7, lane); k.V("v_lshlrev_b32", tmp[5], 1, tmp[5])
        k.V("v_xor_b32", tmp[5], tmp[5], tmp[4]); k.V("v_lshlrev_b32", tmp[4], 8, tmp[4])
        k.S("s_lshl_b32", T[1], self.sWv, 11); k.S("s_lshl_b32", T[2], self.sRt, 11)
        k.S("s_cmp_eq_u32", self.sGrp, 0); k.S("s_cselect_b32", T[3], WB, W0R); k.S("s_add_u32", T[2], T[2], T[3])
        for h in range(2):
            if h: k.V("v_xor_b32", tmp[5], 1, tmp[5])
            k.V("v_lshl_add_u32", tmp[6], tmp[5], 4, tmp[4])
            k.V("v_add_u32", vF[h], T[1], tmp[6]); k.V("v_add_u32", vS[h], T[2], tmp[6])
        k.barrier()
        self.stamp('Z')
        F = [v(28 + 8 * i, 8) for i in range(4)]; S = [v(60 + 8 * i, 8) for i in range(4)]
        for src in range(4):
            for h in range(2): k.ds_read("ds_read_b128", F[src][4 * h:4 * h + 4], vF[h], src * 16384)
        for src in range(4):
            for h in range(2): k.ds_read("ds_read_b128", S[src][4 * h:4 * h + 4], vS[h], src * 8192)
        def tree(X):
            for i in range(8): k.V("v_add_f32", X[0][i], X[0][i], X[1][i])
            for i in range(8): k.V("v_add_f32", X[2][i], X[2][i], X[3][i])
            for i in range(8): k.V("v_add_f32", X[0][i], X[0][i], X[2][i])
        tree(F)
        t = F[1]; xu = F[2]
        for i in range(8): k.V("v_mul_f32", t[i], -LOG2E, F[0][i])
        for i in range(8): k.V("v_exp_f32", t[i], t[i])
        for i in range(8): k.V("v_add_f32", t[i], 1.0, t[i])
        for i in range(8): k.V("v_rcp_f32", t[i], t[i])
        tree(S)
        for i in range(8): k.V("v_mul_f32", t[i], t[i], F[0][i])
        for i in range(4):
            k.V("v_lshlrev_b32", xu[2 * i], 16, self.xres[i]); k.V("v_and_b32", xu[2 * i + 1], 0xffff0000, self.xres[i])
        for i in range(8): k.V("v_fmac_f32", xu[i], S[0][i], t[i])
        for i in range(4): k.V("v_cvt_pk_bf16_f32", self.xres[i], xu[2 * i], xu[2 * i + 1])
        k.gstore(self.xres, self.vXO, self.sOUT, 0)

    def build(self):
        k = self.k
        self.joinF = []
        self.prologue()
        k.S("s_cmp_eq_u32", self.sIsH, 1)
        k.branch("s_cbranch_scc0", "L_roleQ")
        st = self.save()
        self.role_h()
        self.restore(st)
        self.role_qkv()
        self.phase2a()
        self.phase2b()
        self.final()
        k.label("L_fin")
        k.raw("  s_waitcnt vmcnt(0)")
        self.stamp_flush()
        k.label("L_end")
        k.raw("  s_endpgm")
        head = open(__file__.rsplit('/', 1)[0] + "/header.txt").read() if '/' in __file__ else open("header.txt").read()
        head = head.replace("@LDS@", str(LDS_BYTES))
        tail = f""".section .rodata,"a"
.p2align 6
.amdhsa_kernel {NAME}_kernel
  .amdhsa_next_free_vgpr {NV + NA}
  .amdhsa_next_free_sgpr 100
  .amdhsa_accum_offset {NV}
  .amdhsa_group_segment_fixed_size 0
  .amdhsa_kernarg_size 72
  .amdhsa_user_sgpr_count 2
  .amdhsa_user_sgpr_kernarg_segment_ptr 1
  .amdhsa_system_sgpr_workgroup_id_x 1
  .amdhsa_float_denorm_mode_32 3
.end_amdhsa_kernel
"""
        if self.c['stamps']: head += '; stamps: ' + ','.join(self.c['stamps']) + '\n'
        return head + k.text() + tail

if __name__ == "__main__":
    import json
    out = sys.argv[1]
    cfg = json.loads(sys.argv[2]) if len(sys.argv) > 2 else {}
    g = Gen(**cfg)
    txt = g.build()
    open(out, "w").write(txt)
    n = sum(1 for l in g.k.out if l.startswith("  ") and not l.startswith("  ;"))
    print(f"{out}: {n} instructions, {g.k.nops} nop states, {g.k.waits} auto waits", file=sys.stderr)
    if cfg.get('verbose'):
        for l in g.k.log: print(l, file=sys.stderr)
```

```python
import sys, math
from asmlib import *

NAME = "recurrent_scan__linear_attn_block__dense_activation_silu__prompt"
NV, NA = 120, 136
EPOCH, FLH, FLQ, FLP, FLK = 0, 4096, 12288, 20480, 28672
KVB, PB, QB, HB, WSEND = 32768, 0x10000, 0x200000, 0x400000, 0xB00000
STAMPS = 0xC00000
XR, W0R, WB, MISC = 0, 65536, 98304, 155648
KVR, EXA = 90112, 65536
CSA, STA, R2A = MISC, MISC + 4096, MISC + 3072
LDS_BYTES = 163840
OOB = 0x40000000
LOG2E = 1.4426950408889634
LN2 = 0.6931471805599453
ONES = 0x3f803f80

DEF = dict(LA=3, bud=26, stamps=False, spin=200000, warm=True, codepf=True, look=6, stop=None, sleep=0)

class Gen:
    def __init__(self, **cfg):
        self.c = dict(DEF); self.c.update(cfg)
        self.k = K()
        self.sa = Alloc('s', 52, 100)
        self.joinA, self.joinB = [], []
        self.lane = v(0); self.vFA = v(1); self.vFV = v(2, 2); self.vP2d = [v(4 + i) for i in range(4)]
        self.vRowp, self.vColb, self.vST, self.vWD = v(8), v(9), v(10), v(11)
        self.cc, self.irs, self.sum, self.sq, self.vCSW, self.vCSR = v(15), v(16), v(17), v(18), v(19), v(20)
        self.vStampA, self.vStampD, self.vWH = v(21), v(22), v(23)
        self.IND, self.mneg, self.et, self.xt = v(24, 4), v(28, 4), v(32, 4), v(36, 8)
        self.sp = v(34, 2); self.eo = self.xt
        self.vTX = [v(44 + i) for i in range(4)]; self.vXR = [v(48 + i) for i in range(4)]
        self.vXT = [v(52), v(53)]; self.vXD = [v(54), v(55)]; self.vTY = [v(56 + i) for i in range(4)]
        self.blk = [v(60, 16), v(76, 16), v(92, 16)]
        self.cs = [v(108, 4), v(112, 4), v(116, 4)]
        self.tmp = [v(92), v(93), v(94), v(95), v(12), v(13), v(14), v(96)]
        self.vDummy, self.vDummy2 = v(32), v(33)

    STAMP_PAIRS = [4, 6, 8, 10, 12, 14, 16, 18, 44, 46, 48, 50]
    def stamp(self, name):
        if not self.c['stamps']: return
        names = self.c['stamps']
        if name not in names: return
        idx = names.index(name)
        if idx == 0: self.k.raw(f"  s_memrealtime s[{self.STAMP_PAIRS[10]}:{self.STAMP_PAIRS[10] + 1}]")
        self.k.raw(f"  s_memtime s[{self.STAMP_PAIRS[idx]}:{self.STAMP_PAIRS[idx] + 1}]")
    def stamp_flush(self):
        if not self.c['stamps']: return
        k, T, P = self.k, self.sT, self.STAMP_PAIRS
        k.raw(f"  s_memtime s[{P[9]}:{P[9] + 1}]")
        k.raw(f"  s_memrealtime s[{P[11]}:{P[11] + 1}]")
        k.raw("  s_waitcnt lgkmcnt(0)")
        k.raw("  s_mov_b32 s38, 0xd00000")
        k.raw(f"  s_lshl_b32 {T[0]}, s2, 3\n  s_add_u32 {T[0]}, {T[0]}, {self.sWv}\n  s_lshl_b32 {T[0]}, {T[0]}, 7\n  s_add_u32 {T[0]}, {T[0]}, {STAMPS}")
        k.raw(f"  v_mov_b32 v12, 0x40000000\n  v_mov_b32 v13, 0\n  v_cmp_eq_u32 vcc, 0, v0\n  s_nop 1\n  v_cndmask_b32 v12, v12, v13, vcc")
        for i, p in enumerate(P):
            k.raw(f"  v_mov_b32 v14, s{p}\n  buffer_store_dword v14, v12, s[36:39], {T[0]} offen offset:{4 * i}\n  s_nop 1")
        if self.c.get('dbgmax'):
            k.raw("  s_load_dwordx2 s[40:41], s[0:1], 56\n  s_waitcnt lgkmcnt(0)\n  s_mov_b32 s42, 256\n  s_mov_b32 s43, 0x20000")
            if self.c.get('early'): k.raw(f"  s_not_b32 {T[1]}, s100\n  v_mov_b32 v14, {T[1]}\n  buffer_atomic_umax v14, v12, s[40:43], 0 offen offset:48\n  s_nop 1")
            k.raw(f"  s_not_b32 {T[1]}, s{P[10]}\n  v_mov_b32 v14, {T[1]}\n  buffer_atomic_umax v14, v12, s[40:43], 0 offen\n  s_nop 1")
            k.raw(f"  v_mov_b32 v14, s{P[11]}\n  buffer_atomic_umax v14, v12, s[40:43], 0 offen offset:4\n  s_nop 1")
            k.raw(f"  v_mov_b32 v14, s{P[10]}\n  buffer_atomic_umax v14, v12, s[40:43], 0 offen offset:8\n  s_nop 1")
            for i in range(1, 10):
                k.raw(f"  s_sub_u32 {T[1]}, s{P[i]}, s{P[0]}\n  s_cmp_eq_u32 s{P[i]}, 0\n  s_cselect_b32 {T[1]}, 0, {T[1]}\n  v_mov_b32 v14, {T[1]}\n  buffer_atomic_umax v14, v12, s[40:43], 0 offen offset:{8 + 4 * i}\n  s_nop 1")

    def flag_store(self, val, toks):
        k = self.k
        self.stamp(f'f{val}a')
        k.wait_tok(*toks)
        self.stamp(f'f{val}b')
        k.S("s_add_u32", self.sT[4], self.sTag[0], val)
        k.V("v_mov_b32", self.vFV[0], self.sT[4])
        k.gstore(self.vFV, self.vFA, self.sWS, 0, mod=" sc1", tok=('flag',))

    def poll_issue(self, vP, vPA):
        self.k.gload(vP, vPA, self.sWS, 0, mod=" sc1")

    def poll_check(self, vP, vPA, vD, need, mask):
        k = self.k
        top, done = k.newlabel("Lspin"), k.newlabel("Lok")
        k.wait_regs(vP)
        k.label(top)
        k.V("v_subrev_u32", vD, self.sTag[0], vP[0])
        k.V("v_cmp_eq_u32", VCC, self.sTag[1], vP[1])
        k.V("v_subrev_u32", vD, need, vD)
        k.V("v_cmp_ge_u32_e64", self.sM0, 15 - need, vD)
        k.S("s_and_b64", self.sM0, self.sM0, VCC)
        k.S("s_mov_b64", self.sM1, mask) if not isinstance(mask, tuple) else (k.S("s_mov_b32", self.sM1[0], mask[0]), k.S("s_mov_b32", self.sM1[1], mask[1]))
        k.S("s_and_b64", self.sM0, self.sM0, self.sM1)
        k.S("s_cmp_eq_u64", self.sM0, self.sM1)
        k.branch("s_cbranch_scc1", done)
        k.S("s_sub_u32", self.sSpin, self.sSpin, 1)
        k.branch("s_cbranch_scc1", done + "x")
        if self.c['sleep']: k.raw(f"  s_sleep {self.c['sleep']}")
        k.raw(f"  buffer_load_dwordx2 {vP}, {vPA}, {self.sWS}, 0 offen sc1")
        k.raw("  s_waitcnt vmcnt(0)")
        k.raw(f"  s_branch {top}")
        k.label(done + "x")
        k.raw(f"  s_mov_b32 {self.sSpin}, 0")
        k.label(done)

    def prologue(self):
        k, sa, c = self.k, self.sa, self.c
        self.sX, self.sW, self.sP2, self.sWS, self.sOUT, self.sDBG, self.sTMP = (s(n, 4) for n in (24, 28, 32, 36, 40, 44, 48))
        k.S("s_cmp_ge_u32", s(2), 256)
        k.branch("s_cbranch_scc1", "L_end")
        if c.get('early'): k.raw("  s_memrealtime s[100:101]")
        k.raw("  s_load_dwordx4 s[4:7], s[0:1], 0")
        k.raw("  s_load_dwordx2 s[8:9], s[0:1], 16")
        k.raw("  s_load_dwordx4 s[12:15], s[0:1], 32")
        k.raw("  s_load_dwordx4 s[16:19], s[0:1], 48")
        k.raw("  s_load_dwordx2 s[20:21], s[0:1], 64")
        g = sa.get
        self.sTag = g(2); self.sM0 = g(2); self.sM1 = g(2); self.sPad = g(2); self.sHi = g(2)
        self.sT = [g() for _ in range(6)]
        (self.sWv, self.sRt, self.sGrp, self.sI, self.sIdx, self.sIsH, self.sIsRed, self.sRho, self.sI2, self.sC,
         self.sRot2, self.sSpin, self.sXb, self.sMx, self.sMw, self.sRS) = [g() for _ in range(16)]
        self.sAs = [g() for _ in range(7)]
        self.sCol = [g() for _ in range(4)]
        self.sMp = [g() for _ in range(2)]
        self.sUW = [g() for _ in range(3)]
        T = self.sT
        lane, tmp = self.lane, self.tmp
        if c['codepf']:
            k.comment("pull this kernel's code into L2: 1/32 of its lines per workgroup")
            k.raw("  s_getpc_b64 s[48:49]")
            k.label("L_pc")
            k.S("s_and_b32", s(49), s(49), 0xffff)
            k.raw("  s_mov_b32 s50, L_end-L_pc")
            k.S("s_mov_b32", s(51), 0x20000)
            k.S("s_lshr_b32", T[0], s(2), 3)
            k.S("s_lshl_b32", T[0], T[0], 7)
            k.V("v_lshlrev_b32", tmp[0], 12, v(0))
            k.V("v_cmp_gt_u32", VCC, 16, v(0))
            k.V("v_mov_b32", tmp[1], OOB)
            k.V("v_cndmask_b32", tmp[0], tmp[1], tmp[0])
            k.gload(self.vDummy, tmp[0], self.sTMP, T[0])
        k.V("v_lshrrev_b32", tmp[0], 6, v(0))
        k.V("v_and_b32", lane, 63, v(0))
        k.V("v_readfirstlane_b32", self.sWv, tmp[0])
        xcd, n, q, sub = T[0], T[1], T[2], T[3]
        k.S("s_and_b32", xcd, s(2), 7)
        k.S("s_lshr_b32", n, s(2), 3)
        k.S("s_lshr_b32", q, xcd, 1)
        k.S("s_lshr_b32", sub, n, 3)
        k.S("s_and_b32", T[4], xcd, 1)
        k.S("s_lshl_b32", T[4], T[4], 3)
        k.S("s_and_b32", T[5], n, 7)
        k.S("s_add_u32", self.sI, T[4], T[5])
        k.S("s_lshr_b32", self.sIsH, sub, 1)
        k.S("s_and_b32", T[4], sub, 1)
        k.S("s_lshl_b32", self.sIdx, q, 1)
        k.S("s_add_u32", self.sIdx, self.sIdx, T[4])
        k.S("s_and_b32", self.sRt, self.sWv, 3)
        k.S("s_lshr_b32", self.sGrp, self.sWv, 2)
        k.S("s_lshl_b32", T[4], sub, 1)
        k.S("s_add_u32", T[4], T[4], T[5])
        k.S("s_cmp_ge_u32", T[4], 7); k.S("s_cselect_b32", T[5], 7, 0); k.S("s_sub_u32", T[4], T[4], T[5])
        k.S("s_cmp_ge_u32", T[4], 7); k.S("s_cselect_b32", T[5], 7, 0); k.S("s_sub_u32", self.sAs[0], T[4], T[5])
        for p in range(1, 7):
            k.S("s_add_u32", self.sAs[p], self.sAs[p - 1], 1)
            k.S("s_cmp_eq_u32", self.sAs[p], 7)
            k.S("s_cselect_b32", self.sAs[p], 0, self.sAs[p])
        k.S("s_cmp_eq_u32", q, 3); k.S("s_cselect_b32", T[4], 0, 8)
        k.S("s_sub_u32", T[5], n, T[4])
        k.S("s_cmp_lt_u32", T[5], 4); k.S("s_cselect_b32", self.sIsRed, 1, 0)
        k.S("s_lshl_b32", self.sRho, xcd, 2); k.S("s_and_b32", T[5], n, 3); k.S("s_add_u32", self.sRho, self.sRho, T[5])
        k.S("s_add_u32", T[4], T[4], 4)
        k.S("s_cmp_ge_u32", n, T[4]); k.S("s_cselect_b32", T[4], 4, 0); k.S("s_sub_u32", T[4], n, T[4])
        k.S("s_lshr_b32", self.sC, T[4], 2)
        k.S("s_and_b32", T[4], T[4], 3)
        k.S("s_lshl_b32", self.sI2, xcd, 2); k.S("s_add_u32", self.sI2, self.sI2, T[4])
        k.S("s_add_u32", self.sRot2, T[4], self.sC); k.S("s_and_b32", self.sRot2, self.sRot2, 3)
        k.S("s_cmp_eq_u32", self.sIsH, 1); k.S("s_cselect_b32", self.sRS, 3584, 2688)
        k.S("s_lshl_b32", T[4], self.sI, 2); k.S("s_add_u32", T[4], T[4], self.sRt)
        k.S("s_mul_i32", self.sXb, T[4], 32 * 896)
        k.S("s_lshl_b32", self.sMx, self.sRt, 12); k.S("s_lshl_b32", T[4], self.sGrp, 11); k.S("s_add_u32", self.sMx, self.sMx, T[4])
        k.S("s_lshl_b32", self.sMw, self.sWv, 10)
        k.S("s_mov_b32", self.sSpin, c['spin'])
        l3, c7, l4, cs = tmp[0], tmp[1], tmp[2], tmp[3]
        k.V("v_lshrrev_b32", l3, 3, lane)
        k.V("v_and_b32", c7, 7, lane)
        k.V("v_lshrrev_b32", l4, 4, lane)
        k.V("v_xor_b32", tmp[4], c7, l4)
        k.V("v_lshlrev_b32", tmp[4], 4, tmp[4])
        k.S("s_movk_i32", T[4], 896)
        k.V("v_mad_u32_u24", tmp[5], l3, T[4], tmp[4])
        k.S("s_mul_i32", T[5], self.sGrp, 14336)
        k.V("v_add_u32", self.vXD[0], T[5], tmp[5])
        k.V("v_xor_b32", tmp[4], 64, tmp[4])
        k.V("v_mad_u32_u24", tmp[5], l3, T[4], tmp[4])
        k.S("s_add_u32", T[5], T[5], 6144)
        k.V("v_add_u32", self.vXD[1], T[5], tmp[5])
        k.V("v_and_b32", tmp[4], 1, l4)
        k.V("v_lshlrev_b32", tmp[4], 2, tmp[4])
        k.V("v_xor_b32", cs, c7, tmp[4])
        k.S("s_cmp_eq_u32", self.sIsH, 1); k.S("s_cselect_b32", T[5], 7, 6)
        k.V("v_min_u32", tmp[4], T[5], cs)
        k.V("v_lshlrev_b32", tmp[4], 4, tmp[4])
        k.S("s_lshl_b32", T[5], self.sWv, 3)
        k.V("v_add_u32", tmp[5], T[5], l3)
        k.V("v_mad_u32_u24", self.vWD, tmp[5], self.sRS, tmp[4])
        k.V("v_lshlrev_b32", tmp[4], 4, cs)
        k.V("v_mad_u32_u24", tmp[4], l3, T[4], tmp[4])
        k.S("s_lshl_b32", T[5], self.sC, 7)
        k.V("v_add_u32", self.vP2d[0], T[5], tmp[4])
        k.V("v_add_u32", self.vP2d[1], 6144, self.vP2d[0])
        k.V("v_add_u32", self.vP2d[2], 14336, self.vP2d[0])
        k.V("v_add_u32", self.vP2d[3], 14336 + 6144, self.vP2d[0])
        k.hard_wait("s_waitcnt lgkmcnt(0)")
        def srd(d, lo, hi, size):
            k.S("s_mov_b32", d[0], lo); k.S("s_and_b32", d[1], hi, 0xffff)
            k.S("s_mov_b32", d[2], size); k.S("s_mov_b32", d[3], 0x20000)
        srd(self.sX, s(4), s(5), 2048 * 896)
        k.S("s_cmp_eq_u32", self.sIsH, 1)
        k.S("s_cselect_b32", self.sW[0], s(12), s(6)); k.S("s_cselect_b32", self.sW[1], s(13), s(7))
        k.S("s_cselect_b32", self.sW[2], 448 * 3584, 448 * 2688)
        k.S("s_and_b32", self.sW[1], self.sW[1], 0xffff); k.S("s_mov_b32", self.sW[3], 0x20000)
        k.raw("  s_load_dwordx2 %s, s[20:21], %d" % (self.sTag, EPOCH))
        self.sRS64 = self.sRS
        k.S("s_lshl_b32", self.sRS64, self.sRS, 6)
        self.sOnes, self.sLn2 = s(22), s(23)
        k.S("s_mov_b32", self.sOnes, ONES); k.S("s_mov_b32", self.sLn2, LN2)

    def prologue2(self):
        k, c, T, tmp, lane = self.k, self.c, self.sT, self.tmp, self.lane
        def srd(d, lo, hi, size):
            k.S("s_mov_b32", d[0], lo); k.S("s_and_b32", d[1], hi, 0xffff)
            k.S("s_mov_b32", d[2], size); k.S("s_mov_b32", d[3], 0x20000)
        if c['warm']:
            k.comment("touch the weights once, spread over all workgroups, so later misses are served on-die")
            k.S("s_and_b32", T[0], self.sWv, 3)
            k.S("s_cmp_eq_u32", T[0], 0); k.S("s_cselect_b32", s(48), s(14), s(12)); k.S("s_cselect_b32", s(49), s(15), s(13))
            k.S("s_cmp_eq_u32", T[0], 2); k.S("s_cselect_b32", s(48), s(8), s(48)); k.S("s_cselect_b32", s(49), s(9), s(49))
            k.S("s_cselect_b32", T[1], 13, 49); k.S("s_cselect_b32", s(50), 448 * 896, 1792 * 896)
            k.S("s_cmp_eq_u32", T[0], 3); k.S("s_cselect_b32", s(48), s(6), s(48)); k.S("s_cselect_b32", s(49), s(7), s(49))
            k.S("s_cselect_b32", T[1], 37, T[1]); k.S("s_cselect_b32", s(50), 448 * 2688, s(50))
            k.S("s_and_b32", s(49), s(49), 0xffff); k.S("s_mov_b32", s(51), 0x20000)
            k.S("s_cmp_eq_u32", self.sGrp, 0); k.S("s_cselect_b32", T[2], T[1], 0)
            k.S("s_mul_i32", T[1], T[1], s(2)); k.S("s_lshl_b32", T[1], T[1], 7)
            k.V("v_lshlrev_b32", tmp[4], 7, lane)
            k.V("v_cmp_gt_u32", VCC, T[2], lane)
            k.V("v_mov_b32", tmp[5], OOB)
            k.V("v_cndmask_b32", tmp[4], tmp[5], tmp[4])
            k.gload(self.vDummy2, tmp[4], self.sTMP, T[1])
        k.S("s_cmp_eq_u32", self.sGrp, 0)
        k.S("s_cselect_b32", self.sP2[0], s(14), s(8)); k.S("s_cselect_b32", self.sP2[1], s(15), s(9))
        k.S("s_cselect_b32", self.sP2[2], 1792 * 896, 448 * 896)
        k.S("s_and_b32", self.sP2[1], self.sP2[1], 0xffff); k.S("s_mov_b32", self.sP2[3], 0x20000)
        k.S("s_xor_b32", T[0], self.sIsH, 1); k.S("s_and_b32", self.sIsRed, self.sIsRed, T[0])
        k.S("s_cmp_eq_u32", self.sIsRed, 1); k.S("s_cselect_b32", self.sP2[2], 0, self.sP2[2])
        srd(self.sWS, s(20), s(21), WSEND)
        srd(self.sOUT, s(16), s(17), 2048 * 896)
        k.S("s_mov_b32", self.sPad[0], 0xf0000000); k.S("s_mov_b32", self.sPad[1], 0xf0000000)
        k.S("s_mov_b32", self.sHi[0], 0); k.S("s_mov_b32", self.sHi[1], -1)
        if c['stamps']:
            for p in self.STAMP_PAIRS: k.S("s_mov_b32", s(p), 0)
        row, hf, gx, base = tmp[0], tmp[1], tmp[2], tmp[3]
        k.V("v_and_b32", row, 31, lane)
        k.V("v_lshrrev_b32", hf, 5, lane)
        k.V("v_bfe_u32", gx, lane, 1, 3)
        k.S("s_lshl_b32", T[0], self.sRt, 12)
        k.V("v_lshl_add_u32", base, row, 7, T[0])
        def xaddr(dst, sp_reg_or_int):
            k.S("s_add_u32", T[1], self.sRt, sp_reg_or_int); k.S("s_and_b32", T[1], T[1], 3); k.S("s_lshl_b32", T[1], T[1], 1)
            k.V("v_add_u32", tmp[4], T[1], hf); k.V("v_xor_b32", tmp[4], tmp[4], gx)
            k.V("v_lshl_add_u32", dst, tmp[4], 4, base)
        for sp in range(4): xaddr(self.vXR[sp], sp)
        k.S("s_lshl_b32", T[2], self.sGrp, 1); xaddr(self.vXT[0], T[2])
        k.S("s_add_u32", T[2], T[2], 1); xaddr(self.vXT[1], T[2])
        k.S("s_lshl_b32", T[0], self.sGrp, 9); k.S("s_add_u32", T[0], T[0], CSA)
        k.V("v_lshl_add_u32", self.vCSR, row, 4, T[0])
        k.S("s_lshl_b32", T[0], self.sRt, 2)
        k.V("v_add_u32", self.vCSW, T[0], self.vCSR)
        k.V("v_lshrrev_b32", tmp[4], 4, lane); k.V("v_lshrrev_b32", tmp[5], 2, lane)
        k.V("v_xor_b32", tmp[4], tmp[4], tmp[5]); k.V("v_and_b32", tmp[4], 1, tmp[4])
        k.V("v_cmp_eq_u32", VCC, 0, tmp[4]); k.V("v_mov_b32", tmp[5], ONES)
        k.V("v_cndmask_b32", self.IND[0], 0, tmp[5])
        for i in range(1, 4): k.V("v_mov_b32", self.IND[i], self.IND[0])
        k.V("v_bfe_u32", tmp[4], lane, 2, 2)
        k.V("v_lshl_add_u32", self.vRowp, hf, 3, tmp[4])
        k.V("v_bfe_u32", tmp[4], lane, 4, 1); k.V("v_lshlrev_b32", tmp[4], 5, tmp[4])
        k.V("v_and_b32", tmp[5], 3, lane); k.V("v_lshl_add_u32", tmp[4], tmp[5], 3, tmp[4])
        k.V("v_bfe_u32", tmp[5], lane, 3, 1); k.V("v_lshl_add_u32", self.vColb, tmp[5], 6, tmp[4])
        k.V("v_mov_b32", self.sum, 0); k.V("v_mov_b32", self.sq, 0)
        k.hard_wait("s_waitcnt lgkmcnt(0)")
        k.S("s_and_b32", self.sTag[0], self.sTag[0], -16); k.S("s_add_u32", self.sTag[0], self.sTag[0], 16)
        k.V("v_mov_b32", self.vFV[1], self.sTag[1])

    def tr_addrs(self, dst, omul, base):
        k, T, tmp = self.k, self.sT, self.tmp
        items = []
        items.append((8, lambda: (k.S("s_mul_i32", T[3], self.sGrp, omul), k.V("v_add_u32", tmp[6], T[3], self.vColb))))
        items.append((4, lambda: k.V("v_and_b32", tmp[6], 127, tmp[6])))
        items.append((4, lambda: k.V("v_lshl_add_u32", tmp[6], self.vRowp, 7, tmp[6])))
        for sp in range(4):
            def f(sp=sp):
                k.S("s_add_u32", T[3], self.sRt, sp); k.S("s_and_b32", T[3], T[3], 3); k.S("s_lshl_b32", T[3], T[3], 11)
                k.S("s_add_u32", T[3], T[3], base)
                k.V("v_add_u32", dst[sp], T[3], tmp[6])
            items.append((20, f))
        return items

    def job_x(self, p):
        k, T = self.k, self.sT
        def f():
            k.S("s_add_u32", M0, self.sMx, XR + (p % 4) * 16384)
            k.S("s_lshl_b32", T[0], self.sAs[p], 7); k.S("s_add_u32", T[0], T[0], self.sXb)
            k.dma(self.vXD[0], self.sX, T[0], 0, ('x', p)); k.dma(self.vXD[1], self.sX, T[0], 1024, ('x', p))
        return f
    def job_w(self, name, p, col, lds):
        k, T = self.k, self.sT
        def f():
            k.S("s_add_u32", M0, self.sMw, lds)
            k.S("s_mul_i32", T[0], self.sAs[p], self.sRS64); k.S("s_add_u32", T[0], T[0], col)
            k.dma(self.vWD, self.sW, T[0], 0, (name, p))
        return f
    def unit_ra(self, pos):
        k, T = self.k, self.sT
        G, q = pos // 4, pos % 4
        k.S("s_add_u32", T[1], self.sRot2, q); k.S("s_and_b32", T[1], T[1], 3 if G < 3 else 1)
        k.S("s_lshr_b32", T[2], T[1], 1); k.S("s_add_u32", T[2], T[2], 2 * G)
        k.S("s_and_b32", T[1], T[1], 1)
    def unit_w(self, pos):
        k, T, U = self.k, self.sT, self.sUW
        self.unit_ra(pos)
        k.S("s_add_u32", T[2], T[2], T[1])
        k.S("s_cmp_eq_u32", T[2], 7); k.S("s_cselect_b32", T[2], 0, T[2])
        k.S("s_mul_i32", T[1], T[1], 7); k.S("s_add_u32", T[2], T[2], T[1])
        k.S("s_mul_i32", T[1], self.sRt, 14); k.S("s_add_u32", T[2], T[2], T[1])
        k.S("s_mul_i32", U[0], T[2], 32 * 896)
    def unit_a(self, pos):
        k, T, U = self.k, self.sT, self.sUW
        self.unit_ra(pos)
        k.S("s_mul_i32", T[1], T[1], 7); k.S("s_add_u32", T[2], T[2], T[1]); k.S("s_lshl_b32", U[1], T[2], 11)
    def a_pos(self, n):
        pos = n % 11
        return (0, pos * 2048) if pos < 3 else (1, (pos - 3) * 2048)
    def job_p2_shared(self, n):
        k, T = self.k, self.sT
        def f():
            if n % 2 == 0:
                self.unit_w(n // 2)
                k.S("s_mul_i32", T[1], self.sRt, 112 * 896); k.S("s_add_u32", T[1], T[1], (n // 2) * 28 * 896)
                k.S("s_cmp_eq_u32", self.sGrp, 0); k.S("s_cselect_b32", self.sUW[2], self.sUW[0], T[1])
            k.S("s_add_u32", M0, self.sMp[0], n * 2048)
            b = 2 * (n % 2)
            k.dma(self.vP2d[b], self.sP2, self.sUW[2], 0, ('p2', n)); k.dma(self.vP2d[b + 1], self.sP2, self.sUW[2], 1024, ('p2', n))
        return f
    def p2_bases(self):
        k, T = self.k, self.sT
        k.S("s_mul_i32", T[1], self.sRt, 6144); k.S("s_add_u32", T[1], T[1], WB + 32768)
        k.S("s_lshl_b32", T[2], self.sRt, 13); k.S("s_add_u32", T[3], T[2], WB)
        k.S("s_cmp_eq_u32", self.sGrp, 0)
        k.S("s_cselect_b32", self.sMp[0], T[1], T[3])
        k.S("s_lshl_b32", T[1], self.sRt, 14); k.S("s_add_u32", T[2], T[2], W0R)
        k.S("s_cmp_eq_u32", self.sGrp, 0)
        k.S("s_cselect_b32", self.sMp[1], T[1], T[2])

    def x_reads(self, p):
        k = self.k
        off = XR + (p % 4) * 16384
        for t in range(2): k.ds_read("ds_read_b128", self.xt[4 * t:4 * t + 4], self.vXT[t], off)
        for sp in range(4): k.ds_read("ds_read_b128", a(16 * p + 4 * sp, 4), self.vXR[sp], off)
    def dots(self):
        k = self.k
        for i in range(8):
            k.V("v_dot2c_f32_bf16", self.sq, self.xt[i], self.xt[i])
            k.V("v_dot2c_f32_bf16", self.sum, self.sOnes, self.xt[i])
    def run_slots(self, slots, pre_read, pre_mfma, post_mfma, fill, dq, first_ring=0, tail_reads=None):
        k, LA = self.k, self.c['LA']
        NF = 6
        def frag(n): return a(112 + 4 * ((n + first_ring) % NF), 4)
        def read(n):
            if n in pre_read: pre_read[n]()
            sl = slots[n]
            k.ds_read("ds_read_b64_tr_b16", frag(n)[0:2], sl['addr'], sl['off'])
            k.ds_read("ds_read_b64_tr_b16", frag(n)[2:4], sl['addr'], sl['off'] + sl['second'])
        for n in range(min(LA, len(slots))): read(n)
        for n, sl in enumerate(slots):
            if n in pre_mfma: pre_mfma[n]()
            x = a(4 * sl['xi'], 4)
            C = 0 if sl['first'] else sl['acc']
            if n % 2 == 0 and n + 1 < len(slots): k.wait_regs(frag(n), frag(n + 1), x)
            if sl['wfirst']: k.mfma(True, sl['acc'], frag(n), x, C)
            else: k.mfma(True, sl['acc'], x, frag(n), C)
            if sl['cs'] is not None: k.mfma(False, sl['cs'], self.IND, frag(n), 0 if sl['csfirst'] else sl['cs'])
            if n + LA < len(slots): read(n + LA)
            if n in post_mfma: post_mfma[n]()
            while dq and dq[0][0] <= n: dq.pop(0)[1]()
            fill.run(sl.get('bud', self.c['bud']))
    def bar_wait(self, *toks, lg=False):
        def f():
            self.k.wait_tok(*toks)
            if lg: self.k.wait_lg_all()
            self.k.barrier()
        return f
    def stats_part1(self):
        k, T, tmp = self.k, self.sT, self.tmp
        it = []
        def a0():
            k.S("s_lshl_b32", T[3], self.sWv, 9); k.S("s_add_u32", T[3], T[3], STA)
            k.V("v_lshl_add_u32", tmp[4], self.lane, 3, T[3])
        it.append((12, a0))
        def a1():
            k.V("v_mov_b32", self.sp[0], self.sum); k.V("v_mov_b32", self.sp[1], self.sq)
        it.append((8, a1))
        it.append((4, lambda: k.ds_write("ds_write_b64", tmp[4], self.sp, 0, tok='st')))
        it.append((4, lambda: k.V("v_xor_b32", tmp[4], 2048, tmp[4])))
        return it
    def stats_part2(self):
        k, T, tmp = self.k, self.sT, self.tmp
        it = []
        it.append((4, lambda: k.ds_read("ds_read_b64", self.sp, tmp[4], 0)))
        it.append((4, lambda: k.V("v_add_f32", self.sum, self.sum, self.sp[0])))
        it.append((4, lambda: k.V("v_add_f32", self.sq, self.sq, self.sp[1])))
        it.append((8, lambda: (k.V("v_mov_b32", self.sp[0], self.sum), k.V("v_mov_b32", self.sp[1], self.sq))))
        it.append((8, lambda: (k.V("v_permlane32_swap_b32", self.sum, self.sp[0]), k.V("v_permlane32_swap_b32", self.sq, self.sp[1]))))
        it.append((8, lambda: (k.V("v_add_f32", self.sum, self.sum, self.sp[0]), k.V("v_add_f32", self.sq, self.sq, self.sp[1]))))
        mean, var = self.sum, self.sq
        it.append((8, lambda: (k.V("v_mul_f32", mean, -1.0 / 448, mean), k.V("v_mul_f32", var, 1.0 / 448, var))))
        it.append((4, lambda: k.Vneg("v_fma_f32", var, mean, mean, var, (True, False, False))))
        it.append((8, lambda: (k.V("v_max_f32", var, 0, var), k.V("v_add_f32", var, 1e-5, var))))
        it.append((8, lambda: k.V("v_sqrt_f32", self.irs, var)))
        it.append((4, lambda: k.V("v_cvt_pk_bf16_f32", self.sp[0], mean, mean)))
        it.append((8, lambda: k.V("v_rcp_f32", self.cc, self.irs)))
        it.append((4, lambda: k.V("v_and_b32", self.sp[1], 0xffff0000, self.sp[0])))
        it.append((4, lambda: k.V("v_sub_f32", self.sp[1], mean, self.sp[1])))
        it.append((4, lambda: k.V("v_mul_f32", self.cc, self.ccmul, self.cc)))
        it.append((4, lambda: k.V("v_cvt_pk_bf16_f32", self.sp[1], self.sp[1], self.sp[1])))
        for i in range(4):
            it.append((4, lambda i=i: k.V("v_cndmask_b32_e64", self.mneg[i], self.sp[0], self.sp[1], self.sHi)))
        return it
    def cs_pack(self, cs, idx, dst=None):
        k = self.k
        it = []
        it.append((4, lambda: k.V("v_cvt_pk_bf16_f32", cs[1], cs[0], cs[0])))
        it.append((4, lambda: k.V("v_and_b32", cs[1], 0xffff0000, cs[1])))
        it.append((4, lambda: k.V("v_sub_f32", cs[1], cs[0], cs[1])))
        if dst is None:
            it.append((4, lambda: k.V("v_cvt_pk_bf16_f32", cs[1], cs[0], cs[1])))
            it.append((4, lambda: k.ds_write("ds_write_b32", self.vCSW, cs[1], idx * 1024, tok='cs')))
        else:
            it.append((4, lambda: k.V("v_cvt_pk_bf16_f32", dst[0], cs[0], cs[1])))
            it.append((12, lambda: [k.V("v_mov_b32", dst[i], 0) for i in (1, 2, 3)]))
        return it
    def cs_apply(self, cs, idx, acc, wfirst, read=True):
        k = self.k
        it = []
        if read: it.append((4, lambda: k.ds_read("ds_read_b128", cs, self.vCSR, idx * 1024)))
        it.append((8, (lambda: k.mfma(True, acc, cs, self.mneg, acc)) if wfirst else (lambda: k.mfma(True, acc, self.mneg, cs, acc))))
        return it
    def epi_silu(self, acc, sbyte, tok):
        k, T = self.k, self.sT
        it = []; t = self.et; O = self.eo
        for g4 in range(4):
            A = [acc[4 * g4 + i] for i in range(4)]
            for i in range(4): it.append((4, lambda i=i, A=A: k.V("v_mul_f32", t[i], self.cc, A[i])))
            for i in range(4): it.append((8, lambda i=i: k.V("v_exp_f32", t[i], t[i])))
            for i in range(4): it.append((4, lambda i=i: k.V("v_fma_f32", t[i], t[i], self.irs, self.irs)))
            for i in range(4): it.append((8, lambda i=i: k.V("v_rcp_f32", t[i], t[i])))
            for i in range(4): it.append((4, lambda i=i, A=A: k.V("v_mul_f32", t[i], t[i], A[i])))
            for i in range(2): it.append((4, lambda i=i, g4=g4: k.V("v_cvt_pk_bf16_f32", O[2 * g4 + i], t[2 * i], t[2 * i + 1])))
            if g4 % 2 == 1:
                h = g4 // 2
                def st(h=h):
                    k.S("s_mov_b32", T[3], sbyte)
                    k.gstore(O[4 * h:4 * h + 4], self.vST, self.sWS, T[3], imm=1024 * h, mod=" sc1", tok=tok)
                it.append((8, st))
        return it
    def phi4(self, A, sc, dst2):
        k, t = self.k, self.et
        it = []
        for i in range(4): it.append((4, lambda i=i: k.V("v_mul_f32", A[i], sc[i], A[i])))
        for i in range(4): it.append((8, lambda i=i: k.V("v_exp_f32_e64", t[i], A[i], mod="clamp")))
        for i in range(4): it.append((4, lambda i=i: k.V("v_max_f32", A[i], 1e-6 * LOG2E, A[i])))
        for i in range(4): it.append((4, lambda i=i: k.V("v_fmac_f32", t[i], self.sLn2, A[i])))
        for i in range(2): it.append((4, lambda i=i: k.V("v_cvt_pk_bf16_f32", dst2[i], t[2 * i], t[2 * i + 1])))
        return it

    QOFF = [49152, 57344, 0, 8192, 16384, 24576, 32768]
    def flag_addr(self, base, sline, shift, sidx):
        k, T, tmp = self.k, self.sT, self.tmp
        k.S("s_lshl_b32", T[1], sline, shift); k.S("s_lshl_b32", T[2], sidx, 3); k.S("s_add_u32", T[1], T[1], T[2]); k.S("s_add_u32", T[1], T[1], base)
        k.V("v_mov_b32", tmp[4], OOB); k.V("v_mov_b32", tmp[5], T[1])
        k.V("v_cmp_eq_u32", VCC, 0, self.lane); k.V("v_cndmask_b32", self.vFA, tmp[4], tmp[5])

    def role_h(self):
        k, T, tmp, c = self.k, self.sT, self.tmp, self.c
        k.label("L_roleH")
        self.ccmul = -LOG2E
        col = self.sCol
        k.S("s_and_b32", T[1], self.sIdx, 1); k.S("s_mul_i32", T[2], self.sIdx, 448)
        k.S("s_lshl_b32", T[3], T[1], 6); k.S("s_add_u32", col[0], T[2], T[3])
        for f in (self.job_x(0), self.job_w('w0', 0, col[0], W0R), self.job_x(1), self.job_w('w0', 1, col[0], W0R + 8192)): f()
        k.S("s_add_u32", col[1], col[0], 128); k.S("s_add_u32", col[2], col[0], 256)
        k.S("s_xor_b32", T[1], T[1], 1); k.S("s_mul_i32", T[1], T[1], 384); k.S("s_add_u32", col[3], T[2], T[1])
        self.prologue2()
        self.stamp('start')
        acc = self.blk[0:2]; cs = self.cs; vWH = self.vWH
        for _, f in self.tr_addrs(self.vTX, 64, W0R): f()
        k.V("v_lshrrev_b32", tmp[4], 2, self.lane); k.S("s_lshl_b32", T[1], self.sRt, 4); k.V("v_add_u32", tmp[4], T[1], tmp[4])
        k.V("v_and_b32", tmp[5], 3, self.lane); k.V("v_lshlrev_b32", tmp[5], 4, tmp[5])
        k.S("s_movk_i32", T[1], 3584); k.V("v_mad_u32_u24", vWH, tmp[4], T[1], tmp[5])
        k.S("s_lshl_b32", T[1], self.sI, 2); k.S("s_add_u32", T[1], T[1], self.sRt)
        k.S("s_mul_i32", T[2], T[1], 112 * 1024); k.S("s_mul_i32", T[3], self.sIdx, 14 * 1024); k.S("s_add_u32", T[2], T[2], T[3])
        k.S("s_lshl_b32", T[3], self.sGrp, 11); k.S("s_add_u32", T[2], T[2], T[3]); k.S("s_add_u32", T[2], T[2], HB)
        k.V("v_lshl_add_u32", self.vST, self.lane, 4, T[2])
        k.S("s_mov_b32", T[0], T[1]); k.S("s_lshl_b32", T[3], self.sIdx, 1); k.S("s_add_u32", T[3], T[3], self.sGrp)
        self.flag_addr(FLH, T[0], 7, T[3])
        self.p2_bases()
        for _, f in self.tr_addrs(self.vTY, 64, WB): f()

        def job_h(m):
            def f():
                k.S("s_cmp_eq_u32", self.sGrp, 0)
                k.S("s_cselect_b32", T[0], self.sAs[2 * m], self.sAs[min(2 * m + 1, 6)])
                k.S("s_mul_i32", T[0], T[0], self.sRS64); k.S("s_add_u32", T[0], T[0], col[3])
                k.S("s_add_u32", M0, self.sMw, W0R + ((3 + m) % 4) * 8192) if m < 3 else (
                    k.S("s_lshl_b32", T[1], self.sRt, 10), k.S("s_add_u32", M0, T[1], W0R + 2 * 8192))
                k.dma(vWH, self.sW, T[0], 0, ('wh', m))
            return f
        slots = []
        for ps in range(3):
            for n in range(28):
                p, sp = divmod(n, 4)
                off = [(p % 4) * 8192, p * 8192, self.QOFF[p]][ps]
                slots.append(dict(acc=acc[ps % 2], wfirst=True, addr=(self.vTY if ps == 1 else self.vTX)[sp], off=off, second=512, xi=n,
                                  cs=cs[ps % 2] if sp == 0 else None, csfirst=p == 0, first=n == 0))
        fill = Fill(); dq = []
        pre_read, pre_mfma, post = {}, {}, {}
        for p in range(7):
            def br(p=p): self.bar_wait(('x', p), ('w0', p))(); self.stamp(f'B{p}'); self.x_reads(p)
            pre_read[4 * p] = br
            pre_mfma[4 * p] = self.dots
        for p in range(5):
            dq.append((4 * p, self.job_x(p + 2))); dq.append((4 * p + 2, self.job_w('w0', p + 2, col[0], W0R + ((p + 2) % 4) * 8192)))
        for p in range(7): dq.append((20 + p, self.job_w('w1', p, col[1], WB + p * 8192)))
        for p in range(7): dq.append((31 + 3 * p, self.job_w('w2', p, col[2], XR + self.QOFF[p])))
        for m in range(4): dq.append((50 + 2 * m, job_h(m)))
        for n in range(3): dq.append((62 + 4 * n, self.job_p2_shared(n)))
        def end1():
            self.stamp('p1end')
            fill.extend(self.stats_part1()); fill.extend(self.cs_pack(cs[0], 0))
        post[27] = end1
        pre_read[28] = self.bar_wait(('w1', 0), ('w1', 1))
        def b2():
            fill.drain(); self.bar_wait(('w1', 2), ('w1', 3), ('w1', 4), lg=True)()
            fill.extend(self.stats_part2()); fill.extend(self.cs_apply(cs[0], 0, acc[0], True))
            fill.extend(self.tr_addrs(self.vTX, 64, XR))
            fill.extend(self.epi_silu(acc[0], 0, ('h', 0)))
        pre_read[34] = b2
        pre_read[48] = self.bar_wait(('w1', 5), ('w1', 6))
        def end2():
            fill.drain(); self.stamp('p2end'); fill.extend(self.cs_pack(cs[1], 1))
        post[55] = end2
        pre_read[56] = self.bar_wait(*[('w2', p) for p in range(4)])
        def b3():
            fill.drain(); self.bar_wait(('w2', 4), ('w2', 5), ('w2', 6), lg=True)()
            fill.extend(self.cs_apply(cs[1], 1, acc[1], True)); fill.extend(self.epi_silu(acc[1], 4096, ('h', 1)))
        pre_read[62] = b3
        post[72] = lambda: self.flag_store(1, [('h', 0)])
        self.run_slots(slots, pre_read, pre_mfma, post, fill, dq)
        fill.drain(); self.stamp('p3end')
        for _, f in self.cs_pack(cs[0], 2): f()
        self.bar_wait(*[('wh', m) for m in range(4)], lg=True)()
        k.S("s_cmp_eq_u32", self.sGrp, 1)
        k.branch("s_cbranch_scc1", "L_hB")
        st = self.save()
        for _, f in self.cs_apply(cs[0], 2, acc[0], True): f()
        epi = self.epi_silu(acc[0], 8192, ('fin',))
        self.p2a_preamble(epi, mid=lambda: self.flag_store(2, [('h', 1)]))
        k.S("s_add_u32", T[4], self.sTag[0], 3); k.V("v_mov_b32", self.vFV[0], T[4])
        self.stamp('tail')
        self.joinA.append(self.exit_state()); k.branch("s_branch", "L_p2a")
        self.restore(st)
        k.label("L_hB")
        vTH = self.vTY
        k.V("v_lshlrev_b32", tmp[6], 6, self.vRowp); k.V("v_and_b32", tmp[5], 63, self.vColb); k.V("v_add_u32", tmp[6], tmp[6], tmp[5])
        for sp in range(4):
            k.S("s_add_u32", T[3], self.sRt, sp); k.S("s_and_b32", T[3], T[3], 3); k.S("s_lshl_b32", T[3], T[3], 10)
            k.S("s_add_u32", T[3], T[3], W0R); k.V("v_add_u32", vTH[sp], T[3], tmp[6])
        hoff = [3 * 8192, 3 * 8192 + 4096, 0, 4096, 8192, 8192 + 4096, 2 * 8192]
        slots = [dict(acc=acc[1], wfirst=True, addr=vTH[n % 4], off=hoff[n // 4], second=256, xi=n, cs=cs[1], csfirst=n == 0, first=n == 0) for n in range(28)]
        fill = Fill()
        fill.extend(self.cs_apply(cs[0], 2, acc[0], True)); fill.extend(self.epi_silu(acc[0], 8192, ('h', 2)))
        self.run_slots(slots, {}, {}, {10: lambda: self.flag_store(2, [('h', 1)])}, fill, [(4, self.job_p2_b(3))])
        fill.drain(); self.stamp('p4end')
        for _, f in self.cs_pack(cs[1], 0, dst=cs[0]): f()
        for _, f in self.cs_apply(cs[0], 0, acc[1], True, read=False): f()
        epi = self.epi_silu(acc[1], 10240, ('fin',))
        half = len(epi) // 2
        for _, f in epi[:half - 1]: f()
        self.flag_store(3, [('h', 2)])
        for _, f in epi[half - 1:]: f()
        k.S("s_add_u32", T[4], self.sTag[0], 4); k.V("v_mov_b32", self.vFV[0], T[4])
        self.stamp('tail')
        self.joinB.append(self.exit_state()); k.branch("s_branch", "L_p2b")

    def save(self):
        import copy
        k = self.k
        return (copy.deepcopy(k.vm), copy.deepcopy(k.lg), list(k.hist), k.pos)
    def restore(self, st):
        k = self.k
        k.vm, k.lg, k.hist, k.pos = [dict(e) for e in st[0]], [dict(e) for e in st[1]], list(st[2]), st[3]
    def exit_state(self):
        self.k.wait_lg_all()
        self.k.flush_hazards()
        return [dict(e) for e in self.k.vm]
    def merge(self, states):
        k = self.k
        young = {}
        for st in states:
            for i, e in enumerate(st):
                y = len(st) - 1 - i
                keys = [('t', e['tok'])] + [('r', r) for r in e['regs']]
                for key in keys: young[key] = min(young.get(key, 99), y)
        L = max(young.values()) + 1 if young else 0
        q = []
        for key, y in young.items(): q.append((L - 1 - y, key))
        k.vm = []
        for pos in range(L):
            es = [key for p_, key in q if p_ == pos]
            k.vm.append(dict(regs={x[1] for x in es if x[0] == 'r'}, tok=None, toks={x[1] for x in es if x[0] == 't'}))
        k.lg = []; k.hist = []

    def role_qkv(self):
        k, T, tmp, c = self.k, self.sT, self.tmp, self.c
        k.label("L_roleQ")
        self.ccmul = LOG2E
        col = self.sCol
        k.S("s_mul_i32", col[2], self.sIdx, 112); k.S("s_add_u32", col[0], col[2], 896); k.S("s_add_u32", col[1], col[2], 1792)
        for p in range(2):
            for f in (self.job_x(p), self.job_w('k', p, col[0], KVR + p * 16384), self.job_w('v', p, col[1], KVR + p * 16384 + 8192)): f()
        self.prologue2()
        self.stamp('start')
        accQ, accK, accV = self.blk
        csK, csV, csQ = self.cs
        R2 = [v(44), v(45), v(46), v(47), v(48), v(49), v(50), v(51), v(52), v(53), v(54), v(55), v(112), v(113), v(114), v(115)]
        R2q = [v(44, 4), v(48, 4), v(52, 4), v(112, 4)]
        for _, f in self.tr_addrs(self.vTX, 56, KVR): f()
        for _, f in self.tr_addrs(self.vTY, 56, XR): f()
        head = col[3]
        k.S("s_lshl_b32", head, self.sIdx, 1); k.S("s_add_u32", head, head, self.sGrp)
        k.S("s_lshl_b32", T[1], head, 4); k.S("s_add_u32", T[1], T[1], self.sI); k.S("s_lshl_b32", T[1], T[1], 2); k.S("s_add_u32", T[1], T[1], self.sRt)
        k.S("s_lshl_b32", T[1], T[1], 10); k.S("s_add_u32", T[1], T[1], PB)
        k.V("v_lshl_add_u32", self.vST, self.lane, 4, T[1])
        k.S("s_lshl_b32", T[0], head, 1); k.S("s_lshr_b32", T[3], self.sRt, 1); k.S("s_add_u32", T[0], T[0], T[3])
        k.S("s_lshl_b32", T[3], self.sI, 1); k.S("s_and_b32", T[4], self.sRt, 1); k.S("s_add_u32", T[3], T[3], T[4])
        self.flag_addr(FLP, T[0], 8, T[3])
        self.p2_bases()
        slots = []
        for n in range(56):
            p, r = divmod(n, 8); sp, sub = divmod(r, 2)
            slots.append(dict(acc=(accK, accV)[sub], wfirst=False, addr=self.vTX[sp], off=(p % 4) * 16384 + 8192 * sub, second=512, xi=4 * p + sp,
                              cs=(csK, csV)[sub] if sp == 0 else None, csfirst=p == 0, first=n < 2))
        for n in range(28):
            p, sp = divmod(n, 4)
            slots.append(dict(acc=accQ, wfirst=True, addr=self.vTY[sp], off=self.QOFF[p], second=512, xi=n,
                              cs=csQ if sp == 0 else None, csfirst=p == 0, first=n == 0, bud=30))
        fill = Fill(); dq = []
        pre_read, pre_mfma, post = {}, {}, {}
        for p in range(7):
            def br(p=p): self.bar_wait(('x', p), ('k', p), ('v', p))(); self.stamp(f'B{p}'); self.x_reads(p)
            pre_read[8 * p] = br
            pre_mfma[8 * p] = self.dots
        for p in range(5):
            o = KVR + ((p + 2) % 4) * 16384
            dq += [(8 * p, self.job_x(p + 2)), (8 * p + 3, self.job_w('k', p + 2, col[0], o)), (8 * p + 5, self.job_w('v', p + 2, col[1], o + 8192))]
        for p, n in enumerate((40, 42, 44, 46, 49, 52, 54)): dq.append((n, self.job_w('q', p, col[2], XR + self.QOFF[p])))
        for n in range(3): dq.append((64 + 4 * n, self.job_p2_shared(n)))
        pk = self.xt; pv = accV[0:8]
        def end1():
            self.stamp('p1end')
            fill.extend(self.stats_part1()); fill.extend(self.cs_pack(csK, 0)); fill.extend(self.cs_pack(csV, 1))
        post[55] = end1
        pre_read[56] = self.bar_wait(('q', 0), ('q', 1))
        def b2():
            fill.drain(); self.bar_wait(('q', 2), ('q', 3), lg=True)()
            fill.extend(self.stats_part2())
            def r2w():
                k.S("s_lshl_b32", T[3], self.sWv, 7); k.S("s_add_u32", T[3], T[3], R2A)
                k.V("v_and_b32", tmp[4], 31, self.lane); k.V("v_lshl_add_u32", tmp[4], tmp[4], 2, T[3])
                k.ds_write("ds_write_b32", tmp[4], self.cc, 0)
                k.V("v_lshrrev_b32", tmp[4], 5, self.lane); k.V("v_lshl_add_u32", tmp[4], tmp[4], 4, T[3])
                for q in range(4): k.ds_read("ds_read_b128", R2q[q], tmp[4], 32 * q)
            fill.add(40, r2w)
            fill.extend(self.cs_apply(csK, 0, accK, False)); fill.extend(self.cs_apply(self.et, 1, accV, False))
            for g4 in range(4):
                fill.extend(self.phi4([accK[4 * g4 + i] for i in range(4)], [R2[4 * g4 + i] for i in range(4)], pk[2 * g4:2 * g4 + 2]))
            fill.add(4, lambda: k.V("v_mov_b32", self.et[0], ONES))
            for i in range(16): fill.add(4, lambda i=i: k.V("v_mul_f32", accV[i], R2[i], accV[i]))
            for i in range(8): fill.add(4, lambda i=i: k.V("v_cvt_pk_bf16_f32", pv[i], accV[2 * i], accV[2 * i + 1]))
            for i in range(8): fill.add(4, lambda i=i: k.V("v_cndmask_b32_e64", pv[i], pv[i], self.et[0], self.sPad))
            fill.add(8, lambda: k.mfma(True, accK, pk[0:4], pv[0:4], 0))
            fill.add(8, lambda: k.mfma(True, accK, pk[4:8], pv[4:8], accK))
        pre_read[62] = b2
        pre_read[72] = self.bar_wait(('q', 4), ('q', 5), ('q', 6))
        self.run_slots(slots, pre_read, pre_mfma, post, fill, dq)
        fill.drain(); self.stamp('p2end')
        for _, f in self.cs_pack(csQ, 2): f()
        k.S("s_lshl_b32", T[3], self.sGrp, 14); k.S("s_lshl_b32", T[4], self.sRt, 10); k.S("s_add_u32", T[4], T[4], T[3]); k.S("s_add_u32", T[4], T[4], EXA)
        k.V("v_lshl_add_u32", tmp[4], self.lane, 4, T[4])
        for d in range(4): k.ds_write("ds_write_b128", tmp[4], accK[4 * d:4 * d + 4], d * 4096)
        k.S("s_lshl_b32", T[4], self.sRt, 12); k.S("s_add_u32", T[4], T[4], T[3]); k.S("s_add_u32", T[4], T[4], EXA)
        k.V("v_lshl_add_u32", tmp[5], self.lane, 4, T[4])
        self.bar_wait(lg=True)()
        for sw in range(4): k.ds_read("ds_read_b128", accV[4 * sw:4 * sw + 4], tmp[5], sw * 1024)
        for _, f in self.cs_apply(csQ, 2, accQ, True): f()
        for i in range(4):
            k.V("v_add_f32", accV[i], accV[i], accV[4 + i]); k.V("v_add_f32", accV[8 + i], accV[8 + i], accV[12 + i])
        for i in range(4): k.V("v_add_f32", accV[i], accV[i], accV[8 + i])
        k.gstore(accV[0:4], self.vST, self.sWS, 0, mod=" sc1", tok=('pst',))
        self.stamp('p3end')
        k.S("s_lshl_b32", T[1], self.sI, 2); k.S("s_add_u32", T[1], T[1], self.sRt)
        k.S("s_lshl_b32", T[2], T[1], 4); k.S("s_add_u32", T[2], T[2], head); k.S("s_lshl_b32", T[2], T[2], 11); k.S("s_add_u32", T[2], T[2], QB)
        vSQ = self.vWH
        k.V("v_lshl_add_u32", vSQ, self.lane, 4, T[2])
        k.S("s_mov_b32", self.sCol[0], T[1])
        def qepi():
            it = []
            for g4 in range(4):
                it += self.phi4([accQ[4 * g4 + i] for i in range(4)], [self.cc] * 4, pk[2 * g4:2 * g4 + 2])
                if g4 % 2 == 1:
                    h = g4 // 2
                    it.append((4, lambda h=h: k.gstore(pk[4 * h:4 * h + 4], vSQ, self.sWS, 0, imm=1024 * h, mod=" sc1", tok=('fin',))))
            return it
        def pflag_then_qaddr():
            self.flag_store(1, [('pst',)])
            self.flag_addr(FLQ, self.sCol[0], 7, head)
            k.S("s_add_u32", T[4], self.sTag[0], 1); k.V("v_mov_b32", self.vFV[0], T[4])
        k.S("s_cmp_eq_u32", self.sIsRed, 1)
        k.branch("s_cbranch_scc1", "L_red")
        k.S("s_cmp_eq_u32", self.sGrp, 1)
        k.branch("s_cbranch_scc1", "L_qB")
        st = self.save()
        self.p2a_preamble(qepi(), mid=None)
        pflag_then_qaddr()
        self.stamp('tail')
        self.joinA.append(self.exit_state()); k.branch("s_branch", "L_p2a")
        self.restore(st)
        k.label("L_qB")
        for _, f in qepi(): f()
        self.job_p2_b(3)()
        pflag_then_qaddr()
        self.stamp('tail')
        self.joinB.append(self.exit_state()); k.branch("s_branch", "L_p2b")
        self.restore(st)
        k.label("L_red")
        for _, f in qepi(): f()
        pflag_then_qaddr()
        self.flag_store(1, [('fin',)])
        self.stamp('tail')
        self.reducer()

    def reducer(self):
        k, T, tmp, lane = self.k, self.sT, self.tmp, self.lane
        vP, vPA, vD = v(44, 2), v(46), v(47)
        k.S("s_lshl_b32", T[1], self.sRho, 8); k.S("s_add_u32", T[1], T[1], FLP)
        k.V("v_lshl_add_u32", tmp[4], lane, 3, T[1]); k.V("v_mov_b32", tmp[5], OOB)
        k.V("v_cmp_gt_u32", VCC, 32, lane); k.V("v_cndmask_b32", vPA, tmp[5], tmp[4])
        self.poll_issue(vP, vPA)
        k.S("s_lshr_b32", T[1], self.sRho, 1); k.S("s_lshl_b32", T[1], T[1], 16); k.S("s_and_b32", T[2], self.sRho, 1); k.S("s_lshl_b32", T[2], T[2], 11)
        k.S("s_add_u32", T[1], T[1], T[2]); k.S("s_lshl_b32", T[2], self.sWv, 7); k.S("s_add_u32", T[1], T[1], T[2]); k.S("s_add_u32", T[1], T[1], PB)
        k.V("v_lshrrev_b32", tmp[4], 3, lane); k.V("v_and_b32", tmp[5], 7, lane)
        k.V("v_lshlrev_b32", tmp[4], 12, tmp[4]); k.V("v_lshl_add_u32", tmp[4], tmp[5], 4, tmp[4]); k.V("v_add_u32", tmp[4], T[1], tmp[4])
        self.poll_check(vP, vPA, vD, 1, (-1, 0))
        self.stamp('c1')
        A, B = v(60, 8), v(68, 8)
        k.S("s_mov_b32", T[2], 32768)
        for i2, dst in enumerate((A, B)):
            for qq in range(2): k.gload(dst[4 * qq:4 * qq + 4], tmp[4], self.sWS, T[2] if i2 else 0, imm=1024 * qq, mod=" sc1")
        k.S("s_and_b32", T[3], self.sWv, 3); k.S("s_cmp_eq_u32", T[3], 3); k.S("s_cselect_b32", T[3], 4, 8)
        k.V("v_cmp_gt_u32", VCC, T[3], tmp[5]); k.V("v_mov_b32", tmp[6], 1.0); k.V("v_mov_b32", tmp[7], self.sLn2)
        k.V("v_cndmask_b32", tmp[6], tmp[6], tmp[7])
        k.S("s_and_b32", T[3], self.sRho, self.sGrp); k.S("s_and_b32", T[3], T[3], 1); k.S("s_cmp_eq_u32", T[3], 1); k.S("s_cselect_b32", T[3], 0, 1.0)
        k.V("v_mul_f32", tmp[7], T[3], tmp[6])
        k.S("s_lshl_b32", T[1], self.sRho, 10); k.S("s_lshl_b32", T[2], self.sWv, 7); k.S("s_add_u32", T[1], T[1], T[2]); k.S("s_add_u32", T[1], T[1], KVB)
        k.V("v_lshl_add_u32", tmp[4], lane, 4, T[1]); k.V("v_mov_b32", tmp[5], OOB)
        k.V("v_cmp_gt_u32", VCC, 8, lane); k.V("v_cndmask_b32", tmp[4], tmp[5], tmp[4])
        for i in range(8): k.V("v_add_f32", A[i], A[i], B[i])
        for i in range(8): k.emit(f"v_add_f32_dpp {B[i]}, {A[i]}, {A[i]} row_ror:8 row_mask:0xf bank_mask:0xf", 'perm', rd=[A[i]], wr=[B[i]])
        for op in ("v_permlane16_swap_b32", "v_permlane32_swap_b32"):
            for i in range(8): k.V("v_mov_b32", A[i], B[i])
            for i in range(8): k.V(op, A[i], B[i])
            for i in range(8): k.V("v_add_f32", B[i], A[i], B[i])
        for i in range(8): k.V("v_mul_f32", B[i], tmp[6] if i < 4 else tmp[7], B[i])
        for i in range(4): k.V("v_cvt_pk_bf16_f32", A[i], B[2 * i], B[2 * i + 1])
        k.gstore(A[0:4], tmp[4], self.sWS, 0, mod=" sc1", tok=('kv',))
        k.wait_tok(('kv',)); k.barrier()
        k.S("s_cmp_eq_u32", self.sWv, 0)
        k.branch("s_cbranch_scc0", "L_fin")
        k.S("s_lshr_b32", T[0], self.sRho, 3); k.S("s_and_b32", T[3], self.sRho, 7)
        self.flag_addr(FLK, T[0], 7, T[3])
        self.flag_store(1, [])
        self.stamp('c2')
        k.S("s_cmp_eq_u32", self.sRho, 0)
        k.branch("s_cbranch_scc0", "L_fin")
        k.V("v_lshrrev_b32", tmp[4], 3, lane); k.V("v_lshlrev_b32", tmp[4], 7, tmp[4]); k.V("v_and_b32", tmp[5], 7, lane)
        k.V("v_lshl_add_u32", tmp[4], tmp[5], 3, tmp[4]); k.V("v_add_u32", vPA, FLK, tmp[4])
        self.poll_issue(vP, vPA); self.poll_check(vP, vPA, vD, 1, (-1, 0))
        k.V("v_lshrrev_b32", tmp[4], 2, lane); k.V("v_lshlrev_b32", tmp[4], 9, tmp[4]); k.V("v_and_b32", tmp[5], 3, lane)
        k.V("v_lshl_add_u32", tmp[4], tmp[5], 4, tmp[4])
        for h in range(2):
            k.V("v_add_u32", vPA, FLH + 64 * h, tmp[4])
            self.poll_issue(vP, vPA); self.poll_check(vP, vPA, vD, 1, (-1, -1))
        k.V("v_mov_b32", tmp[4], 0); k.V("v_mov_b32", tmp[5], OOB); k.V("v_cmp_eq_u32", VCC, 0, lane); k.V("v_cndmask_b32", tmp[4], tmp[5], tmp[4])
        k.V("v_mov_b32", self.vFV[0], self.sTag[0])
        k.gstore(self.vFV, tmp[4], self.sWS, 0, imm=EPOCH, mod=" sc1")
        k.branch("s_branch", "L_fin")

    def t2_base(self, dst0, dst1, base):
        k, tmp = self.k, self.tmp
        return [(4, lambda: k.V("v_bfe_u32", tmp[4], self.lane, 2, 2)),
                (4, lambda: k.V("v_lshrrev_b32", tmp[5], 5, self.lane)),
                (4, lambda: k.V("v_lshl_add_u32", tmp[4], tmp[5], 2, tmp[4])),
                (4, lambda: k.V("v_lshl_add_u32", tmp[4], tmp[4], 7, base)),
                (4, lambda: k.V("v_add_u32", dst0, tmp[4], self.vColb)),
                (4, lambda: k.V("v_xor_b32", tmp[5], 64, self.vColb)),
                (4, lambda: k.V("v_add_u32", dst1, tmp[4], tmp[5]))]
    def job_p2_a(self, n):
        k = self.k
        def f():
            if n % 2 == 0: self.unit_w(n // 2)
            src = self.sUW[2] if n == 1 else self.sUW[0]
            r, off = self.a_pos(n)
            k.S("s_add_u32", M0, self.sMp[r], off)
            b = 2 * (n % 2)
            k.dma(self.vP2d[b], self.sP2, src, 0, ('p2', n)); k.dma(self.vP2d[b + 1], self.sP2, src, 1024, ('p2', n))
        return f
    def job_p2_b(self, n):
        k, T = self.k, self.sT
        def f():
            k.S("s_mul_i32", T[1], self.sRt, 112 * 896); k.S("s_add_u32", T[1], T[1], (n // 2) * 28 * 896)
            k.S("s_add_u32", M0, self.sMp[0 if n < 4 else 1], (n % 4) * 2048)
            b = 2 * (n % 2)
            k.dma(self.vP2d[b], self.sP2, T[1], 0, ('p2', n)); k.dma(self.vP2d[b + 1], self.sP2, T[1], 1024, ('p2', n))
        return f
    def act(self, n, rt): return a(8 * (n % 14) + 4 * rt, 4)
    def act_load(self, n):
        k = self.k
        if n % 2 == 0: self.unit_a(n // 2)
        for rt in range(2): k.gload(self.act(n, rt), self.vAct[rt], self.sWS, self.sUW[1], imm=1024 * (n % 2), mod=" sc1")
    def p2a_regs(self):
        self.vAct = [v(76), v(77)]; self.aP, self.aPA, self.aD = v(78, 2), v(80), v(81)
        self.vT2 = [v(82), v(83), v(84), v(85)]
    def p2a_preamble(self, epi, mid):
        k, T, tmp, lane = self.k, self.sT, self.tmp, self.lane
        self.p2a_regs()
        k.V("v_and_b32", tmp[4], 1, lane); k.V("v_lshlrev_b32", tmp[4], 7, tmp[4])
        k.V("v_bfe_u32", tmp[5], lane, 1, 1); k.V("v_lshl_add_u32", tmp[4], tmp[5], 4, tmp[4])
        k.V("v_bfe_u32", tmp[5], lane, 2, 1); k.V("v_lshl_add_u32", tmp[4], tmp[5], 3, tmp[4])
        k.S("s_lshl_b32", T[1], self.sI2, 8); k.S("s_lshl_b32", T[2], self.sRt, 5); k.S("s_add_u32", T[1], T[1], T[2]); k.S("s_add_u32", T[1], T[1], FLH)
        k.V("v_add_u32", tmp[4], T[1], tmp[4]); k.V("v_mov_b32", tmp[5], OOB)
        k.V("v_cmp_gt_u32", VCC, 8, lane); k.V("v_cndmask_b32", self.aPA, tmp[5], tmp[4])
        self.poll_issue(self.aP, self.aPA)
        k.S("s_mul_i32", T[1], self.sI2, 224 * 1024); k.S("s_mul_i32", T[2], self.sRt, 28 * 1024); k.S("s_add_u32", T[1], T[1], T[2]); k.S("s_add_u32", T[1], T[1], HB)
        k.V("v_lshl_add_u32", self.vAct[0], lane, 4, T[1]); k.V("v_add_u32", self.vAct[1], 112 * 1024, self.vAct[0])
        self.job_p2_a(3)()
        for _, f in self.t2_base(self.vT2[0], self.vT2[1], self.sMp[0]) + self.t2_base(self.vT2[2], self.vT2[3], self.sMp[1]): f()
        n1 = (len(epi) * 2) // 5
        for _, f in epi[:n1]: f()
        if mid: mid()
        self.stamp('preG0')
        self.poll_check(self.aP, self.aPA, self.aD, 1, 0xff)
        self.stamp('G0')
        rest = epi[n1:]
        step = max(1, len(rest) // 5)
        for n in range(4):
            self.act_load(n)
            for _, f in rest[n * step:(n + 1) * step]: f()
        for _, f in rest[4 * step:]: f()
        self.pre_acts = 4
    def final_write_addrs(self, regs, base):
        k, tmp = self.k, self.tmp
        k.V("v_and_b32", tmp[4], 31, self.lane); k.V("v_lshl_add_u32", tmp[4], tmp[4], 8, base)
        k.V("v_lshrrev_b32", tmp[5], 5, self.lane); k.V("v_and_b32", tmp[6], 7, self.lane); k.V("v_xor_b32", tmp[5], tmp[5], tmp[6])
        for q in range(4):
            k.V("v_xor_b32", tmp[6], 2 * q, tmp[5]); k.V("v_lshl_add_u32", regs[q], tmp[6], 4, tmp[4])
    def x_res_load(self):
        k, T, tmp = self.k, self.sT, self.tmp
        self.vXO, self.xres = v(4), v(8, 4)
        k.S("s_lshl_b32", T[1], self.sI2, 3); k.S("s_add_u32", T[1], T[1], self.sWv); k.S("s_mul_i32", T[1], T[1], 8 * 896)
        k.S("s_lshl_b32", T[2], self.sC, 7); k.S("s_add_u32", T[1], T[1], T[2])
        k.V("v_lshrrev_b32", tmp[4], 3, self.lane); k.V("v_and_b32", tmp[5], 7, self.lane); k.V("v_lshlrev_b32", tmp[5], 4, tmp[5])
        k.S("s_movk_i32", T[2], 896); k.V("v_mad_u32_u24", tmp[4], tmp[4], T[2], tmp[5]); k.V("v_add_u32", self.vXO, T[1], tmp[4])
        k.gload(self.xres, self.vXO, self.sX, 0)

    def phase2a(self):
        k, T, c = self.k, self.sT, self.c
        k.label("L_p2a")
        self.merge(self.joinA)
        self.p2a_regs()
        look, wl = c['look'], 9
        accF = [[v(28, 16), v(44, 16)], [v(60, 16), v(92, 16)]]
        def wf(n, ct): return a(112 + 4 * ((2 * n + ct) % 6), 4)
        def wread(n):
            k.wait_tok(('p2', n))
            r, off = self.a_pos(n)
            for ct in range(2):
                k.ds_read("ds_read_b64_tr_b16", wf(n, ct)[0:2], self.vT2[2 * r + ct], off)
                k.ds_read("ds_read_b64_tr_b16", wf(n, ct)[2:4], self.vT2[2 * r + ct], off + 1024)
        wread(0); wread(1)
        nw, na = 4, self.pre_acts
        checks = {8: (2, 0xff), 16: (3, 0xff), 24: (4, 0xf0)}
        for n in range(28):
            if n == 4: self.stamp('hook'); k.barrier(); self.stamp('J')
            k.wait_regs(wf(n, 0), wf(n, 1), self.act(n, 0), self.act(n, 1))
            i = 0
            for rt in range(2):
                for ct in range(2):
                    k.mfma(True, accF[ct][rt], wf(n, ct), self.act(n, rt), 0 if n == 0 else accF[ct][rt])
                    if i == 0 and n + 2 < 28: wread(n + 2)
                    if i == 1:
                        cnt = 0
                        while na < 28 and na <= n + look and cnt < 2:
                            if na in checks:
                                self.poll_check(self.aP, self.aPA, self.aD, *checks[na])
                                self.stamp(f'c{na // 8}')
                            self.act_load(na); na += 1; cnt += 1
                        if na + 2 in checks or (na + 3 in checks and False): self.poll_issue(self.aP, self.aPA)
                    if i == 3:
                        cnt = 0
                        while nw < 28 and nw <= n + wl and nw - 11 <= n and cnt < 2:
                            self.job_p2_a(nw)(); nw += 1; cnt += 1
                    i += 1
            if n == 2: self.flag_hook()
            if n == 22: self.x_res_load()
        self.stamp('mainend')
        W = [v(12 + 0), v(13), v(14), v(15)]
        W = [v(108), v(109), v(110), v(111)]
        self.final_write_addrs(W, self.sMp[1])
        for rt in range(2):
            for ct in range(2):
                for q in range(4): k.ds_write("ds_write_b128", W[q], accF[ct][rt][4 * q:4 * q + 4], 8192 * rt + 128 * ct)
        self.joinF.append(self.exit_state()); k.branch("s_branch", "L_final")
    def flag_hook(self):
        k = self.k
        k.wait_tok(('fin',))
        k.gstore(self.vFV, self.vFA, self.sWS, 0, mod=" sc1", tok=('flag',))

    def phase2b(self):
        k, T, tmp, lane, c = self.k, self.sT, self.tmp, self.lane, self.c
        k.label("L_p2b")
        self.merge(self.joinB)
        vPQ, vKV, vP, vPA, vD = [v(10), v(11)], v(15), v(16, 2), v(18), v(19)
        vT2 = [v(20), v(23), v(108), v(109)]
        rc, rc2, den = v(12), v(13), v(14)
        kv = lambda hh, s_: v(24 + 8 * hh + 4 * s_, 4)
        pq = lambda hh, rt, s_: a(64 + 16 * hh + 8 * rt + 4 * s_, 4)
        N = [v(56, 16), v(72, 16)]; O = [v(88, 8), v(96, 8)]
        accS = [[a(0, 16), a(16, 16)], [a(32, 16), a(48, 16)]]
        k.V("v_and_b32", tmp[4], 1, lane); k.V("v_lshlrev_b32", tmp[4], 7, tmp[4])
        k.V("v_bfe_u32", tmp[5], lane, 1, 2); k.V("v_lshl_add_u32", tmp[4], tmp[5], 3, tmp[4])
        k.S("s_lshl_b32", T[1], self.sI2, 8); k.S("s_lshl_b32", T[2], self.sRt, 5); k.S("s_add_u32", T[1], T[1], T[2]); k.S("s_add_u32", T[1], T[1], FLQ)
        k.V("v_add_u32", tmp[4], T[1], tmp[4])
        k.S("s_lshl_b32", T[1], self.sRt, 7); k.S("s_add_u32", T[1], T[1], FLK - 64)
        k.V("v_lshl_add_u32", tmp[5], lane, 3, T[1])
        k.V("v_cmp_gt_u32", VCC, 8, lane); k.V("v_cndmask_b32", tmp[4], tmp[5], tmp[4])
        k.V("v_mov_b32", tmp[5], OOB); k.V("v_cmp_gt_u32", VCC, 16, lane); k.V("v_cndmask_b32", vPA, tmp[5], tmp[4])
        k.S("s_lshl_b32", T[1], self.sI2, 16); k.S("s_lshl_b32", T[2], self.sRt, 13); k.S("s_add_u32", T[1], T[1], T[2]); k.S("s_add_u32", T[1], T[1], QB)
        k.V("v_lshl_add_u32", vPQ[0], lane, 4, T[1]); k.V("v_add_u32", vPQ[1], 32768, vPQ[0])
        k.S("s_add_u32", T[1], T[2], KVB); k.V("v_lshl_add_u32", vKV, lane, 4, T[1])
        self.flag_hook()
        self.stamp('hook')
        k.barrier()
        self.stamp('J')
        for n in range(4, 8): self.job_p2_b(n)()
        self.poll_issue(vP, vPA)
        self.poll_check(vP, vPA, vD, 1, 0xff)
        self.stamp('c1')
        k.S("s_movk_i32", T[0], 4096)
        for hh in range(4):
            for rt in range(2):
                for s_ in range(2):
                    k.gload(pq(hh, rt, s_), vPQ[rt], self.sWS, T[0] if hh >= 2 else 0, imm=2048 * (hh % 2) + 1024 * s_, mod=" sc1")
        self.poll_issue(vP, vPA)
        for _, f in self.t2_base(vT2[0], vT2[1], self.sMp[0]) + self.t2_base(vT2[2], vT2[3], self.sMp[1]): f()
        self.x_res_load()
        self.poll_check(vP, vPA, vD, 1, 0xff00)
        self.stamp('c2')
        k.S("s_movk_i32", T[0], 4096)
        for hh in range(4):
            for s_ in range(2):
                k.gload(kv(hh, s_), vKV, self.sWS, T[0] if hh >= 2 else 0, imm=2048 * (hh % 2) + 1024 * s_, mod=" sc1")
        Wf = [v(104, 4), v(112, 4), v(116, 4), v(4 + 0, 4)]
        Wf = [v(104, 4), v(112, 4), v(116, 4), v(16, 4)]
        def wread(hh, f):
            s_, ct = divmod(f, 2); n = 2 * hh + s_
            k.wait_tok(('p2', n))
            r = 0 if n < 4 else 1
            k.ds_read("ds_read_b64_tr_b16", Wf[f][0:2], vT2[2 * r + ct], (n % 4) * 2048)
            k.ds_read("ds_read_b64_tr_b16", Wf[f][2:4], vT2[2 * r + ct], (n % 4) * 2048 + 1024)
        def num(u):
            hh, rt = divmod(u, 2)
            k.mfma(True, N[u % 2], kv(hh, 0), pq(hh, rt, 0), 0)
            k.mfma(True, N[u % 2], kv(hh, 1), pq(hh, rt, 1), N[u % 2])
        def val(u):
            n_, o_ = N[u % 2], O[u % 2]
            it = [(4, lambda: k.V("v_mov_b32", den, n_[12])),
                  (4, lambda: k.V("v_permlane32_swap_b32", n_[12], den)),
                  (4, lambda: k.V("v_add_f32", den, 1e-6, den)),
                  (8, lambda: k.V("v_rcp_f32", rc, den)),
                  (4, lambda: k.V("v_cndmask_b32_e64", rc2, rc, 0, self.sHi))]
            for i in range(8):
                it.append((8, lambda i=i: [k.V("v_mul_f32", n_[j], rc if j < 12 else rc2, n_[j]) for j in (2 * i, 2 * i + 1)]))
                it.append((4, lambda i=i: k.V("v_cvt_pk_bf16_f32", o_[i], n_[2 * i], n_[2 * i + 1])))
            return it
        for f in range(4): wread(0, f)
        num(0); num(1)
        self.stamp('c3')
        for _, f in val(0): f()
        for u in range(8):
            hh, rt = divmod(u, 2)
            fill = Fill()
            if u + 1 < 8: fill.extend(val(u + 1))
            for f in range(4):
                s_, ct = divmod(f, 2)
                k.mfma(True, accS[ct][rt], Wf[f], O[u % 2][4 * s_:4 * s_ + 4], 0 if (hh == 0 and s_ == 0) else accS[ct][rt])
                if rt == 1 and hh < 3: wread(hh + 1, f)
                if f == 0 and u + 2 < 8: num(u + 2)
                fill.run(30)
            fill.drain()
        self.stamp('mainend')
        W = [v(24), v(25), v(26), v(27)]
        self.final_write_addrs(W, self.sMp[0])
        k.S("s_sub_u32", T[1], self.sMp[1], self.sMp[0])
        for rt in range(2):
            if rt == 1:
                for q in range(4): k.V("v_add_u32", W[q], T[1], W[q])
            for ct in range(2):
                for q in range(4): k.ds_write("ds_write_b128", W[q], accS[ct][rt][4 * q:4 * q + 4], 128 * ct)
        self.joinF.append(self.exit_state())

    def final(self):
        k, T, tmp, lane = self.k, self.sT, self.tmp, self.lane
        k.label("L_final")
        self.merge(self.joinF)
        vF, vS = [v(24), v(25)], [v(26), v(27)]
        k.V("v_lshrrev_b32", tmp[4], 3, lane); k.V("v_and_b32", tmp[5], 7, lane); k.V("v_lshlrev_b32", tmp[5], 1, tmp[5])
        k.V("v_xor_b32", tmp[5], tmp[5], tmp[4]); k.V("v_lshlrev_b32", tmp[4], 8, tmp[4])
        k.S("s_lshl_b32", T[1], self.sWv, 11); k.S("s_lshl_b32", T[2], self.sRt, 11)
        k.S("s_cmp_eq_u32", self.sGrp, 0); k.S("s_cselect_b32", T[3], WB, W0R); k.S("s_add_u32", T[2], T[2], T[3])
        for h in range(2):
            if h: k.V("v_xor_b32", tmp[5], 1, tmp[5])
            k.V("v_lshl_add_u32", tmp[6], tmp[5], 4, tmp[4])
            k.V("v_add_u32", vF[h], T[1], tmp[6]); k.V("v_add_u32", vS[h], T[2], tmp[6])
        k.barrier()
        self.stamp('Z')
        F = [v(28 + 8 * i, 8) for i in range(4)]; S = [v(60 + 8 * i, 8) for i in range(4)]
        for src in range(4):
            for h in range(2): k.ds_read("ds_read_b128", F[src][4 * h:4 * h + 4], vF[h], src * 16384)
        for src in range(4):
            for h in range(2): k.ds_read("ds_read_b128", S[src][4 * h:4 * h + 4], vS[h], src * 8192)
        def tree(X):
            for i in range(8): k.V("v_add_f32", X[0][i], X[0][i], X[1][i])
            for i in range(8): k.V("v_add_f32", X[2][i], X[2][i], X[3][i])
            for i in range(8): k.V("v_add_f32", X[0][i], X[0][i], X[2][i])
        tree(F)
        t = F[1]; xu = F[2]
        for i in range(8): k.V("v_mul_f32", t[i], -LOG2E, F[0][i])
        for i in range(8): k.V("v_exp_f32", t[i], t[i])
        for i in range(8): k.V("v_add_f32", t[i], 1.0, t[i])
        for i in range(8): k.V("v_rcp_f32", t[i], t[i])
        tree(S)
        for i in range(8): k.V("v_mul_f32", t[i], t[i], F[0][i])
        for i in range(4):
            k.V("v_lshlrev_b32", xu[2 * i], 16, self.xres[i]); k.V("v_and_b32", xu[2 * i + 1], 0xffff0000, self.xres[i])
        for i in range(8): k.V("v_fmac_f32", xu[i], S[0][i], t[i])
        for i in range(4): k.V("v_cvt_pk_bf16_f32", self.xres[i], xu[2 * i], xu[2 * i + 1])
        k.gstore(self.xres, self.vXO, self.sOUT, 0)

    def build(self):
        k = self.k
        self.joinF = []
        self.prologue()
        k.S("s_cmp_eq_u32", self.sIsH, 1)
        k.branch("s_cbranch_scc0", "L_roleQ")
        st = self.save()
        self.role_h()
        self.restore(st)
        self.role_qkv()
        self.phase2a()
        self.phase2b()
        self.final()
        k.label("L_fin")
        k.raw("  s_waitcnt vmcnt(0)")
        self.stamp_flush()
        k.label("L_end")
        k.raw("  s_endpgm")
        head = open(__file__.rsplit('/', 1)[0] + "/header.txt").read() if '/' in __file__ else open("header.txt").read()
        head = head.replace("@LDS@", str(LDS_BYTES))
        tail = f""".section .rodata,"a"
.p2align 6
.amdhsa_kernel {NAME}_kernel
  .amdhsa_next_free_vgpr {NV + NA}
  .amdhsa_next_free_sgpr 102
  .amdhsa_accum_offset {NV}
  .amdhsa_group_segment_fixed_size 0
  .amdhsa_kernarg_size 72
  .amdhsa_user_sgpr_count 2
  .amdhsa_user_sgpr_kernarg_segment_ptr 1
  .amdhsa_system_sgpr_workgroup_id_x 1
  .amdhsa_float_denorm_mode_32 3
.end_amdhsa_kernel
"""
        if self.c['stamps']: head += '; stamps: ' + ','.join(self.c['stamps']) + '\n'
        return head + k.text() + tail

if __name__ == "__main__":
    import json
    out = sys.argv[1]
    cfg = json.loads(sys.argv[2]) if len(sys.argv) > 2 else {}
    g = Gen(**cfg)
    txt = g.build()
    open(out, "w").write(txt)
    n = sum(1 for l in g.k.out if l.startswith("  ") and not l.startswith("  ;"))
    print(f"{out}: {n} instructions, {g.k.nops} nop states, {g.k.waits} auto waits", file=sys.stderr)
    if cfg.get('verbose'):
        for l in g.k.log: print(l, file=sys.stderr)
```

```python
import sys, math
from asmlib import *

NAME = "recurrent_scan__linear_attn_block__dense_activation_silu__prompt"
NV, NA = 120, 136
EPOCH, FLH, FLQ, FLP, FLK = 0, 4096, 12288, 20480, 28672
KVB, PB, QB, HB, WSEND = 32768, 0x10000, 0x200000, 0x400000, 0xB00000
STAMPS = 0xC00000
XR, W0R, WB, MISC = 0, 65536, 98304, 155648
KVR, EXA = 90112, 65536
CSA, STA, R2A = MISC, MISC + 4096, MISC + 3072
LDS_BYTES = 163840
OOB = 0x40000000
LOG2E = 1.4426950408889634
LN2 = 0.6931471805599453
ONES = 0x3f803f80

DEF = dict(LA=3, bud=26, stamps=False, spin=200000, warm=True, codepf=True, look=6, stop=None, sleep=0)

class Gen:
    def __init__(self, **cfg):
        self.c = dict(DEF); self.c.update(cfg)
        self.k = K()
        self.sa = Alloc('s', 52, 100)
        self.joinA, self.joinB = [], []
        self.lane = v(0); self.vFA = v(1); self.vFV = v(2, 2); self.vP2d = [v(4 + i) for i in range(4)]
        self.vRowp, self.vColb, self.vST, self.vWD = v(8), v(9), v(10), v(11)
        self.cc, self.irs, self.sum, self.sq, self.vCSW, self.vCSR = v(15), v(16), v(17), v(18), v(19), v(20)
        self.vStampA, self.vStampD, self.vWH = v(21), v(22), v(23)
        self.IND, self.mneg, self.et, self.xt = v(24, 4), v(28, 4), v(32, 4), v(36, 8)
        self.sp = v(34, 2); self.eo = self.xt
        self.vTX = [v(44 + i) for i in range(4)]; self.vXR = [v(48 + i) for i in range(4)]
        self.vXT = [v(52), v(53)]; self.vXD = [v(54), v(55)]; self.vTY = [v(56 + i) for i in range(4)]
        self.blk = [v(60, 16), v(76, 16), v(92, 16)]
        self.cs = [v(108, 4), v(112, 4), v(116, 4)]
        self.tmp = [v(92), v(93), v(94), v(95), v(12), v(13), v(14), v(96)]
        self.vDummy, self.vDummy2 = v(32), v(33)

    STAMP_PAIRS = [4, 6, 8, 10, 12, 14, 16, 18, 44, 46, 48, 50]
    def stamp(self, name):
        if not self.c['stamps']: return
        names = self.c['stamps']
        if name not in names: return
        idx = names.index(name)
        if idx == 0: self.k.raw(f"  s_memrealtime s[{self.STAMP_PAIRS[10]}:{self.STAMP_PAIRS[10] + 1}]")
        self.k.raw(f"  s_memtime s[{self.STAMP_PAIRS[idx]}:{self.STAMP_PAIRS[idx] + 1}]")
    def stamp_flush(self):
        if not self.c['stamps']: return
        k, T, P = self.k, self.sT, self.STAMP_PAIRS
        k.raw(f"  s_memtime s[{P[9]}:{P[9] + 1}]")
        k.raw(f"  s_memrealtime s[{P[11]}:{P[11] + 1}]")
        k.raw("  s_waitcnt lgkmcnt(0)")
        k.raw("  s_mov_b32 s38, 0xd00000")
        k.raw(f"  s_lshl_b32 {T[0]}, s2, 3\n  s_add_u32 {T[0]}, {T[0]}, {self.sWv}\n  s_lshl_b32 {T[0]}, {T[0]}, 7\n  s_add_u32 {T[0]}, {T[0]}, {STAMPS}")
        k.raw(f"  v_mov_b32 v12, 0x40000000\n  v_mov_b32 v13, 0\n  v_cmp_eq_u32 vcc, 0, v0\n  s_nop 1\n  v_cndmask_b32 v12, v12, v13, vcc")
        for i, p in enumerate(P):
            k.raw(f"  v_mov_b32 v14, s{p}\n  buffer_store_dword v14, v12, s[36:39], {T[0]} offen offset:{4 * i}\n  s_nop 1")
        if self.c.get('dbgwg') is not None:
            skip = k.newlabel("Ldbg")
            k.raw(f"  s_lshl_b32 {T[1]}, s2, 3\n  s_add_u32 {T[1]}, {T[1]}, {self.sWv}\n  s_cmp_eq_u32 {T[1]}, {self.c['dbgwg']}\n  s_cbranch_scc0 {skip}")
            k.raw("  s_load_dwordx2 s[40:41], s[0:1], 56\n  s_waitcnt lgkmcnt(0)\n  s_mov_b32 s42, 256\n  s_mov_b32 s43, 0x20000")
            k.raw(f"  s_sub_u32 {T[1]}, s{P[11]}, s{P[10]}\n  v_mov_b32 v14, {T[1]}\n  buffer_store_dword v14, v12, s[40:43], 0 offen\n  s_nop 1")
            if self.c.get('early'): k.raw(f"  s_sub_u32 {T[1]}, s{P[10]}, s100\n  v_mov_b32 v14, {T[1]}\n  buffer_store_dword v14, v12, s[40:43], 0 offen offset:40\n  s_nop 1")
            for i in range(1, 10):
                k.raw(f"  s_sub_u32 {T[1]}, s{P[i]}, s{P[0]}\n  s_cmp_eq_u32 s{P[i]}, 0\n  s_cselect_b32 {T[1]}, 0, {T[1]}\n  v_mov_b32 v14, {T[1]}\n  buffer_store_dword v14, v12, s[40:43], 0 offen offset:{4 * i}\n  s_nop 1")
            k.label(skip)

    def flag_store(self, val, toks):
        k = self.k
        self.stamp(f'f{val}a')
        k.wait_tok(*toks)
        self.stamp(f'f{val}b')
        k.S("s_add_u32", self.sT[4], self.sTag[0], val)
        k.V("v_mov_b32", self.vFV[0], self.sT[4])
        k.gstore(self.vFV, self.vFA, self.sWS, 0, mod=" sc1", tok=('flag',))

    def poll_issue(self, vP, vPA):
        self.k.gload(vP, vPA, self.sWS, 0, mod=" sc1")

    def poll_check(self, vP, vPA, vD, need, mask):
        k = self.k
        top, done = k.newlabel("Lspin"), k.newlabel("Lok")
        k.wait_regs(vP)
        k.label(top)
        k.V("v_subrev_u32", vD, self.sTag[0], vP[0])
        k.V("v_cmp_eq_u32", VCC, self.sTag[1], vP[1])
        k.V("v_subrev_u32", vD, need, vD)
        k.V("v_cmp_ge_u32_e64", self.sM0, 15 - need, vD)
        k.S("s_and_b64", self.sM0, self.sM0, VCC)
        k.S("s_mov_b64", self.sM1, mask) if not isinstance(mask, tuple) else (k.S("s_mov_b32", self.sM1[0], mask[0]), k.S("s_mov_b32", self.sM1[1], mask[1]))
        k.S("s_and_b64", self.sM0, self.sM0, self.sM1)
        k.S("s_cmp_eq_u64", self.sM0, self.sM1)
        k.branch("s_cbranch_scc1", done)
        k.S("s_sub_u32", self.sSpin, self.sSpin, 1)
        k.branch("s_cbranch_scc1", done + "x")
        if self.c['sleep']: k.raw(f"  s_sleep {self.c['sleep']}")
        k.raw(f"  buffer_load_dwordx2 {vP}, {vPA}, {self.sWS}, 0 offen sc1")
        k.raw("  s_waitcnt vmcnt(0)")
        k.raw(f"  s_branch {top}")
        k.label(done + "x")
        k.raw(f"  s_mov_b32 {self.sSpin}, 0")
        k.label(done)

    def prologue(self):
        k, sa, c = self.k, self.sa, self.c
        self.sX, self.sW, self.sP2, self.sWS, self.sOUT, self.sDBG, self.sTMP = (s(n, 4) for n in (24, 28, 32, 36, 40, 44, 48))
        k.S("s_cmp_ge_u32", s(2), 256)
        k.branch("s_cbranch_scc1", "L_end")
        if c.get('early'): k.raw("  s_memrealtime s[100:101]")
        k.raw("  s_load_dwordx4 s[4:7], s[0:1], 0")
        k.raw("  s_load_dwordx2 s[8:9], s[0:1], 16")
        k.raw("  s_load_dwordx4 s[12:15], s[0:1], 32")
        k.raw("  s_load_dwordx4 s[16:19], s[0:1], 48")
        k.raw("  s_load_dwordx2 s[20:21], s[0:1], 64")
        g = sa.get
        self.sTag = g(2); self.sM0 = g(2); self.sM1 = g(2); self.sPad = g(2); self.sHi = g(2)
        self.sT = [g() for _ in range(6)]
        (self.sWv, self.sRt, self.sGrp, self.sI, self.sIdx, self.sIsH, self.sIsRed, self.sRho, self.sI2, self.sC,
         self.sRot2, self.sSpin, self.sXb, self.sMx, self.sMw, self.sRS) = [g() for _ in range(16)]
        self.sAs = [g() for _ in range(7)]
        self.sCol = [g() for _ in range(4)]
        self.sMp = [g() for _ in range(2)]
        self.sUW = [g() for _ in range(3)]
        T = self.sT
        lane, tmp = self.lane, self.tmp
        if c['codepf']:
            k.comment("pull this kernel's code into L2: 1/32 of its lines per workgroup")
            k.raw("  s_getpc_b64 s[48:49]")
            k.label("L_pc")
            k.S("s_and_b32", s(49), s(49), 0xffff)
            k.raw("  s_mov_b32 s50, L_end-L_pc")
            k.S("s_mov_b32", s(51), 0x20000)
            k.S("s_lshr_b32", T[0], s(2), 3)
            k.S("s_lshl_b32", T[0], T[0], 7)
            k.V("v_lshlrev_b32", tmp[0], 12, v(0))
            k.V("v_cmp_gt_u32", VCC, 16, v(0))
            k.V("v_mov_b32", tmp[1], OOB)
            k.V("v_cndmask_b32", tmp[0], tmp[1], tmp[0])
            k.gload(self.vDummy, tmp[0], self.sTMP, T[0])
        k.V("v_lshrrev_b32", tmp[0], 6, v(0))
        k.V("v_and_b32", lane, 63, v(0))
        k.V("v_readfirstlane_b32", self.sWv, tmp[0])
        xcd, n, q, sub = T[0], T[1], T[2], T[3]
        k.S("s_and_b32", xcd, s(2), 7)
        k.S("s_lshr_b32", n, s(2), 3)
        k.S("s_lshr_b32", q, xcd, 1)
        k.S("s_lshr_b32", sub, n, 3)
        k.S("s_and_b32", T[4], xcd, 1)
        k.S("s_lshl_b32", T[4], T[4], 3)
        k.S("s_and_b32", T[5], n, 7)
        k.S("s_add_u32", self.sI, T[4], T[5])
        k.S("s_lshr_b32", self.sIsH, sub, 1)
        k.S("s_and_b32", T[4], sub, 1)
        k.S("s_lshl_b32", self.sIdx, q, 1)
        k.S("s_add_u32", self.sIdx, self.sIdx, T[4])
        k.S("s_and_b32", self.sRt, self.sWv, 3)
        k.S("s_lshr_b32", self.sGrp, self.sWv, 2)
        k.S("s_lshl_b32", T[4], sub, 1)
        k.S("s_add_u32", T[4], T[4], T[5])
        k.S("s_cmp_ge_u32", T[4], 7); k.S("s_cselect_b32", T[5], 7, 0); k.S("s_sub_u32", T[4], T[4], T[5])
        k.S("s_cmp_ge_u32", T[4], 7); k.S("s_cselect_b32", T[5], 7, 0); k.S("s_sub_u32", self.sAs[0], T[4], T[5])
        for p in range(1, 7):
            k.S("s_add_u32", self.sAs[p], self.sAs[p - 1], 1)
            k.S("s_cmp_eq_u32", self.sAs[p], 7)
            k.S("s_cselect_b32", self.sAs[p], 0, self.sAs[p])
        k.S("s_cmp_eq_u32", q, 3); k.S("s_cselect_b32", T[4], 0, 8)
        k.S("s_sub_u32", T[5], n, T[4])
        k.S("s_cmp_lt_u32", T[5], 4); k.S("s_cselect_b32", self.sIsRed, 1, 0)
        k.S("s_lshl_b32", self.sRho, xcd, 2); k.S("s_and_b32", T[5], n, 3); k.S("s_add_u32", self.sRho, self.sRho, T[5])
        k.S("s_add_u32", T[4], T[4], 4)
        k.S("s_cmp_ge_u32", n, T[4]); k.S("s_cselect_b32", T[4], 4, 0); k.S("s_sub_u32", T[4], n, T[4])
        k.S("s_lshr_b32", self.sC, T[4], 2)
        k.S("s_and_b32", T[4], T[4], 3)
        k.S("s_lshl_b32", self.sI2, xcd, 2); k.S("s_add_u32", self.sI2, self.sI2, T[4])
        k.S("s_add_u32", self.sRot2, T[4], self.sC); k.S("s_and_b32", self.sRot2, self.sRot2, 3)
        k.S("s_cmp_eq_u32", self.sIsH, 1); k.S("s_cselect_b32", self.sRS, 3584, 2688)
        k.S("s_lshl_b32", T[4], self.sI, 2); k.S("s_add_u32", T[4], T[4], self.sRt)
        k.S("s_mul_i32", self.sXb, T[4], 32 * 896)
        k.S("s_lshl_b32", self.sMx, self.sRt, 12); k.S("s_lshl_b32", T[4], self.sGrp, 11); k.S("s_add_u32", self.sMx, self.sMx, T[4])
        k.S("s_lshl_b32", self.sMw, self.sWv, 10)
        k.S("s_mov_b32", self.sSpin, c['spin'])
        l3, c7, l4, cs = tmp[0], tmp[1], tmp[2], tmp[3]
        k.V("v_lshrrev_b32", l3, 3, lane)
        k.V("v_and_b32", c7, 7, lane)
        k.V("v_lshrrev_b32", l4, 4, lane)
        k.V("v_xor_b32", tmp[4], c7, l4)
        k.V("v_lshlrev_b32", tmp[4], 4, tmp[4])
        k.S("s_movk_i32", T[4], 896)
        k.V("v_mad_u32_u24", tmp[5], l3, T[4], tmp[4])
        k.S("s_mul_i32", T[5], self.sGrp, 14336)
        k.V("v_add_u32", self.vXD[0], T[5], tmp[5])
        k.V("v_xor_b32", tmp[4], 64, tmp[4])
        k.V("v_mad_u32_u24", tmp[5], l3, T[4], tmp[4])
        k.S("s_add_u32", T[5], T[5], 6144)
        k.V("v_add_u32", self.vXD[1], T[5], tmp[5])
        k.V("v_and_b32", tmp[4], 1, l4)
        k.V("v_lshlrev_b32", tmp[4], 2, tmp[4])
        k.V("v_xor_b32", cs, c7, tmp[4])
        k.S("s_cmp_eq_u32", self.sIsH, 1); k.S("s_cselect_b32", T[5], 7, 6)
        k.V("v_min_u32", tmp[4], T[5], cs)
        k.V("v_lshlrev_b32", tmp[4], 4, tmp[4])
        k.S("s_lshl_b32", T[5], self.sWv, 3)
        k.V("v_add_u32", tmp[5], T[5], l3)
        k.V("v_mad_u32_u24", self.vWD, tmp[5], self.sRS, tmp[4])
        k.V("v_lshlrev_b32", tmp[4], 4, cs)
        k.V("v_mad_u32_u24", tmp[4], l3, T[4], tmp[4])
        k.S("s_lshl_b32", T[5], self.sC, 7)
        k.V("v_add_u32", self.vP2d[0], T[5], tmp[4])
        k.V("v_add_u32", self.vP2d[1], 6144, self.vP2d[0])
        k.V("v_add_u32", self.vP2d[2], 14336, self.vP2d[0])
        k.V("v_add_u32", self.vP2d[3], 14336 + 6144, self.vP2d[0])
        k.hard_wait("s_waitcnt lgkmcnt(0)")
        def srd(d, lo, hi, size):
            k.S("s_mov_b32", d[0], lo); k.S("s_and_b32", d[1], hi, 0xffff)
            k.S("s_mov_b32", d[2], size); k.S("s_mov_b32", d[3], 0x20000)
        srd(self.sX, s(4), s(5), 2048 * 896)
        k.S("s_cmp_eq_u32", self.sIsH, 1)
        k.S("s_cselect_b32", self.sW[0], s(12), s(6)); k.S("s_cselect_b32", self.sW[1], s(13), s(7))
        k.S("s_cselect_b32", self.sW[2], 448 * 3584, 448 * 2688)
        k.S("s_and_b32", self.sW[1], self.sW[1], 0xffff); k.S("s_mov_b32", self.sW[3], 0x20000)
        k.raw("  s_load_dwordx2 %s, s[20:21], %d" % (self.sTag, EPOCH))
        self.sRS64 = self.sRS
        k.S("s_lshl_b32", self.sRS64, self.sRS, 6)
        self.sOnes, self.sLn2 = s(22), s(23)
        k.S("s_mov_b32", self.sOnes, ONES); k.S("s_mov_b32", self.sLn2, LN2)

    def prologue2(self):
        k, c, T, tmp, lane = self.k, self.c, self.sT, self.tmp, self.lane
        def srd(d, lo, hi, size):
            k.S("s_mov_b32", d[0], lo); k.S("s_and_b32", d[1], hi, 0xffff)
            k.S("s_mov_b32", d[2], size); k.S("s_mov_b32", d[3], 0x20000)
        if c['warm']:
            k.comment("touch the weights once, spread over all workgroups, so later misses are served on-die")
            k.S("s_and_b32", T[0], self.sWv, 3)
            k.S("s_cmp_eq_u32", T[0], 0); k.S("s_cselect_b32", s(48), s(14), s(12)); k.S("s_cselect_b32", s(49), s(15), s(13))
            k.S("s_cmp_eq_u32", T[0], 2); k.S("s_cselect_b32", s(48), s(8), s(48)); k.S("s_cselect_b32", s(49), s(9), s(49))
            k.S("s_cselect_b32", T[1], 13, 49); k.S("s_cselect_b32", s(50), 448 * 896, 1792 * 896)
            k.S("s_cmp_eq_u32", T[0], 3); k.S("s_cselect_b32", s(48), s(6), s(48)); k.S("s_cselect_b32", s(49), s(7), s(49))
            k.S("s_cselect_b32", T[1], 37, T[1]); k.S("s_cselect_b32", s(50), 448 * 2688, s(50))
            k.S("s_and_b32", s(49), s(49), 0xffff); k.S("s_mov_b32", s(51), 0x20000)
            k.S("s_cmp_eq_u32", self.sGrp, 0); k.S("s_cselect_b32", T[2], T[1], 0)
            k.S("s_mul_i32", T[1], T[1], s(2)); k.S("s_lshl_b32", T[1], T[1], 7)
            k.V("v_lshlrev_b32", tmp[4], 7, lane)
            k.V("v_cmp_gt_u32", VCC, T[2], lane)
            k.V("v_mov_b32", tmp[5], OOB)
            k.V("v_cndmask_b32", tmp[4], tmp[5], tmp[4])
            k.gload(self.vDummy2, tmp[4], self.sTMP, T[1])
        k.S("s_cmp_eq_u32", self.sGrp, 0)
        k.S("s_cselect_b32", self.sP2[0], s(14), s(8)); k.S("s_cselect_b32", self.sP2[1], s(15), s(9))
        k.S("s_cselect_b32", self.sP2[2], 1792 * 896, 448 * 896)
        k.S("s_and_b32", self.sP2[1], self.sP2[1], 0xffff); k.S("s_mov_b32", self.sP2[3], 0x20000)
        k.S("s_xor_b32", T[0], self.sIsH, 1); k.S("s_and_b32", self.sIsRed, self.sIsRed, T[0])
        k.S("s_cmp_eq_u32", self.sIsRed, 1); k.S("s_cselect_b32", self.sP2[2], 0, self.sP2[2])
        srd(self.sWS, s(20), s(21), WSEND)
        srd(self.sOUT, s(16), s(17), 2048 * 896)
        k.S("s_mov_b32", self.sPad[0], 0xf0000000); k.S("s_mov_b32", self.sPad[1], 0xf0000000)
        k.S("s_mov_b32", self.sHi[0], 0); k.S("s_mov_b32", self.sHi[1], -1)
        if c['stamps']:
            for p in self.STAMP_PAIRS: k.S("s_mov_b32", s(p), 0)
        row, hf, gx, base = tmp[0], tmp[1], tmp[2], tmp[3]
        k.V("v_and_b32", row, 31, lane)
        k.V("v_lshrrev_b32", hf, 5, lane)
        k.V("v_bfe_u32", gx, lane, 1, 3)
        k.S("s_lshl_b32", T[0], self.sRt, 12)
        k.V("v_lshl_add_u32", base, row, 7, T[0])
        def xaddr(dst, sp_reg_or_int):
            k.S("s_add_u32", T[1], self.sRt, sp_reg_or_int); k.S("s_and_b32", T[1], T[1], 3); k.S("s_lshl_b32", T[1], T[1], 1)
            k.V("v_add_u32", tmp[4], T[1], hf); k.V("v_xor_b32", tmp[4], tmp[4], gx)
            k.V("v_lshl_add_u32", dst, tmp[4], 4, base)
        for sp in range(4): xaddr(self.vXR[sp], sp)
        k.S("s_lshl_b32", T[2], self.sGrp, 1); xaddr(self.vXT[0], T[2])
        k.S("s_add_u32", T[2], T[2], 1); xaddr(self.vXT[1], T[2])
        k.S("s_lshl_b32", T[0], self.sGrp, 9); k.S("s_add_u32", T[0], T[0], CSA)
        k.V("v_lshl_add_u32", self.vCSR, row, 4, T[0])
        k.S("s_lshl_b32", T[0], self.sRt, 2)
        k.V("v_add_u32", self.vCSW, T[0], self.vCSR)
        k.V("v_lshrrev_b32", tmp[4], 4, lane); k.V("v_lshrrev_b32", tmp[5], 2, lane)
        k.V("v_xor_b32", tmp[4], tmp[4], tmp[5]); k.V("v_and_b32", tmp[4], 1, tmp[4])
        k.V("v_cmp_eq_u32", VCC, 0, tmp[4]); k.V("v_mov_b32", tmp[5], ONES)
        k.V("v_cndmask_b32", self.IND[0], 0, tmp[5])
        for i in range(1, 4): k.V("v_mov_b32", self.IND[i], self.IND[0])
        k.V("v_bfe_u32", tmp[4], lane, 2, 2)
        k.V("v_lshl_add_u32", self.vRowp, hf, 3, tmp[4])
        k.V("v_bfe_u32", tmp[4], lane, 4, 1); k.V("v_lshlrev_b32", tmp[4], 5, tmp[4])
        k.V("v_and_b32", tmp[5], 3, lane); k.V("v_lshl_add_u32", tmp[4], tmp[5], 3, tmp[4])
        k.V("v_bfe_u32", tmp[5], lane, 3, 1); k.V("v_lshl_add_u32", self.vColb, tmp[5], 6, tmp[4])
        k.V("v_mov_b32", self.sum, 0); k.V("v_mov_b32", self.sq, 0)
        k.hard_wait("s_waitcnt lgkmcnt(0)")
        k.S("s_and_b32", self.sTag[0], self.sTag[0], -16); k.S("s_add_u32", self.sTag[0], self.sTag[0], 16)
        k.V("v_mov_b32", self.vFV[1], self.sTag[1])

    def tr_addrs(self, dst, omul, base):
        k, T, tmp = self.k, self.sT, self.tmp
        items = []
        items.append((8, lambda: (k.S("s_mul_i32", T[3], self.sGrp, omul), k.V("v_add_u32", tmp[6], T[3], self.vColb))))
        items.append((4, lambda: k.V("v_and_b32", tmp[6], 127, tmp[6])))
        items.append((4, lambda: k.V("v_lshl_add_u32", tmp[6], self.vRowp, 7, tmp[6])))
        for sp in range(4):
            def f(sp=sp):
                k.S("s_add_u32", T[3], self.sRt, sp); k.S("s_and_b32", T[3], T[3], 3); k.S("s_lshl_b32", T[3], T[3], 11)
                k.S("s_add_u32", T[3], T[3], base)
                k.V("v_add_u32", dst[sp], T[3], tmp[6])
            items.append((20, f))
        return items

    def job_x(self, p):
        k, T = self.k, self.sT
        def f():
            k.S("s_add_u32", M0, self.sMx, XR + (p % 4) * 16384)
            k.S("s_lshl_b32", T[0], self.sAs[p], 7); k.S("s_add_u32", T[0], T[0], self.sXb)
            k.dma(self.vXD[0], self.sX, T[0], 0, ('x', p)); k.dma(self.vXD[1], self.sX, T[0], 1024, ('x', p))
        return f
    def job_w(self, name, p, col, lds):
        k, T = self.k, self.sT
        def f():
            k.S("s_add_u32", M0, self.sMw, lds)
            k.S("s_mul_i32", T[0], self.sAs[p], self.sRS64); k.S("s_add_u32", T[0], T[0], col)
            k.dma(self.vWD, self.sW, T[0], 0, (name, p))
        return f
    def unit_ra(self, pos):
        k, T = self.k, self.sT
        G, q = pos // 4, pos % 4
        k.S("s_add_u32", T[1], self.sRot2, q); k.S("s_and_b32", T[1], T[1], 3 if G < 3 else 1)
        k.S("s_lshr_b32", T[2], T[1], 1); k.S("s_add_u32", T[2], T[2], 2 * G)
        k.S("s_and_b32", T[1], T[1], 1)
    def unit_w(self, pos):
        k, T, U = self.k, self.sT, self.sUW
        self.unit_ra(pos)
        k.S("s_add_u32", T[2], T[2], T[1])
        k.S("s_cmp_eq_u32", T[2], 7); k.S("s_cselect_b32", T[2], 0, T[2])
        k.S("s_mul_i32", T[1], T[1], 7); k.S("s_add_u32", T[2], T[2], T[1])
        k.S("s_mul_i32", T[1], self.sRt, 14); k.S("s_add_u32", T[2], T[2], T[1])
        k.S("s_mul_i32", U[0], T[2], 32 * 896)
    def unit_a(self, pos):
        k, T, U = self.k, self.sT, self.sUW
        self.unit_ra(pos)
        k.S("s_mul_i32", T[1], T[1], 7); k.S("s_add_u32", T[2], T[2], T[1]); k.S("s_lshl_b32", U[1], T[2], 11)
    def a_pos(self, n):
        pos = n % 11
        return (0, pos * 2048) if pos < 3 else (1, (pos - 3) * 2048)
    def job_p2_shared(self, n):
        k, T = self.k, self.sT
        def f():
            if n % 2 == 0:
                self.unit_w(n // 2)
                k.S("s_mul_i32", T[1], self.sRt, 112 * 896); k.S("s_add_u32", T[1], T[1], (n // 2) * 28 * 896)
                k.S("s_cmp_eq_u32", self.sGrp, 0); k.S("s_cselect_b32", self.sUW[2], self.sUW[0], T[1])
            k.S("s_add_u32", M0, self.sMp[0], n * 2048)
            b = 2 * (n % 2)
            k.dma(self.vP2d[b], self.sP2, self.sUW[2], 0, ('p2', n)); k.dma(self.vP2d[b + 1], self.sP2, self.sUW[2], 1024, ('p2', n))
        return f
    def p2_bases(self):
        k, T = self.k, self.sT
        k.S("s_mul_i32", T[1], self.sRt, 6144); k.S("s_add_u32", T[1], T[1], WB + 32768)
        k.S("s_lshl_b32", T[2], self.sRt, 13); k.S("s_add_u32", T[3], T[2], WB)
        k.S("s_cmp_eq_u32", self.sGrp, 0)
        k.S("s_cselect_b32", self.sMp[0], T[1], T[3])
        k.S("s_lshl_b32", T[1], self.sRt, 14); k.S("s_add_u32", T[2], T[2], W0R)
        k.S("s_cmp_eq_u32", self.sGrp, 0)
        k.S("s_cselect_b32", self.sMp[1], T[1], T[2])

    def x_reads(self, p):
        k = self.k
        off = XR + (p % 4) * 16384
        for t in range(2): k.ds_read("ds_read_b128", self.xt[4 * t:4 * t + 4], self.vXT[t], off)
        for sp in range(4): k.ds_read("ds_read_b128", a(16 * p + 4 * sp, 4), self.vXR[sp], off)
    def dots(self):
        k = self.k
        for i in range(8):
            k.V("v_dot2c_f32_bf16", self.sq, self.xt[i], self.xt[i])
            k.V("v_dot2c_f32_bf16", self.sum, self.sOnes, self.xt[i])
    def run_slots(self, slots, pre_read, pre_mfma, post_mfma, fill, dq, first_ring=0, tail_reads=None):
        k, LA = self.k, self.c['LA']
        NF = 6
        def frag(n): return a(112 + 4 * ((n + first_ring) % NF), 4)
        def read(n):
            if n in pre_read: pre_read[n]()
            sl = slots[n]
            k.ds_read("ds_read_b64_tr_b16", frag(n)[0:2], sl['addr'], sl['off'])
            k.ds_read("ds_read_b64_tr_b16", frag(n)[2:4], sl['addr'], sl['off'] + sl['second'])
        for n in range(min(LA, len(slots))): read(n)
        for n, sl in enumerate(slots):
            if n in pre_mfma: pre_mfma[n]()
            x = a(4 * sl['xi'], 4)
            C = 0 if sl['first'] else sl['acc']
            if n % 2 == 0 and n + 1 < len(slots): k.wait_regs(frag(n), frag(n + 1), x)
            if sl['wfirst']: k.mfma(True, sl['acc'], frag(n), x, C)
            else: k.mfma(True, sl['acc'], x, frag(n), C)
            if sl['cs'] is not None: k.mfma(False, sl['cs'], self.IND, frag(n), 0 if sl['csfirst'] else sl['cs'])
            if n + LA < len(slots): read(n + LA)
            if n in post_mfma: post_mfma[n]()
            while dq and dq[0][0] <= n: dq.pop(0)[1]()
            fill.run(sl.get('bud', self.c['bud']))
    def bar_wait(self, *toks, lg=False):
        def f():
            self.k.wait_tok(*toks)
            if lg: self.k.wait_lg_all()
            self.k.barrier()
        return f
    def stats_part1(self):
        k, T, tmp = self.k, self.sT, self.tmp
        it = []
        def a0():
            k.S("s_lshl_b32", T[3], self.sWv, 9); k.S("s_add_u32", T[3], T[3], STA)
            k.V("v_lshl_add_u32", tmp[4], self.lane, 3, T[3])
        it.append((12, a0))
        def a1():
            k.V("v_mov_b32", self.sp[0], self.sum); k.V("v_mov_b32", self.sp[1], self.sq)
        it.append((8, a1))
        it.append((4, lambda: k.ds_write("ds_write_b64", tmp[4], self.sp, 0, tok='st')))
        it.append((4, lambda: k.V("v_xor_b32", tmp[4], 2048, tmp[4])))
        return it
    def stats_part2(self):
        k, T, tmp = self.k, self.sT, self.tmp
        it = []
        it.append((4, lambda: k.ds_read("ds_read_b64", self.sp, tmp[4], 0)))
        it.append((4, lambda: k.V("v_add_f32", self.sum, self.sum, self.sp[0])))
        it.append((4, lambda: k.V("v_add_f32", self.sq, self.sq, self.sp[1])))
        it.append((8, lambda: (k.V("v_mov_b32", self.sp[0], self.sum), k.V("v_mov_b32", self.sp[1], self.sq))))
        it.append((8, lambda: (k.V("v_permlane32_swap_b32", self.sum, self.sp[0]), k.V("v_permlane32_swap_b32", self.sq, self.sp[1]))))
        it.append((8, lambda: (k.V("v_add_f32", self.sum, self.sum, self.sp[0]), k.V("v_add_f32", self.sq, self.sq, self.sp[1]))))
        mean, var = self.sum, self.sq
        it.append((8, lambda: (k.V("v_mul_f32", mean, -1.0 / 448, mean), k.V("v_mul_f32", var, 1.0 / 448, var))))
        it.append((4, lambda: k.Vneg("v_fma_f32", var, mean, mean, var, (True, False, False))))
        it.append((8, lambda: (k.V("v_max_f32", var, 0, var), k.V("v_add_f32", var, 1e-5, var))))
        it.append((8, lambda: k.V("v_sqrt_f32", self.irs, var)))
        it.append((4, lambda: k.V("v_cvt_pk_bf16_f32", self.sp[0], mean, mean)))
        it.append((8, lambda: k.V("v_rcp_f32", self.cc, self.irs)))
        it.append((4, lambda: k.V("v_and_b32", self.sp[1], 0xffff0000, self.sp[0])))
        it.append((4, lambda: k.V("v_sub_f32", self.sp[1], mean, self.sp[1])))
        it.append((4, lambda: k.V("v_mul_f32", self.cc, self.ccmul, self.cc)))
        it.append((4, lambda: k.V("v_cvt_pk_bf16_f32", self.sp[1], self.sp[1], self.sp[1])))
        for i in range(4):
            it.append((4, lambda i=i: k.V("v_cndmask_b32_e64", self.mneg[i], self.sp[0], self.sp[1], self.sHi)))
        return it
    def cs_pack(self, cs, idx, dst=None):
        k = self.k
        it = []
        it.append((4, lambda: k.V("v_cvt_pk_bf16_f32", cs[1], cs[0], cs[0])))
        it.append((4, lambda: k.V("v_and_b32", cs[1], 0xffff0000, cs[1])))
        it.append((4, lambda: k.V("v_sub_f32", cs[1], cs[0], cs[1])))
        if dst is None:
            it.append((4, lambda: k.V("v_cvt_pk_bf16_f32", cs[1], cs[0], cs[1])))
            it.append((4, lambda: k.ds_write("ds_write_b32", self.vCSW, cs[1], idx * 1024, tok='cs')))
        else:
            it.append((4, lambda: k.V("v_cvt_pk_bf16_f32", dst[0], cs[0], cs[1])))
            it.append((12, lambda: [k.V("v_mov_b32", dst[i], 0) for i in (1, 2, 3)]))
        return it
    def cs_apply(self, cs, idx, acc, wfirst, read=True):
        k = self.k
        it = []
        if read: it.append((4, lambda: k.ds_read("ds_read_b128", cs, self.vCSR, idx * 1024)))
        it.append((8, (lambda: k.mfma(True, acc, cs, self.mneg, acc)) if wfirst else (lambda: k.mfma(True, acc, self.mneg, cs, acc))))
        return it
    def epi_silu(self, acc, sbyte, tok):
        k, T = self.k, self.sT
        it = []; t = self.et; O = self.eo
        for g4 in range(4):
            A = [acc[4 * g4 + i] for i in range(4)]
            for i in range(4): it.append((4, lambda i=i, A=A: k.V("v_mul_f32", t[i], self.cc, A[i])))
            for i in range(4): it.append((8, lambda i=i: k.V("v_exp_f32", t[i], t[i])))
            for i in range(4): it.append((4, lambda i=i: k.V("v_fma_f32", t[i], t[i], self.irs, self.irs)))
            for i in range(4): it.append((8, lambda i=i: k.V("v_rcp_f32", t[i], t[i])))
            for i in range(4): it.append((4, lambda i=i, A=A: k.V("v_mul_f32", t[i], t[i], A[i])))
            for i in range(2): it.append((4, lambda i=i, g4=g4: k.V("v_cvt_pk_bf16_f32", O[2 * g4 + i], t[2 * i], t[2 * i + 1])))
            if g4 % 2 == 1:
                h = g4 // 2
                def st(h=h):
                    k.S("s_mov_b32", T[3], sbyte)
                    k.gstore(O[4 * h:4 * h + 4], self.vST, self.sWS, T[3], imm=1024 * h, mod=" sc1", tok=tok)
                it.append((8, st))
        return it
    def phi4(self, A, sc, dst2):
        k, t = self.k, self.et
        it = []
        for i in range(4): it.append((4, lambda i=i: k.V("v_mul_f32", A[i], sc[i], A[i])))
        for i in range(4): it.append((8, lambda i=i: k.V("v_exp_f32_e64", t[i], A[i], mod="clamp")))
        for i in range(4): it.append((4, lambda i=i: k.V("v_max_f32", A[i], 1e-6 * LOG2E, A[i])))
        for i in range(4): it.append((4, lambda i=i: k.V("v_fmac_f32", t[i], self.sLn2, A[i])))
        for i in range(2): it.append((4, lambda i=i: k.V("v_cvt_pk_bf16_f32", dst2[i], t[2 * i], t[2 * i + 1])))
        return it

    QOFF = [49152, 57344, 0, 8192, 16384, 24576, 32768]
    def flag_addr(self, base, sline, shift, sidx):
        k, T, tmp = self.k, self.sT, self.tmp
        k.S("s_lshl_b32", T[1], sline, shift); k.S("s_lshl_b32", T[2], sidx, 3); k.S("s_add_u32", T[1], T[1], T[2]); k.S("s_add_u32", T[1], T[1], base)
        k.V("v_mov_b32", tmp[4], OOB); k.V("v_mov_b32", tmp[5], T[1])
        k.V("v_cmp_eq_u32", VCC, 0, self.lane); k.V("v_cndmask_b32", self.vFA, tmp[4], tmp[5])

    def role_h(self):
        k, T, tmp, c = self.k, self.sT, self.tmp, self.c
        k.label("L_roleH")
        self.ccmul = -LOG2E
        col = self.sCol
        k.S("s_and_b32", T[1], self.sIdx, 1); k.S("s_mul_i32", T[2], self.sIdx, 448)
        k.S("s_lshl_b32", T[3], T[1], 6); k.S("s_add_u32", col[0], T[2], T[3])
        for f in (self.job_x(0), self.job_w('w0', 0, col[0], W0R), self.job_x(1), self.job_w('w0', 1, col[0], W0R + 8192)): f()
        k.S("s_add_u32", col[1], col[0], 128); k.S("s_add_u32", col[2], col[0], 256)
        k.S("s_xor_b32", T[1], T[1], 1); k.S("s_mul_i32", T[1], T[1], 384); k.S("s_add_u32", col[3], T[2], T[1])
        self.prologue2()
        self.stamp('start')
        acc = self.blk[0:2]; cs = self.cs; vWH = self.vWH
        for _, f in self.tr_addrs(self.vTX, 64, W0R): f()
        k.V("v_lshrrev_b32", tmp[4], 2, self.lane); k.S("s_lshl_b32", T[1], self.sRt, 4); k.V("v_add_u32", tmp[4], T[1], tmp[4])
        k.V("v_and_b32", tmp[5], 3, self.lane); k.V("v_lshlrev_b32", tmp[5], 4, tmp[5])
        k.S("s_movk_i32", T[1], 3584); k.V("v_mad_u32_u24", vWH, tmp[4], T[1], tmp[5])
        k.S("s_lshl_b32", T[1], self.sI, 2); k.S("s_add_u32", T[1], T[1], self.sRt)
        k.S("s_mul_i32", T[2], T[1], 112 * 1024); k.S("s_mul_i32", T[3], self.sIdx, 14 * 1024); k.S("s_add_u32", T[2], T[2], T[3])
        k.S("s_lshl_b32", T[3], self.sGrp, 11); k.S("s_add_u32", T[2], T[2], T[3]); k.S("s_add_u32", T[2], T[2], HB)
        k.V("v_lshl_add_u32", self.vST, self.lane, 4, T[2])
        k.S("s_mov_b32", T[0], T[1]); k.S("s_lshl_b32", T[3], self.sIdx, 1); k.S("s_add_u32", T[3], T[3], self.sGrp)
        self.flag_addr(FLH, T[0], 7, T[3])
        self.p2_bases()
        for _, f in self.tr_addrs(self.vTY, 64, WB): f()

        def job_h(m):
            def f():
                k.S("s_cmp_eq_u32", self.sGrp, 0)
                k.S("s_cselect_b32", T[0], self.sAs[2 * m], self.sAs[min(2 * m + 1, 6)])
                k.S("s_mul_i32", T[0], T[0], self.sRS64); k.S("s_add_u32", T[0], T[0], col[3])
                k.S("s_add_u32", M0, self.sMw, W0R + ((3 + m) % 4) * 8192) if m < 3 else (
                    k.S("s_lshl_b32", T[1], self.sRt, 10), k.S("s_add_u32", M0, T[1], W0R + 2 * 8192))
                k.dma(vWH, self.sW, T[0], 0, ('wh', m))
            return f
        slots = []
        for ps in range(3):
            for n in range(28):
                p, sp = divmod(n, 4)
                off = [(p % 4) * 8192, p * 8192, self.QOFF[p]][ps]
                slots.append(dict(acc=acc[ps % 2], wfirst=True, addr=(self.vTY if ps == 1 else self.vTX)[sp], off=off, second=512, xi=n,
                                  cs=cs[ps % 2] if sp == 0 else None, csfirst=p == 0, first=n == 0))
        fill = Fill(); dq = []
        pre_read, pre_mfma, post = {}, {}, {}
        for p in range(7):
            def br(p=p): self.bar_wait(('x', p), ('w0', p))(); self.stamp(f'B{p}'); self.x_reads(p)
            pre_read[4 * p] = br
            pre_mfma[4 * p] = self.dots
        for p in range(5):
            dq.append((4 * p, self.job_x(p + 2))); dq.append((4 * p + 2, self.job_w('w0', p + 2, col[0], W0R + ((p + 2) % 4) * 8192)))
        for p in range(7): dq.append((20 + p, self.job_w('w1', p, col[1], WB + p * 8192)))
        for p in range(7): dq.append((31 + 3 * p, self.job_w('w2', p, col[2], XR + self.QOFF[p])))
        for m in range(4): dq.append((50 + 2 * m, job_h(m)))
        for n in range(3): dq.append((62 + 4 * n, self.job_p2_shared(n)))
        def end1():
            self.stamp('p1end')
            fill.extend(self.stats_part1()); fill.extend(self.cs_pack(cs[0], 0))
        post[27] = end1
        pre_read[28] = self.bar_wait(('w1', 0), ('w1', 1))
        def b2():
            fill.drain(); self.bar_wait(('w1', 2), ('w1', 3), ('w1', 4), lg=True)()
            fill.extend(self.stats_part2()); fill.extend(self.cs_apply(cs[0], 0, acc[0], True))
            fill.extend(self.tr_addrs(self.vTX, 64, XR))
            fill.extend(self.epi_silu(acc[0], 0, ('h', 0)))
        pre_read[34] = b2
        pre_read[48] = self.bar_wait(('w1', 5), ('w1', 6))
        def end2():
            fill.drain(); self.stamp('p2end'); fill.extend(self.cs_pack(cs[1], 1))
        post[55] = end2
        pre_read[56] = self.bar_wait(*[('w2', p) for p in range(4)])
        def b3():
            fill.drain(); self.bar_wait(('w2', 4), ('w2', 5), ('w2', 6), lg=True)()
            fill.extend(self.cs_apply(cs[1], 1, acc[1], True)); fill.extend(self.epi_silu(acc[1], 4096, ('h', 1)))
        pre_read[62] = b3
        post[72] = lambda: self.flag_store(1, [('h', 0)])
        self.run_slots(slots, pre_read, pre_mfma, post, fill, dq)
        fill.drain(); self.stamp('p3end')
        for _, f in self.cs_pack(cs[0], 2): f()
        self.bar_wait(*[('wh', m) for m in range(4)], lg=True)()
        k.S("s_cmp_eq_u32", self.sGrp, 1)
        k.branch("s_cbranch_scc1", "L_hB")
        st = self.save()
        for _, f in self.cs_apply(cs[0], 2, acc[0], True): f()
        epi = self.epi_silu(acc[0], 8192, ('fin',))
        self.p2a_preamble(epi, mid=lambda: self.flag_store(2, [('h', 1)]))
        k.S("s_add_u32", T[4], self.sTag[0], 3); k.V("v_mov_b32", self.vFV[0], T[4])
        self.stamp('tail')
        self.joinA.append(self.exit_state()); k.branch("s_branch", "L_p2a")
        self.restore(st)
        k.label("L_hB")
        vTH = self.vTY
        k.V("v_lshlrev_b32", tmp[6], 6, self.vRowp); k.V("v_and_b32", tmp[5], 63, self.vColb); k.V("v_add_u32", tmp[6], tmp[6], tmp[5])
        for sp in range(4):
            k.S("s_add_u32", T[3], self.sRt, sp); k.S("s_and_b32", T[3], T[3], 3); k.S("s_lshl_b32", T[3], T[3], 10)
            k.S("s_add_u32", T[3], T[3], W0R); k.V("v_add_u32", vTH[sp], T[3], tmp[6])
        hoff = [3 * 8192, 3 * 8192 + 4096, 0, 4096, 8192, 8192 + 4096, 2 * 8192]
        slots = [dict(acc=acc[1], wfirst=True, addr=vTH[n % 4], off=hoff[n // 4], second=256, xi=n, cs=cs[1], csfirst=n == 0, first=n == 0) for n in range(28)]
        fill = Fill()
        fill.extend(self.cs_apply(cs[0], 2, acc[0], True)); fill.extend(self.epi_silu(acc[0], 8192, ('h', 2)))
        self.run_slots(slots, {}, {}, {10: lambda: self.flag_store(2, [('h', 1)])}, fill, [(4, self.job_p2_b(3))])
        fill.drain(); self.stamp('p4end')
        for _, f in self.cs_pack(cs[1], 0, dst=cs[0]): f()
        for _, f in self.cs_apply(cs[0], 0, acc[1], True, read=False): f()
        epi = self.epi_silu(acc[1], 10240, ('fin',))
        half = len(epi) // 2
        for _, f in epi[:half - 1]: f()
        self.flag_store(3, [('h', 2)])
        for _, f in epi[half - 1:]: f()
        k.S("s_add_u32", T[4], self.sTag[0], 4); k.V("v_mov_b32", self.vFV[0], T[4])
        self.stamp('tail')
        self.joinB.append(self.exit_state()); k.branch("s_branch", "L_p2b")

    def save(self):
        import copy
        k = self.k
        return (copy.deepcopy(k.vm), copy.deepcopy(k.lg), list(k.hist), k.pos)
    def restore(self, st):
        k = self.k
        k.vm, k.lg, k.hist, k.pos = [dict(e) for e in st[0]], [dict(e) for e in st[1]], list(st[2]), st[3]
    def exit_state(self):
        self.k.wait_lg_all()
        self.k.flush_hazards()
        return [dict(e) for e in self.k.vm]
    def merge(self, states):
        k = self.k
        young = {}
        for st in states:
            for i, e in enumerate(st):
                y = len(st) - 1 - i
                keys = [('t', e['tok'])] + [('r', r) for r in e['regs']]
                for key in keys: young[key] = min(young.get(key, 99), y)
        L = max(young.values()) + 1 if young else 0
        q = []
        for key, y in young.items(): q.append((L - 1 - y, key))
        k.vm = []
        for pos in range(L):
            es = [key for p_, key in q if p_ == pos]
            k.vm.append(dict(regs={x[1] for x in es if x[0] == 'r'}, tok=None, toks={x[1] for x in es if x[0] == 't'}))
        k.lg = []; k.hist = []

    def role_qkv(self):
        k, T, tmp, c = self.k, self.sT, self.tmp, self.c
        k.label("L_roleQ")
        self.ccmul = LOG2E
        col = self.sCol
        k.S("s_mul_i32", col[2], self.sIdx, 112); k.S("s_add_u32", col[0], col[2], 896); k.S("s_add_u32", col[1], col[2], 1792)
        for p in range(2):
            for f in (self.job_x(p), self.job_w('k', p, col[0], KVR + p * 16384), self.job_w('v', p, col[1], KVR + p * 16384 + 8192)): f()
        self.prologue2()
        self.stamp('start')
        accQ, accK, accV = self.blk
        csK, csV, csQ = self.cs
        R2 = [v(44), v(45), v(46), v(47), v(48), v(49), v(50), v(51), v(52), v(53), v(54), v(55), v(112), v(113), v(114), v(115)]
        R2q = [v(44, 4), v(48, 4), v(52, 4), v(112, 4)]
        for _, f in self.tr_addrs(self.vTX, 56, KVR): f()
        for _, f in self.tr_addrs(self.vTY, 56, XR): f()
        head = col[3]
        k.S("s_lshl_b32", head, self.sIdx, 1); k.S("s_add_u32", head, head, self.sGrp)
        k.S("s_lshl_b32", T[1], head, 4); k.S("s_add_u32", T[1], T[1], self.sI); k.S("s_lshl_b32", T[1], T[1], 2); k.S("s_add_u32", T[1], T[1], self.sRt)
        k.S("s_lshl_b32", T[1], T[1], 10); k.S("s_add_u32", T[1], T[1], PB)
        k.V("v_lshl_add_u32", self.vST, self.lane, 4, T[1])
        k.S("s_lshl_b32", T[0], head, 1); k.S("s_lshr_b32", T[3], self.sRt, 1); k.S("s_add_u32", T[0], T[0], T[3])
        k.S("s_lshl_b32", T[3], self.sI, 1); k.S("s_and_b32", T[4], self.sRt, 1); k.S("s_add_u32", T[3], T[3], T[4])
        self.flag_addr(FLP, T[0], 8, T[3])
        self.p2_bases()
        slots = []
        for n in range(56):
            p, r = divmod(n, 8); sp, sub = divmod(r, 2)
            slots.append(dict(acc=(accK, accV)[sub], wfirst=False, addr=self.vTX[sp], off=(p % 4) * 16384 + 8192 * sub, second=512, xi=4 * p + sp,
                              cs=(csK, csV)[sub] if sp == 0 else None, csfirst=p == 0, first=n < 2))
        for n in range(28):
            p, sp = divmod(n, 4)
            slots.append(dict(acc=accQ, wfirst=True, addr=self.vTY[sp], off=self.QOFF[p], second=512, xi=n,
                              cs=csQ if sp == 0 else None, csfirst=p == 0, first=n == 0, bud=30))
        fill = Fill(); dq = []
        pre_read, pre_mfma, post = {}, {}, {}
        for p in range(7):
            def br(p=p): self.bar_wait(('x', p), ('k', p), ('v', p))(); self.stamp(f'B{p}'); self.x_reads(p)
            pre_read[8 * p] = br
            pre_mfma[8 * p] = self.dots
        for p in range(5):
            o = KVR + ((p + 2) % 4) * 16384
            dq += [(8 * p, self.job_x(p + 2)), (8 * p + 3, self.job_w('k', p + 2, col[0], o)), (8 * p + 5, self.job_w('v', p + 2, col[1], o + 8192))]
        for p, n in enumerate((40, 42, 44, 46, 49, 52, 54)): dq.append((n, self.job_w('q', p, col[2], XR + self.QOFF[p])))
        for n in range(3): dq.append((64 + 4 * n, self.job_p2_shared(n)))
        pk = self.xt; pv = accV[0:8]
        def end1():
            self.stamp('p1end')
            fill.extend(self.stats_part1()); fill.extend(self.cs_pack(csK, 0)); fill.extend(self.cs_pack(csV, 1))
        post[55] = end1
        pre_read[56] = self.bar_wait(('q', 0), ('q', 1))
        def b2():
            fill.drain(); self.bar_wait(('q', 2), ('q', 3), lg=True)()
            fill.extend(self.stats_part2())
            def r2w():
                k.S("s_lshl_b32", T[3], self.sWv, 7); k.S("s_add_u32", T[3], T[3], R2A)
                k.V("v_and_b32", tmp[4], 31, self.lane); k.V("v_lshl_add_u32", tmp[4], tmp[4], 2, T[3])
                k.ds_write("ds_write_b32", tmp[4], self.cc, 0)
                k.V("v_lshrrev_b32", tmp[4], 5, self.lane); k.V("v_lshl_add_u32", tmp[4], tmp[4], 4, T[3])
                for q in range(4): k.ds_read("ds_read_b128", R2q[q], tmp[4], 32 * q)
            fill.add(40, r2w)
            fill.extend(self.cs_apply(csK, 0, accK, False)); fill.extend(self.cs_apply(self.et, 1, accV, False))
            for g4 in range(4):
                fill.extend(self.phi4([accK[4 * g4 + i] for i in range(4)], [R2[4 * g4 + i] for i in range(4)], pk[2 * g4:2 * g4 + 2]))
            fill.add(4, lambda: k.V("v_mov_b32", self.et[0], ONES))
            for i in range(16): fill.add(4, lambda i=i: k.V("v_mul_f32", accV[i], R2[i], accV[i]))
            for i in range(8): fill.add(4, lambda i=i: k.V("v_cvt_pk_bf16_f32", pv[i], accV[2 * i], accV[2 * i + 1]))
            for i in range(8): fill.add(4, lambda i=i: k.V("v_cndmask_b32_e64", pv[i], pv[i], self.et[0], self.sPad))
            fill.add(8, lambda: k.mfma(True, accK, pk[0:4], pv[0:4], 0))
            fill.add(8, lambda: k.mfma(True, accK, pk[4:8], pv[4:8], accK))
        pre_read[62] = b2
        pre_read[72] = self.bar_wait(('q', 4), ('q', 5), ('q', 6))
        self.run_slots(slots, pre_read, pre_mfma, post, fill, dq)
        fill.drain(); self.stamp('p2end')
        for _, f in self.cs_pack(csQ, 2): f()
        k.S("s_lshl_b32", T[3], self.sGrp, 14); k.S("s_lshl_b32", T[4], self.sRt, 10); k.S("s_add_u32", T[4], T[4], T[3]); k.S("s_add_u32", T[4], T[4], EXA)
        k.V("v_lshl_add_u32", tmp[4], self.lane, 4, T[4])
        for d in range(4): k.ds_write("ds_write_b128", tmp[4], accK[4 * d:4 * d + 4], d * 4096)
        k.S("s_lshl_b32", T[4], self.sRt, 12); k.S("s_add_u32", T[4], T[4], T[3]); k.S("s_add_u32", T[4], T[4], EXA)
        k.V("v_lshl_add_u32", tmp[5], self.lane, 4, T[4])
        self.bar_wait(lg=True)()
        for sw in range(4): k.ds_read("ds_read_b128", accV[4 * sw:4 * sw + 4], tmp[5], sw * 1024)
        for _, f in self.cs_apply(csQ, 2, accQ, True): f()
        for i in range(4):
            k.V("v_add_f32", accV[i], accV[i], accV[4 + i]); k.V("v_add_f32", accV[8 + i], accV[8 + i], accV[12 + i])
        for i in range(4): k.V("v_add_f32", accV[i], accV[i], accV[8 + i])
        k.gstore(accV[0:4], self.vST, self.sWS, 0, mod=" sc1", tok=('pst',))
        self.stamp('p3end')
        k.S("s_lshl_b32", T[1], self.sI, 2); k.S("s_add_u32", T[1], T[1], self.sRt)
        k.S("s_lshl_b32", T[2], T[1], 4); k.S("s_add_u32", T[2], T[2], head); k.S("s_lshl_b32", T[2], T[2], 11); k.S("s_add_u32", T[2], T[2], QB)
        vSQ = self.vWH
        k.V("v_lshl_add_u32", vSQ, self.lane, 4, T[2])
        k.S("s_mov_b32", self.sCol[0], T[1])
        def qepi():
            it = []
            for g4 in range(4):
                it += self.phi4([accQ[4 * g4 + i] for i in range(4)], [self.cc] * 4, pk[2 * g4:2 * g4 + 2])
                if g4 % 2 == 1:
                    h = g4 // 2
                    it.append((4, lambda h=h: k.gstore(pk[4 * h:4 * h + 4], vSQ, self.sWS, 0, imm=1024 * h, mod=" sc1", tok=('fin',))))
            return it
        def pflag_then_qaddr():
            self.flag_store(1, [('pst',)])
            self.flag_addr(FLQ, self.sCol[0], 7, head)
            k.S("s_add_u32", T[4], self.sTag[0], 1); k.V("v_mov_b32", self.vFV[0], T[4])
        k.S("s_cmp_eq_u32", self.sIsRed, 1)
        k.branch("s_cbranch_scc1", "L_red")
        k.S("s_cmp_eq_u32", self.sGrp, 1)
        k.branch("s_cbranch_scc1", "L_qB")
        st = self.save()
        self.p2a_preamble(qepi(), mid=None)
        pflag_then_qaddr()
        self.stamp('tail')
        self.joinA.append(self.exit_state()); k.branch("s_branch", "L_p2a")
        self.restore(st)
        k.label("L_qB")
        for _, f in qepi(): f()
        self.job_p2_b(3)()
        pflag_then_qaddr()
        self.stamp('tail')
        self.joinB.append(self.exit_state()); k.branch("s_branch", "L_p2b")
        self.restore(st)
        k.label("L_red")
        for _, f in qepi(): f()
        pflag_then_qaddr()
        self.flag_store(1, [('fin',)])
        self.stamp('tail')
        self.reducer()

    def reducer(self):
        k, T, tmp, lane = self.k, self.sT, self.tmp, self.lane
        vP, vPA, vD = v(44, 2), v(46), v(47)
        k.S("s_lshl_b32", T[1], self.sRho, 8); k.S("s_add_u32", T[1], T[1], FLP)
        k.V("v_lshl_add_u32", tmp[4], lane, 3, T[1]); k.V("v_mov_b32", tmp[5], OOB)
        k.V("v_cmp_gt_u32", VCC, 32, lane); k.V("v_cndmask_b32", vPA, tmp[5], tmp[4])
        self.poll_issue(vP, vPA)
        k.S("s_lshr_b32", T[1], self.sRho, 1); k.S("s_lshl_b32", T[1], T[1], 16); k.S("s_and_b32", T[2], self.sRho, 1); k.S("s_lshl_b32", T[2], T[2], 11)
        k.S("s_add_u32", T[1], T[1], T[2]); k.S("s_lshl_b32", T[2], self.sWv, 7); k.S("s_add_u32", T[1], T[1], T[2]); k.S("s_add_u32", T[1], T[1], PB)
        k.V("v_lshrrev_b32", tmp[4], 3, lane); k.V("v_and_b32", tmp[5], 7, lane)
        k.V("v_lshlrev_b32", tmp[4], 12, tmp[4]); k.V("v_lshl_add_u32", tmp[4], tmp[5], 4, tmp[4]); k.V("v_add_u32", tmp[4], T[1], tmp[4])
        self.poll_check(vP, vPA, vD, 1, (-1, 0))
        self.stamp('c1')
        A, B = v(60, 8), v(68, 8)
        k.S("s_mov_b32", T[2], 32768)
        for i2, dst in enumerate((A, B)):
            for qq in range(2): k.gload(dst[4 * qq:4 * qq + 4], tmp[4], self.sWS, T[2] if i2 else 0, imm=1024 * qq, mod=" sc1")
        k.S("s_and_b32", T[3], self.sWv, 3); k.S("s_cmp_eq_u32", T[3], 3); k.S("s_cselect_b32", T[3], 4, 8)
        k.V("v_cmp_gt_u32", VCC, T[3], tmp[5]); k.V("v_mov_b32", tmp[6], 1.0); k.V("v_mov_b32", tmp[7], self.sLn2)
        k.V("v_cndmask_b32", tmp[6], tmp[6], tmp[7])
        k.S("s_and_b32", T[3], self.sRho, self.sGrp); k.S("s_and_b32", T[3], T[3], 1); k.S("s_cmp_eq_u32", T[3], 1); k.S("s_cselect_b32", T[3], 0, 1.0)
        k.V("v_mul_f32", tmp[7], T[3], tmp[6])
        k.S("s_lshl_b32", T[1], self.sRho, 10); k.S("s_lshl_b32", T[2], self.sWv, 7); k.S("s_add_u32", T[1], T[1], T[2]); k.S("s_add_u32", T[1], T[1], KVB)
        k.V("v_lshl_add_u32", tmp[4], lane, 4, T[1]); k.V("v_mov_b32", tmp[5], OOB)
        k.V("v_cmp_gt_u32", VCC, 8, lane); k.V("v_cndmask_b32", tmp[4], tmp[5], tmp[4])
        for i in range(8): k.V("v_add_f32", A[i], A[i], B[i])
        for i in range(8): k.emit(f"v_add_f32_dpp {B[i]}, {A[i]}, {A[i]} row_ror:8 row_mask:0xf bank_mask:0xf", 'perm', rd=[A[i]], wr=[B[i]])
        for op in ("v_permlane16_swap_b32", "v_permlane32_swap_b32"):
            for i in range(8): k.V("v_mov_b32", A[i], B[i])
            for i in range(8): k.V(op, A[i], B[i])
            for i in range(8): k.V("v_add_f32", B[i], A[i], B[i])
        for i in range(8): k.V("v_mul_f32", B[i], tmp[6] if i < 4 else tmp[7], B[i])
        for i in range(4): k.V("v_cvt_pk_bf16_f32", A[i], B[2 * i], B[2 * i + 1])
        k.gstore(A[0:4], tmp[4], self.sWS, 0, mod=" sc1", tok=('kv',))
        k.wait_tok(('kv',)); k.barrier()
        k.S("s_cmp_eq_u32", self.sWv, 0)
        k.branch("s_cbranch_scc0", "L_fin")
        k.S("s_lshr_b32", T[0], self.sRho, 3); k.S("s_and_b32", T[3], self.sRho, 7)
        self.flag_addr(FLK, T[0], 7, T[3])
        self.flag_store(1, [])
        self.stamp('c2')
        k.S("s_cmp_eq_u32", self.sRho, 0)
        k.branch("s_cbranch_scc0", "L_fin")
        k.V("v_lshrrev_b32", tmp[4], 3, lane); k.V("v_lshlrev_b32", tmp[4], 7, tmp[4]); k.V("v_and_b32", tmp[5], 7, lane)
        k.V("v_lshl_add_u32", tmp[4], tmp[5], 3, tmp[4]); k.V("v_add_u32", vPA, FLK, tmp[4])
        self.poll_issue(vP, vPA); self.poll_check(vP, vPA, vD, 1, (-1, 0))
        k.V("v_lshrrev_b32", tmp[4], 2, lane); k.V("v_lshlrev_b32", tmp[4], 9, tmp[4]); k.V("v_and_b32", tmp[5], 3, lane)
        k.V("v_lshl_add_u32", tmp[4], tmp[5], 4, tmp[4])
        for h in range(2):
            k.V("v_add_u32", vPA, FLH + 64 * h, tmp[4])
            self.poll_issue(vP, vPA); self.poll_check(vP, vPA, vD, 1, (-1, -1))
        k.V("v_mov_b32", tmp[4], 0); k.V("v_mov_b32", tmp[5], OOB); k.V("v_cmp_eq_u32", VCC, 0, lane); k.V("v_cndmask_b32", tmp[4], tmp[5], tmp[4])
        k.V("v_mov_b32", self.vFV[0], self.sTag[0])
        k.gstore(self.vFV, tmp[4], self.sWS, 0, imm=EPOCH, mod=" sc1")
        k.branch("s_branch", "L_fin")

    def t2_base(self, dst0, dst1, base):
        k, tmp = self.k, self.tmp
        return [(4, lambda: k.V("v_bfe_u32", tmp[4], self.lane, 2, 2)),
                (4, lambda: k.V("v_lshrrev_b32", tmp[5], 5, self.lane)),
                (4, lambda: k.V("v_lshl_add_u32", tmp[4], tmp[5], 2, tmp[4])),
                (4, lambda: k.V("v_lshl_add_u32", tmp[4], tmp[4], 7, base)),
                (4, lambda: k.V("v_add_u32", dst0, tmp[4], self.vColb)),
                (4, lambda: k.V("v_xor_b32", tmp[5], 64, self.vColb)),
                (4, lambda: k.V("v_add_u32", dst1, tmp[4], tmp[5]))]
    def job_p2_a(self, n):
        k = self.k
        def f():
            if n % 2 == 0: self.unit_w(n // 2)
            src = self.sUW[2] if n == 1 else self.sUW[0]
            r, off = self.a_pos(n)
            k.S("s_add_u32", M0, self.sMp[r], off)
            b = 2 * (n % 2)
            k.dma(self.vP2d[b], self.sP2, src, 0, ('p2', n)); k.dma(self.vP2d[b + 1], self.sP2, src, 1024, ('p2', n))
        return f
    def job_p2_b(self, n):
        k, T = self.k, self.sT
        def f():
            k.S("s_mul_i32", T[1], self.sRt, 112 * 896); k.S("s_add_u32", T[1], T[1], (n // 2) * 28 * 896)
            k.S("s_add_u32", M0, self.sMp[0 if n < 4 else 1], (n % 4) * 2048)
            b = 2 * (n % 2)
            k.dma(self.vP2d[b], self.sP2, T[1], 0, ('p2', n)); k.dma(self.vP2d[b + 1], self.sP2, T[1], 1024, ('p2', n))
        return f
    def act(self, n, rt): return a(8 * (n % 14) + 4 * rt, 4)
    def act_load(self, n):
        k = self.k
        if n % 2 == 0: self.unit_a(n // 2)
        for rt in range(2): k.gload(self.act(n, rt), self.vAct[rt], self.sWS, self.sUW[1], imm=1024 * (n % 2), mod=" sc1")
    def p2a_regs(self):
        self.vAct = [v(76), v(77)]; self.aP, self.aPA, self.aD = v(78, 2), v(80), v(81)
        self.vT2 = [v(82), v(83), v(84), v(85)]
    def p2a_preamble(self, epi, mid):
        k, T, tmp, lane = self.k, self.sT, self.tmp, self.lane
        self.p2a_regs()
        k.V("v_and_b32", tmp[4], 1, lane); k.V("v_lshlrev_b32", tmp[4], 7, tmp[4])
        k.V("v_bfe_u32", tmp[5], lane, 1, 1); k.V("v_lshl_add_u32", tmp[4], tmp[5], 4, tmp[4])
        k.V("v_bfe_u32", tmp[5], lane, 2, 1); k.V("v_lshl_add_u32", tmp[4], tmp[5], 3, tmp[4])
        k.S("s_lshl_b32", T[1], self.sI2, 8); k.S("s_lshl_b32", T[2], self.sRt, 5); k.S("s_add_u32", T[1], T[1], T[2]); k.S("s_add_u32", T[1], T[1], FLH)
        k.V("v_add_u32", tmp[4], T[1], tmp[4]); k.V("v_mov_b32", tmp[5], OOB)
        k.V("v_cmp_gt_u32", VCC, 8, lane); k.V("v_cndmask_b32", self.aPA, tmp[5], tmp[4])
        self.poll_issue(self.aP, self.aPA)
        k.S("s_mul_i32", T[1], self.sI2, 224 * 1024); k.S("s_mul_i32", T[2], self.sRt, 28 * 1024); k.S("s_add_u32", T[1], T[1], T[2]); k.S("s_add_u32", T[1], T[1], HB)
        k.V("v_lshl_add_u32", self.vAct[0], lane, 4, T[1]); k.V("v_add_u32", self.vAct[1], 112 * 1024, self.vAct[0])
        self.job_p2_a(3)()
        for _, f in self.t2_base(self.vT2[0], self.vT2[1], self.sMp[0]) + self.t2_base(self.vT2[2], self.vT2[3], self.sMp[1]): f()
        n1 = (len(epi) * 2) // 5
        for _, f in epi[:n1]: f()
        if mid: mid()
        self.stamp('preG0')
        self.poll_check(self.aP, self.aPA, self.aD, 1, 0xff)
        self.stamp('G0')
        rest = epi[n1:]
        step = max(1, len(rest) // 5)
        for n in range(4):
            self.act_load(n)
            for _, f in rest[n * step:(n + 1) * step]: f()
        for _, f in rest[4 * step:]: f()
        self.pre_acts = 4
    def final_write_addrs(self, regs, base):
        k, tmp = self.k, self.tmp
        k.V("v_and_b32", tmp[4], 31, self.lane); k.V("v_lshl_add_u32", tmp[4], tmp[4], 8, base)
        k.V("v_lshrrev_b32", tmp[5], 5, self.lane); k.V("v_and_b32", tmp[6], 7, self.lane); k.V("v_xor_b32", tmp[5], tmp[5], tmp[6])
        for q in range(4):
            k.V("v_xor_b32", tmp[6], 2 * q, tmp[5]); k.V("v_lshl_add_u32", regs[q], tmp[6], 4, tmp[4])
    def x_res_load(self):
        k, T, tmp = self.k, self.sT, self.tmp
        self.vXO, self.xres = v(4), v(8, 4)
        k.S("s_lshl_b32", T[1], self.sI2, 3); k.S("s_add_u32", T[1], T[1], self.sWv); k.S("s_mul_i32", T[1], T[1], 8 * 896)
        k.S("s_lshl_b32", T[2], self.sC, 7); k.S("s_add_u32", T[1], T[1], T[2])
        k.V("v_lshrrev_b32", tmp[4], 3, self.lane); k.V("v_and_b32", tmp[5], 7, self.lane); k.V("v_lshlrev_b32", tmp[5], 4, tmp[5])
        k.S("s_movk_i32", T[2], 896); k.V("v_mad_u32_u24", tmp[4], tmp[4], T[2], tmp[5]); k.V("v_add_u32", self.vXO, T[1], tmp[4])
        k.gload(self.xres, self.vXO, self.sX, 0)

    def phase2a(self):
        k, T, c = self.k, self.sT, self.c
        k.label("L_p2a")
        self.merge(self.joinA)
        self.p2a_regs()
        look, wl = c['look'], 9
        accF = [[v(28, 16), v(44, 16)], [v(60, 16), v(92, 16)]]
        def wf(n, ct): return a(112 + 4 * ((2 * n + ct) % 6), 4)
        def wread(n):
            k.wait_tok(('p2', n))
            r, off = self.a_pos(n)
            for ct in range(2):
                k.ds_read("ds_read_b64_tr_b16", wf(n, ct)[0:2], self.vT2[2 * r + ct], off)
                k.ds_read("ds_read_b64_tr_b16", wf(n, ct)[2:4], self.vT2[2 * r + ct], off + 1024)
        wread(0); wread(1)
        nw, na = 4, self.pre_acts
        checks = {8: (2, 0xff), 16: (3, 0xff), 24: (4, 0xf0)}
        for n in range(28):
            if n == 4: self.stamp('hook'); k.barrier(); self.stamp('J')
            k.wait_regs(wf(n, 0), wf(n, 1), self.act(n, 0), self.act(n, 1))
            i = 0
            for rt in range(2):
                for ct in range(2):
                    k.mfma(True, accF[ct][rt], wf(n, ct), self.act(n, rt), 0 if n == 0 else accF[ct][rt])
                    if i == 0 and n + 2 < 28: wread(n + 2)
                    if i == 1:
                        cnt = 0
                        while na < 28 and na <= n + look and cnt < 2:
                            if na in checks:
                                self.poll_check(self.aP, self.aPA, self.aD, *checks[na])
                                self.stamp(f'c{na // 8}')
                            self.act_load(na); na += 1; cnt += 1
                        if na + 2 in checks or (na + 3 in checks and False): self.poll_issue(self.aP, self.aPA)
                    if i == 3:
                        cnt = 0
                        while nw < 28 and nw <= n + wl and nw - 11 <= n and cnt < 2:
                            self.job_p2_a(nw)(); nw += 1; cnt += 1
                    i += 1
            if n == 2: self.flag_hook()
            if n == 22: self.x_res_load()
        self.stamp('mainend')
        W = [v(12 + 0), v(13), v(14), v(15)]
        W = [v(108), v(109), v(110), v(111)]
        self.final_write_addrs(W, self.sMp[1])
        for rt in range(2):
            for ct in range(2):
                for q in range(4): k.ds_write("ds_write_b128", W[q], accF[ct][rt][4 * q:4 * q + 4], 8192 * rt + 128 * ct)
        self.joinF.append(self.exit_state()); k.branch("s_branch", "L_final")
    def flag_hook(self):
        k = self.k
        k.wait_tok(('fin',))
        k.gstore(self.vFV, self.vFA, self.sWS, 0, mod=" sc1", tok=('flag',))

    def phase2b(self):
        k, T, tmp, lane, c = self.k, self.sT, self.tmp, self.lane, self.c
        k.label("L_p2b")
        self.merge(self.joinB)
        vPQ, vKV, vP, vPA, vD = [v(10), v(11)], v(15), v(16, 2), v(18), v(19)
        vT2 = [v(20), v(23), v(108), v(109)]
        rc, rc2, den = v(12), v(13), v(14)
        kv = lambda hh, s_: v(24 + 8 * hh + 4 * s_, 4)
        pq = lambda hh, rt, s_: a(64 + 16 * hh + 8 * rt + 4 * s_, 4)
        N = [v(56, 16), v(72, 16)]; O = [v(88, 8), v(96, 8)]
        accS = [[a(0, 16), a(16, 16)], [a(32, 16), a(48, 16)]]
        k.V("v_and_b32", tmp[4], 1, lane); k.V("v_lshlrev_b32", tmp[4], 7, tmp[4])
        k.V("v_bfe_u32", tmp[5], lane, 1, 2); k.V("v_lshl_add_u32", tmp[4], tmp[5], 3, tmp[4])
        k.S("s_lshl_b32", T[1], self.sI2, 8); k.S("s_lshl_b32", T[2], self.sRt, 5); k.S("s_add_u32", T[1], T[1], T[2]); k.S("s_add_u32", T[1], T[1], FLQ)
        k.V("v_add_u32", tmp[4], T[1], tmp[4])
        k.S("s_lshl_b32", T[1], self.sRt, 7); k.S("s_add_u32", T[1], T[1], FLK - 64)
        k.V("v_lshl_add_u32", tmp[5], lane, 3, T[1])
        k.V("v_cmp_gt_u32", VCC, 8, lane); k.V("v_cndmask_b32", tmp[4], tmp[5], tmp[4])
        k.V("v_mov_b32", tmp[5], OOB); k.V("v_cmp_gt_u32", VCC, 16, lane); k.V("v_cndmask_b32", vPA, tmp[5], tmp[4])
        k.S("s_lshl_b32", T[1], self.sI2, 16); k.S("s_lshl_b32", T[2], self.sRt, 13); k.S("s_add_u32", T[1], T[1], T[2]); k.S("s_add_u32", T[1], T[1], QB)
        k.V("v_lshl_add_u32", vPQ[0], lane, 4, T[1]); k.V("v_add_u32", vPQ[1], 32768, vPQ[0])
        k.S("s_add_u32", T[1], T[2], KVB); k.V("v_lshl_add_u32", vKV, lane, 4, T[1])
        self.flag_hook()
        self.stamp('hook')
        k.barrier()
        self.stamp('J')
        for n in range(4, 8): self.job_p2_b(n)()
        self.poll_issue(vP, vPA)
        self.poll_check(vP, vPA, vD, 1, 0xff)
        self.stamp('c1')
        k.S("s_movk_i32", T[0], 4096)
        for hh in range(4):
            for rt in range(2):
                for s_ in range(2):
                    k.gload(pq(hh, rt, s_), vPQ[rt], self.sWS, T[0] if hh >= 2 else 0, imm=2048 * (hh % 2) + 1024 * s_, mod=" sc1")
        self.poll_issue(vP, vPA)
        for _, f in self.t2_base(vT2[0], vT2[1], self.sMp[0]) + self.t2_base(vT2[2], vT2[3], self.sMp[1]): f()
        self.x_res_load()
        self.poll_check(vP, vPA, vD, 1, 0xff00)
        self.stamp('c2')
        k.S("s_movk_i32", T[0], 4096)
        for hh in range(4):
            for s_ in range(2):
                k.gload(kv(hh, s_), vKV, self.sWS, T[0] if hh >= 2 else 0, imm=2048 * (hh % 2) + 1024 * s_, mod=" sc1")
        Wf = [v(104, 4), v(112, 4), v(116, 4), v(4 + 0, 4)]
        Wf = [v(104, 4), v(112, 4), v(116, 4), v(16, 4)]
        def wread(hh, f):
            s_, ct = divmod(f, 2); n = 2 * hh + s_
            k.wait_tok(('p2', n))
            r = 0 if n < 4 else 1
            k.ds_read("ds_read_b64_tr_b16", Wf[f][0:2], vT2[2 * r + ct], (n % 4) * 2048)
            k.ds_read("ds_read_b64_tr_b16", Wf[f][2:4], vT2[2 * r + ct], (n % 4) * 2048 + 1024)
        def num(u):
            hh, rt = divmod(u, 2)
            k.mfma(True, N[u % 2], kv(hh, 0), pq(hh, rt, 0), 0)
            k.mfma(True, N[u % 2], kv(hh, 1), pq(hh, rt, 1), N[u % 2])
        def val(u):
            n_, o_ = N[u % 2], O[u % 2]
            it = [(4, lambda: k.V("v_mov_b32", den, n_[12])),
                  (4, lambda: k.V("v_permlane32_swap_b32", n_[12], den)),
                  (4, lambda: k.V("v_add_f32", den, 1e-6, den)),
                  (8, lambda: k.V("v_rcp_f32", rc, den)),
                  (4, lambda: k.V("v_cndmask_b32_e64", rc2, rc, 0, self.sHi))]
            for i in range(8):
                it.append((8, lambda i=i: [k.V("v_mul_f32", n_[j], rc if j < 12 else rc2, n_[j]) for j in (2 * i, 2 * i + 1)]))
                it.append((4, lambda i=i: k.V("v_cvt_pk_bf16_f32", o_[i], n_[2 * i], n_[2 * i + 1])))
            return it
        for f in range(4): wread(0, f)
        num(0); num(1)
        self.stamp('c3')
        for _, f in val(0): f()
        for u in range(8):
            hh, rt = divmod(u, 2)
            fill = Fill()
            if u + 1 < 8: fill.extend(val(u + 1))
            for f in range(4):
                s_, ct = divmod(f, 2)
                k.mfma(True, accS[ct][rt], Wf[f], O[u % 2][4 * s_:4 * s_ + 4], 0 if (hh == 0 and s_ == 0) else accS[ct][rt])
                if rt == 1 and hh < 3: wread(hh + 1, f)
                if f == 0 and u + 2 < 8: num(u + 2)
                fill.run(30)
            fill.drain()
        self.stamp('mainend')
        W = [v(24), v(25), v(26), v(27)]
        self.final_write_addrs(W, self.sMp[0])
        k.S("s_sub_u32", T[1], self.sMp[1], self.sMp[0])
        for rt in range(2):
            if rt == 1:
                for q in range(4): k.V("v_add_u32", W[q], T[1], W[q])
            for ct in range(2):
                for q in range(4): k.ds_write("ds_write_b128", W[q], accS[ct][rt][4 * q:4 * q + 4], 128 * ct)
        self.joinF.append(self.exit_state())

    def final(self):
        k, T, tmp, lane = self.k, self.sT, self.tmp, self.lane
        k.label("L_final")
        self.merge(self.joinF)
        vF, vS = [v(24), v(25)], [v(26), v(27)]
        k.V("v_lshrrev_b32", tmp[4], 3, lane); k.V("v_and_b32", tmp[5], 7, lane); k.V("v_lshlrev_b32", tmp[5], 1, tmp[5])
        k.V("v_xor_b32", tmp[5], tmp[5], tmp[4]); k.V("v_lshlrev_b32", tmp[4], 8, tmp[4])
        k.S("s_lshl_b32", T[1], self.sWv, 11); k.S("s_lshl_b32", T[2], self.sRt, 11)
        k.S("s_cmp_eq_u32", self.sGrp, 0); k.S("s_cselect_b32", T[3], WB, W0R); k.S("s_add_u32", T[2], T[2], T[3])
        for h in range(2):
            if h: k.V("v_xor_b32", tmp[5], 1, tmp[5])
            k.V("v_lshl_add_u32", tmp[6], tmp[5], 4, tmp[4])
            k.V("v_add_u32", vF[h], T[1], tmp[6]); k.V("v_add_u32", vS[h], T[2], tmp[6])
        k.barrier()
        self.stamp('Z')
        F = [v(28 + 8 * i, 8) for i in range(4)]; S = [v(60 + 8 * i, 8) for i in range(4)]
        for src in range(4):
            for h in range(2): k.ds_read("ds_read_b128", F[src][4 * h:4 * h + 4], vF[h], src * 16384)
        for src in range(4):
            for h in range(2): k.ds_read("ds_read_b128", S[src][4 * h:4 * h + 4], vS[h], src * 8192)
        def tree(X):
            for i in range(8): k.V("v_add_f32", X[0][i], X[0][i], X[1][i])
            for i in range(8): k.V("v_add_f32", X[2][i], X[2][i], X[3][i])
            for i in range(8): k.V("v_add_f32", X[0][i], X[0][i], X[2][i])
        tree(F)
        t = F[1]; xu = F[2]
        for i in range(8): k.V("v_mul_f32", t[i], -LOG2E, F[0][i])
        for i in range(8): k.V("v_exp_f32", t[i], t[i])
        for i in range(8): k.V("v_add_f32", t[i], 1.0, t[i])
        for i in range(8): k.V("v_rcp_f32", t[i], t[i])
        tree(S)
        for i in range(8): k.V("v_mul_f32", t[i], t[i], F[0][i])
        for i in range(4):
            k.V("v_lshlrev_b32", xu[2 * i], 16, self.xres[i]); k.V("v_and_b32", xu[2 * i + 1], 0xffff0000, self.xres[i])
        for i in range(8): k.V("v_fmac_f32", xu[i], S[0][i], t[i])
        for i in range(4): k.V("v_cvt_pk_bf16_f32", self.xres[i], xu[2 * i], xu[2 * i + 1])
        k.gstore(self.xres, self.vXO, self.sOUT, 0)

    def build(self):
        k = self.k
        self.joinF = []
        self.prologue()
        k.S("s_cmp_eq_u32", self.sIsH, 1)
        k.branch("s_cbranch_scc0", "L_roleQ")
        st = self.save()
        self.role_h()
        self.restore(st)
        self.role_qkv()
        self.phase2a()
        self.phase2b()
        self.final()
        k.label("L_fin")
        k.raw("  s_waitcnt vmcnt(0)")
        self.stamp_flush()
        k.label("L_end")
        k.raw("  s_endpgm")
        head = open(__file__.rsplit('/', 1)[0] + "/header.txt").read() if '/' in __file__ else open("header.txt").read()
        head = head.replace("@LDS@", str(LDS_BYTES))
        tail = f""".section .rodata,"a"
.p2align 6
.amdhsa_kernel {NAME}_kernel
  .amdhsa_next_free_vgpr {NV + NA}
  .amdhsa_next_free_sgpr 102
  .amdhsa_accum_offset {NV}
  .amdhsa_group_segment_fixed_size 0
  .amdhsa_kernarg_size 72
  .amdhsa_user_sgpr_count 2
  .amdhsa_user_sgpr_kernarg_segment_ptr 1
  .amdhsa_system_sgpr_workgroup_id_x 1
  .amdhsa_float_denorm_mode_32 3
.end_amdhsa_kernel
"""
        if self.c['stamps']: head += '; stamps: ' + ','.join(self.c['stamps']) + '\n'
        return head + k.text() + tail

if __name__ == "__main__":
    import json
    out = sys.argv[1]
    cfg = json.loads(sys.argv[2]) if len(sys.argv) > 2 else {}
    g = Gen(**cfg)
    txt = g.build()
    open(out, "w").write(txt)
    n = sum(1 for l in g.k.out if l.startswith("  ") and not l.startswith("  ;"))
    print(f"{out}: {n} instructions, {g.k.nops} nop states, {g.k.waits} auto waits", file=sys.stderr)
    if cfg.get('verbose'):
        for l in g.k.log: print(l, file=sys.stderr)
```

```python
import sys, math
from asmlib import *

NAME = "recurrent_scan__linear_attn_block__dense_activation_silu__prompt"
NV, NA = 120, 136
EPOCH, FLH, FLQ, FLP, FLK = 0, 0x10000, 0x30000, 0x50000, 0x70000
KVB, PB, QB, HB, WSEND = 0x78000, 0x80000, 0x200000, 0x400000, 0xB00000
STAMPS = 0xC00000
XR, W0R, WB, MISC = 0, 65536, 98304, 155648
KVR, EXA = 90112, 65536
CSA, STA, R2A = MISC, MISC + 4096, MISC + 3072
LDS_BYTES = 163840
OOB = 0x40000000
LOG2E = 1.4426950408889634
LN2 = 0.6931471805599453
ONES = 0x3f803f80

DEF = dict(LA=3, bud=26, stamps=False, spin=200000, warm=True, codepf=True, look=6, stop=None, sleep=8, rot=2, prio=1, hookn=1, wl=9, deep=1, l2pf=0, xmap=1, redoff=4)

class Gen:
    def __init__(self, **cfg):
        self.c = dict(DEF); self.c.update(cfg)
        self.k = K()
        self.sa = Alloc('s', 52, 100)
        self.joinA, self.joinB = [], []
        self.lane = v(0); self.vFA = v(1); self.vFV = v(2, 2); self.vP2d = [v(4 + i) for i in range(4)]
        self.vRowp, self.vColb, self.vST, self.vWD = v(8), v(9), v(10), v(11)
        self.cc, self.irs, self.sum, self.sq, self.vCSW, self.vCSR = v(15), v(16), v(17), v(18), v(19), v(20)
        self.vStampA, self.vStampD, self.vWH = v(21), v(22), v(23)
        self.IND, self.mneg, self.et, self.xt = v(24, 4), v(28, 4), v(32, 4), v(36, 8)
        self.sp = v(34, 2); self.eo = self.xt
        self.vTX = [v(44 + i) for i in range(4)]; self.vXR = [v(48 + i) for i in range(4)]
        self.vXT = [v(52), v(53)]; self.vXD = [v(54), v(55)]; self.vTY = [v(56 + i) for i in range(4)]
        self.blk = [v(60, 16), v(76, 16), v(92, 16)]
        self.cs = [v(108, 4), v(112, 4), v(116, 4)]
        self.tmp = [v(92), v(93), v(94), v(95), v(12), v(13), v(14), v(96)]
        self.vDummy, self.vDummy2, self.vWH2 = v(21), v(22), v(116)

    STAMP_PAIRS = [4, 6, 8, 10, 12, 14, 16, 18, 44, 46, 20, 100]
    def stamp(self, name):
        if not self.c['stamps']: return
        names = self.c['stamps']
        if name not in names: return
        for idx in [i for i, x in enumerate(names) if x == name]: self._stamp(idx)
    def _stamp(self, idx):
        if idx == 0: self.k.raw(f"  s_memrealtime s[{self.STAMP_PAIRS[10]}:{self.STAMP_PAIRS[10] + 1}]")
        op = "s_memrealtime" if (self.c.get('rt') and idx % 2 == 0 and idx > 0) else "s_memtime"
        self.k.raw(f"  {op} s[{self.STAMP_PAIRS[idx]}:{self.STAMP_PAIRS[idx] + 1}]")
    def stamp_flush(self):
        if not self.c['stamps']: return
        k, T, P = self.k, self.sT, self.STAMP_PAIRS
        k.raw(f"  s_memtime s[{P[9]}:{P[9] + 1}]")
        k.raw(f"  s_memrealtime s[{P[11]}:{P[11] + 1}]")
        k.raw("  s_waitcnt lgkmcnt(0)")
        k.raw("  s_mov_b32 s38, 0xd00000")
        k.raw(f"  s_lshl_b32 {T[0]}, s2, 3\n  s_add_u32 {T[0]}, {T[0]}, {self.sWv}\n  s_lshl_b32 {T[0]}, {T[0]}, 7\n  s_add_u32 {T[0]}, {T[0]}, {STAMPS}")
        k.raw(f"  v_mov_b32 v12, 0x40000000\n  v_mov_b32 v13, 0\n  v_cmp_eq_u32 vcc, 0, v0\n  s_nop 1\n  v_cndmask_b32 v12, v12, v13, vcc")
        for i, p in enumerate(P):
            k.raw(f"  v_mov_b32 v14, s{p}\n  buffer_store_dword v14, v12, s[36:39], {T[0]} offen offset:{4 * i}\n  s_nop 1")
        if self.c.get('dbgwg') is not None:
            skip = k.newlabel("Ldbg")
            k.raw(f"  s_lshl_b32 {T[1]}, s2, 3\n  s_add_u32 {T[1]}, {T[1]}, {self.sWv}\n  s_cmp_eq_u32 {T[1]}, {self.c['dbgwg']}\n  s_cbranch_scc0 {skip}")
            k.raw("  s_load_dwordx2 s[40:41], s[0:1], 56\n  s_waitcnt lgkmcnt(0)\n  s_mov_b32 s42, 256\n  s_mov_b32 s43, 0x20000")
            k.raw(f"  s_sub_u32 {T[1]}, s{P[11]}, s{P[10]}\n  v_mov_b32 v14, {T[1]}\n  buffer_store_dword v14, v12, s[40:43], 0 offen\n  s_nop 1")
            for i in range(1, 10):
                k.raw(f"  s_sub_u32 {T[1]}, s{P[i]}, s{P[0]}\n  s_cmp_eq_u32 s{P[i]}, 0\n  s_cselect_b32 {T[1]}, 0, {T[1]}\n  v_mov_b32 v14, {T[1]}\n  buffer_store_dword v14, v12, s[40:43], 0 offen offset:{4 * i}\n  s_nop 1")
            k.label(skip)

    def flag_store(self, val, toks):
        k = self.k
        self.stamp(f'f{val}a')
        k.wait_tok(*toks)
        self.stamp(f'f{val}b')
        k.S("s_add_u32", self.sT[4], self.sTag[0], val)
        k.V("v_mov_b32", self.vFV[0], self.sT[4])
        k.gstore(self.vFV, self.vFA, self.sWS, 0, mod=" sc1", tok=('flag',))

    def poll_issue(self, vP, vPA):
        self.k.gload(vP, vPA, self.sWS, 0, mod=" sc1")

    def poll_check(self, vP, vPA, vD, need, mask):
        k = self.k
        top, done = k.newlabel("Lspin"), k.newlabel("Lok")
        k.wait_regs(vP)
        k.label(top)
        k.V("v_subrev_u32", vD, self.sTag[0], vP[0])
        k.V("v_cmp_eq_u32", VCC, self.sTag[1], vP[1])
        k.V("v_subrev_u32", vD, need, vD)
        k.V("v_cmp_ge_u32_e64", self.sM0, 15 - need, vD)
        k.S("s_and_b64", self.sM0, self.sM0, VCC)
        k.S("s_mov_b64", self.sM1, mask) if not isinstance(mask, tuple) else (k.S("s_mov_b32", self.sM1[0], mask[0]), k.S("s_mov_b32", self.sM1[1], mask[1]))
        k.S("s_and_b64", self.sM0, self.sM0, self.sM1)
        k.S("s_cmp_eq_u64", self.sM0, self.sM1)
        k.branch("s_cbranch_scc1", done)
        k.S("s_sub_u32", self.sSpin, self.sSpin, 1)
        k.branch("s_cbranch_scc1", done + "x")
        if self.c['sleep']: k.raw(f"  s_sleep {self.c['sleep']}")
        k.raw(f"  buffer_load_dwordx2 {vP}, {vPA}, {self.sWS}, 0 offen sc1")
        k.raw("  s_waitcnt vmcnt(0)")
        k.raw(f"  s_branch {top}")
        k.label(done + "x")
        k.raw(f"  s_mov_b32 {self.sSpin}, 0")
        k.label(done)

    def prologue(self):
        k, sa, c = self.k, self.sa, self.c
        self.sX, self.sW, self.sP2, self.sWS, self.sOUT, self.sDBG, self.sTMP = (s(n, 4) for n in (24, 28, 32, 36, 40, 44, 48))
        k.S("s_cmp_ge_u32", s(2), 256)
        k.branch("s_cbranch_scc1", "L_end")
        k.raw("  s_load_dwordx4 s[4:7], s[0:1], 0")
        k.raw("  s_load_dwordx2 s[8:9], s[0:1], 16")
        k.raw("  s_load_dwordx4 s[12:15], s[0:1], 32")
        k.raw("  s_load_dwordx4 s[16:19], s[0:1], 48")
        k.raw("  s_load_dwordx2 s[20:21], s[0:1], 64")
        g = sa.get
        self.sTag = g(2); self.sM0 = g(2); self.sM1 = g(2); self.sPad = g(2); self.sHi = g(2)
        self.sT = [g() for _ in range(6)]
        (self.sWv, self.sRt, self.sGrp, self.sI, self.sIdx, self.sIsH, self.sIsRed, self.sRho, self.sI2, self.sC,
         self.sRot2, self.sSpin, self.sXb, self.sMx, self.sMw, self.sRS) = [g() for _ in range(16)]
        self.sAs = [g() for _ in range(7)]
        self.sCol = [g() for _ in range(4)]
        self.sMp = [g() for _ in range(2)]
        self.sUW = [g() for _ in range(3)]
        T = self.sT
        lane, tmp = self.lane, self.tmp
        if c['codepf']:
            k.comment("pull this kernel's code into L2: 1/32 of its lines per workgroup")
            k.raw("  s_getpc_b64 s[48:49]")
            k.label("L_pc")
            k.S("s_and_b32", s(49), s(49), 0xffff)
            k.raw("  s_mov_b32 s50, L_end-L_pc")
            k.S("s_mov_b32", s(51), 0x20000)
            k.S("s_lshr_b32", T[0], s(2), 3)
            k.S("s_lshl_b32", T[0], T[0], 7)
            k.V("v_lshlrev_b32", tmp[0], 12, v(0))
            k.V("v_cmp_gt_u32", VCC, 16, v(0))
            k.V("v_mov_b32", tmp[1], OOB)
            k.V("v_cndmask_b32", tmp[0], tmp[1], tmp[0])
            k.gload(self.vDummy, tmp[0], self.sTMP, T[0])
        k.V("v_lshrrev_b32", tmp[0], 6, v(0))
        k.V("v_and_b32", lane, 63, v(0))
        k.V("v_readfirstlane_b32", self.sWv, tmp[0])
        xcd, n, q, sub = T[0], T[1], T[2], T[3]
        k.S("s_and_b32", xcd, s(2), 7)
        k.S("s_lshr_b32", n, s(2), 3)
        k.S("s_lshr_b32", q, xcd, 1)
        k.S("s_lshr_b32", sub, n, 3)
        k.S("s_and_b32", T[4], xcd, 1)
        k.S("s_lshl_b32", T[4], T[4], 3)
        k.S("s_and_b32", T[5], n, 7)
        k.S("s_add_u32", self.sI, T[4], T[5])
        k.S("s_lshr_b32", self.sIsH, sub, 1)
        k.S("s_and_b32", T[4], sub, 1)
        k.S("s_lshl_b32", self.sIdx, q, 1)
        k.S("s_add_u32", self.sIdx, self.sIdx, T[4])
        k.S("s_and_b32", self.sRt, self.sWv, 3)
        k.S("s_lshr_b32", self.sGrp, self.sWv, 2)
        if c['rot'] == 7:
            k.S("s_lshl_b32", T[4], sub, 1)
            k.S("s_add_u32", T[4], T[4], T[5])
            k.S("s_cmp_ge_u32", T[4], 7); k.S("s_cselect_b32", T[5], 7, 0); k.S("s_sub_u32", T[4], T[4], T[5])
            k.S("s_cmp_ge_u32", T[4], 7); k.S("s_cselect_b32", T[5], 7, 0); k.S("s_sub_u32", self.sAs[0], T[4], T[5])
        elif c['rot'] == 1:
            k.S("s_mov_b32", self.sAs[0], 0)
        else:
            k.S("s_add_u32", T[4], sub, T[5]); k.S("s_and_b32", T[4], T[4], c['rot'] - 1); k.S("s_mul_i32", self.sAs[0], T[4], 7 // c['rot'] + (c['rot'] == 4))
        for p in range(1, 7):
            k.S("s_add_u32", self.sAs[p], self.sAs[p - 1], 1)
            k.S("s_cmp_eq_u32", self.sAs[p], 7)
            k.S("s_cselect_b32", self.sAs[p], 0, self.sAs[p])
        k.S("s_cmp_eq_u32", q, 3); k.S("s_cselect_b32", T[4], 0, 8)
        k.S("s_sub_u32", T[5], n, T[4])
        k.S("s_cmp_lt_u32", T[5], 4); k.S("s_cselect_b32", self.sIsRed, 1, 0)
        k.S("s_add_u32", self.sRho, xcd, c['redoff']); k.S("s_and_b32", self.sRho, self.sRho, 7)
        k.S("s_lshl_b32", self.sRho, self.sRho, 2); k.S("s_and_b32", T[5], n, 3); k.S("s_add_u32", self.sRho, self.sRho, T[5])
        k.S("s_add_u32", T[4], T[4], 4)
        k.S("s_cmp_ge_u32", n, T[4]); k.S("s_cselect_b32", T[4], 4, 0); k.S("s_sub_u32", T[4], n, T[4])
        k.S("s_lshr_b32", self.sC, T[4], 2)
        k.S("s_and_b32", T[4], T[4], 3)
        if c['xmap']:
            k.S("s_and_b32", self.sI2, xcd, 6); k.S("s_lshl_b32", self.sI2, self.sI2, 1); k.S("s_add_u32", self.sI2, self.sI2, T[4])
            k.S("s_bitcmp1_b32", xcd, 0); k.S("s_cselect_b32", T[5], 0, 16); k.S("s_add_u32", self.sI2, self.sI2, T[5])
        else:
            k.S("s_lshl_b32", self.sI2, xcd, 2); k.S("s_add_u32", self.sI2, self.sI2, T[4])
        k.S("s_add_u32", self.sRot2, T[4], self.sC); k.S("s_and_b32", self.sRot2, self.sRot2, 3)
        k.S("s_cmp_eq_u32", self.sIsH, 1); k.S("s_cselect_b32", self.sRS, 3584, 2688)
        k.S("s_lshl_b32", T[4], self.sI, 2); k.S("s_add_u32", T[4], T[4], self.sRt)
        k.S("s_mul_i32", self.sXb, T[4], 32 * 896)
        k.S("s_lshl_b32", self.sMx, self.sRt, 12); k.S("s_lshl_b32", T[4], self.sGrp, 11); k.S("s_add_u32", self.sMx, self.sMx, T[4])
        k.S("s_lshl_b32", self.sMw, self.sWv, 10)
        k.S("s_mov_b32", self.sSpin, c['spin'])
        l3, c7, l4, cs = tmp[0], tmp[1], tmp[2], tmp[3]
        k.V("v_lshrrev_b32", l3, 3, lane)
        k.V("v_and_b32", c7, 7, lane)
        k.V("v_lshrrev_b32", l4, 4, lane)
        k.V("v_xor_b32", tmp[4], c7, l4)
        k.V("v_lshlrev_b32", tmp[4], 4, tmp[4])
        k.S("s_movk_i32", T[4], 896)
        k.V("v_mad_u32_u24", tmp[5], l3, T[4], tmp[4])
        k.S("s_mul_i32", T[5], self.sGrp, 14336)
        k.V("v_add_u32", self.vXD[0], T[5], tmp[5])
        k.V("v_xor_b32", tmp[4], 64, tmp[4])
        k.V("v_mad_u32_u24", tmp[5], l3, T[4], tmp[4])
        k.S("s_add_u32", T[5], T[5], 6144)
        k.V("v_add_u32", self.vXD[1], T[5], tmp[5])
        k.V("v_and_b32", tmp[4], 1, l4)
        k.V("v_lshlrev_b32", tmp[4], 2, tmp[4])
        k.V("v_xor_b32", cs, c7, tmp[4])
        k.S("s_cmp_eq_u32", self.sIsH, 1); k.S("s_cselect_b32", T[5], 7, 6)
        k.V("v_min_u32", tmp[4], T[5], cs)
        k.V("v_lshlrev_b32", tmp[4], 4, tmp[4])
        k.S("s_lshl_b32", T[5], self.sWv, 3)
        k.V("v_add_u32", tmp[5], T[5], l3)
        k.V("v_mad_u32_u24", self.vWD, tmp[5], self.sRS, tmp[4])
        k.V("v_lshlrev_b32", tmp[4], 4, cs)
        k.V("v_mad_u32_u24", tmp[4], l3, T[4], tmp[4])
        k.S("s_lshl_b32", T[5], self.sC, 7)
        k.V("v_add_u32", self.vP2d[0], T[5], tmp[4])
        k.V("v_add_u32", self.vP2d[1], 6144, self.vP2d[0])
        k.V("v_add_u32", self.vP2d[2], 14336, self.vP2d[0])
        k.V("v_add_u32", self.vP2d[3], 14336 + 6144, self.vP2d[0])
        k.hard_wait("s_waitcnt lgkmcnt(0)")
        def srd(d, lo, hi, size):
            k.S("s_mov_b32", d[0], lo); k.S("s_and_b32", d[1], hi, 0xffff)
            k.S("s_mov_b32", d[2], size); k.S("s_mov_b32", d[3], 0x20000)
        srd(self.sX, s(4), s(5), 2048 * 896)
        k.S("s_cmp_eq_u32", self.sIsH, 1)
        k.S("s_cselect_b32", self.sW[0], s(12), s(6)); k.S("s_cselect_b32", self.sW[1], s(13), s(7))
        k.S("s_cselect_b32", self.sW[2], 448 * 3584, 448 * 2688)
        k.S("s_and_b32", self.sW[1], self.sW[1], 0xffff); k.S("s_mov_b32", self.sW[3], 0x20000)
        k.raw("  s_load_dwordx2 %s, s[20:21], %d" % (self.sTag, EPOCH))
        self.sRS64 = self.sRS
        k.S("s_lshl_b32", self.sRS64, self.sRS, 6)
        self.sOnes, self.sLn2 = s(22), s(23)
        k.S("s_mov_b32", self.sOnes, ONES); k.S("s_mov_b32", self.sLn2, LN2)

    def prologue2(self):
        k, c, T, tmp, lane = self.k, self.c, self.sT, self.tmp, self.lane
        def srd(d, lo, hi, size):
            k.S("s_mov_b32", d[0], lo); k.S("s_and_b32", d[1], hi, 0xffff)
            k.S("s_mov_b32", d[2], size); k.S("s_mov_b32", d[3], 0x20000)
        self.warm_setup()
        k.S("s_cmp_eq_u32", self.sGrp, 0)
        k.S("s_cselect_b32", self.sP2[0], s(14), s(8)); k.S("s_cselect_b32", self.sP2[1], s(15), s(9))
        k.S("s_cselect_b32", self.sP2[2], 1792 * 896, 448 * 896)
        k.S("s_and_b32", self.sP2[1], self.sP2[1], 0xffff); k.S("s_mov_b32", self.sP2[3], 0x20000)
        k.S("s_xor_b32", T[0], self.sIsH, 1); k.S("s_and_b32", self.sIsRed, self.sIsRed, T[0])
        k.S("s_cmp_eq_u32", self.sIsRed, 1); k.S("s_cselect_b32", self.sP2[2], 0, self.sP2[2])
        srd(self.sWS, s(20), s(21), WSEND)
        srd(self.sOUT, s(16), s(17), 2048 * 896)
        k.S("s_mov_b32", self.sPad[0], 0xf0000000); k.S("s_mov_b32", self.sPad[1], 0xf0000000)
        k.S("s_mov_b32", self.sHi[0], 0); k.S("s_mov_b32", self.sHi[1], -1)
        if c['stamps']:
            for p in self.STAMP_PAIRS: k.S("s_mov_b32", s(p), 0)
        row, hf, gx, base = tmp[0], tmp[1], tmp[2], tmp[3]
        k.V("v_and_b32", row, 31, lane)
        k.V("v_lshrrev_b32", hf, 5, lane)
        k.V("v_bfe_u32", gx, lane, 1, 3)
        k.S("s_lshl_b32", T[0], self.sRt, 12)
        k.V("v_lshl_add_u32", base, row, 7, T[0])
        def xaddr(dst, sp_reg_or_int):
            k.S("s_add_u32", T[1], self.sRt, sp_reg_or_int); k.S("s_and_b32", T[1], T[1], 3); k.S("s_lshl_b32", T[1], T[1], 1)
            k.V("v_add_u32", tmp[4], T[1], hf); k.V("v_xor_b32", tmp[4], tmp[4], gx)
            k.V("v_lshl_add_u32", dst, tmp[4], 4, base)
        for sp in range(4): xaddr(self.vXR[sp], sp)
        k.S("s_lshl_b32", T[2], self.sGrp, 1); xaddr(self.vXT[0], T[2])
        k.S("s_add_u32", T[2], T[2], 1); xaddr(self.vXT[1], T[2])
        k.S("s_lshl_b32", T[0], self.sGrp, 9); k.S("s_add_u32", T[0], T[0], CSA)
        k.V("v_lshl_add_u32", self.vCSR, row, 4, T[0])
        k.S("s_lshl_b32", T[0], self.sRt, 2)
        k.V("v_add_u32", self.vCSW, T[0], self.vCSR)
        k.V("v_lshrrev_b32", tmp[4], 4, lane); k.V("v_lshrrev_b32", tmp[5], 2, lane)
        k.V("v_xor_b32", tmp[4], tmp[4], tmp[5]); k.V("v_and_b32", tmp[4], 1, tmp[4])
        k.V("v_cmp_eq_u32", VCC, 0, tmp[4]); k.V("v_mov_b32", tmp[5], ONES)
        k.V("v_cndmask_b32", self.IND[0], 0, tmp[5])
        for i in range(1, 4): k.V("v_mov_b32", self.IND[i], self.IND[0])
        k.V("v_bfe_u32", tmp[4], lane, 2, 2)
        k.V("v_lshl_add_u32", self.vRowp, hf, 3, tmp[4])
        k.V("v_bfe_u32", tmp[4], lane, 4, 1); k.V("v_lshlrev_b32", tmp[4], 5, tmp[4])
        k.V("v_and_b32", tmp[5], 3, lane); k.V("v_lshl_add_u32", tmp[4], tmp[5], 3, tmp[4])
        k.V("v_bfe_u32", tmp[5], lane, 3, 1); k.V("v_lshl_add_u32", self.vColb, tmp[5], 6, tmp[4])
        k.V("v_mov_b32", self.sum, 0); k.V("v_mov_b32", self.sq, 0)
        k.hard_wait("s_waitcnt lgkmcnt(0)")
        k.S("s_and_b32", self.sTag[0], self.sTag[0], -16); k.S("s_add_u32", self.sTag[0], self.sTag[0], 16)
        k.V("v_mov_b32", self.vFV[1], self.sTag[1])

    def warm_setup(self):
        k, c, T, tmp, lane = self.k, self.c, self.sT, self.tmp, self.lane
        if c['warm']:
            k.comment("touch the weights once, spread over all workgroups, so later misses are served on-die")
            k.S("s_and_b32", T[0], self.sWv, 3)
            k.S("s_cmp_eq_u32", T[0], 0); k.S("s_cselect_b32", s(48), s(14), s(12)); k.S("s_cselect_b32", s(49), s(15), s(13))
            k.S("s_cmp_eq_u32", T[0], 2); k.S("s_cselect_b32", s(48), s(8), s(48)); k.S("s_cselect_b32", s(49), s(9), s(49))
            k.S("s_cselect_b32", T[1], 13, 49); k.S("s_cselect_b32", s(50), 448 * 896, 1792 * 896)
            k.S("s_cmp_eq_u32", T[0], 3); k.S("s_cselect_b32", s(48), s(6), s(48)); k.S("s_cselect_b32", s(49), s(7), s(49))
            k.S("s_cselect_b32", T[1], 37, T[1]); k.S("s_cselect_b32", s(50), 448 * 2688, s(50))
            k.S("s_and_b32", s(49), s(49), 0xffff); k.S("s_mov_b32", s(51), 0x20000)
            k.S("s_cmp_eq_u32", self.sGrp, 0); k.S("s_cselect_b32", T[2], T[1], 0)
            k.S("s_mul_i32", T[1], T[1], s(2)); k.S("s_lshl_b32", T[1], T[1], 7)
            k.V("v_lshlrev_b32", tmp[4], 7, lane)
            k.V("v_cmp_gt_u32", VCC, T[2], lane)
            k.V("v_mov_b32", tmp[5], OOB)
            k.V("v_cndmask_b32", tmp[4], tmp[5], tmp[4])
            k.V("v_add_u32", self.vWH2, T[1], tmp[4])
    def warm_issue(self):
        if self.c['warm']: self.k.gload(self.vDummy2, self.vWH2, self.sTMP, 0)

    def l2pf_job(self, q):
        k, T, tmp, lane = self.k, self.sT, self.tmp, self.lane
        def f():
            if q == 0:
                k.S("s_lshr_b32", T[0], s(2), 3); k.S("s_and_b32", T[0], T[0], 15); k.S("s_lshl_b32", T[0], T[0], 2); k.S("s_add_u32", T[0], T[0], self.sRt)
                k.S("s_cmp_eq_u32", self.sGrp, 0); k.S("s_cselect_b32", T[1], 196 * 128, 49 * 128); k.S("s_mul_i32", T[0], T[0], T[1])
                k.V("v_lshl_add_u32", self.vWH2, lane, 7, T[0]); k.V("v_mov_b32", tmp[5], OOB)
                k.V("v_cmp_gt_u32", VCC, 49, lane); k.V("v_cndmask_b32", self.vWH2, tmp[5], self.vWH2)
                k.gload(self.vDummy2, self.vWH2, self.sP2, 0)
            else:
                k.S("s_cmp_eq_u32", self.sGrp, 0); k.S("s_cselect_b32", T[0], q * 49 * 128, OOB)
                k.gload(self.vDummy2, self.vWH2, self.sP2, T[0])
        return f

    def tr_addrs(self, dst, omul, base):
        k, T, tmp = self.k, self.sT, self.tmp
        items = []
        items.append((8, lambda: (k.S("s_mul_i32", T[3], self.sGrp, omul), k.V("v_add_u32", tmp[6], T[3], self.vColb))))
        items.append((4, lambda: k.V("v_and_b32", tmp[6], 127, tmp[6])))
        items.append((4, lambda: k.V("v_lshl_add_u32", tmp[6], self.vRowp, 7, tmp[6])))
        for sp in range(4):
            def f(sp=sp):
                k.S("s_add_u32", T[3], self.sRt, sp); k.S("s_and_b32", T[3], T[3], 3); k.S("s_lshl_b32", T[3], T[3], 11)
                k.S("s_add_u32", T[3], T[3], base)
                k.V("v_add_u32", dst[sp], T[3], tmp[6])
            items.append((20, f))
        return items

    def job_x(self, p):
        k, T = self.k, self.sT
        def f():
            k.S("s_add_u32", M0, self.sMx, XR + (p % 4) * 16384)
            k.S("s_lshl_b32", T[0], self.sAs[p], 7); k.S("s_add_u32", T[0], T[0], self.sXb)
            k.dma(self.vXD[0], self.sX, T[0], 0, ('x', p)); k.dma(self.vXD[1], self.sX, T[0], 1024, ('x', p))
        return f
    def job_w(self, name, p, col, lds):
        k, T = self.k, self.sT
        def f():
            k.S("s_add_u32", M0, self.sMw, lds)
            k.S("s_mul_i32", T[0], self.sAs[p], self.sRS64); k.S("s_add_u32", T[0], T[0], col)
            k.dma(self.vWD, self.sW, T[0], 0, (name, p))
        return f
    def unit_ra(self, pos):
        k, T = self.k, self.sT
        G, q = pos // 4, pos % 4
        k.S("s_add_u32", T[1], self.sRot2, q); k.S("s_and_b32", T[1], T[1], 3 if G < 3 else 1)
        k.S("s_lshr_b32", T[2], T[1], 1); k.S("s_add_u32", T[2], T[2], 2 * G)
        k.S("s_and_b32", T[1], T[1], 1)
    def unit_w(self, pos):
        k, T, U = self.k, self.sT, self.sUW
        self.unit_ra(pos)
        k.S("s_add_u32", T[2], T[2], T[1])
        k.S("s_cmp_eq_u32", T[2], 7); k.S("s_cselect_b32", T[2], 0, T[2])
        k.S("s_mul_i32", T[1], T[1], 7); k.S("s_add_u32", T[2], T[2], T[1])
        k.S("s_mul_i32", T[1], self.sRt, 14); k.S("s_add_u32", T[2], T[2], T[1])
        k.S("s_mul_i32", U[0], T[2], 32 * 896)
    def unit_a(self, pos):
        k, T, U = self.k, self.sT, self.sUW
        self.unit_ra(pos)
        k.S("s_mul_i32", T[1], T[1], 7); k.S("s_add_u32", T[2], T[2], T[1]); k.S("s_lshl_b32", U[1], T[2], 11)
    def a_pos(self, n):
        pos = n % 11
        return (0, pos * 2048) if pos < 3 else (1, (pos - 3) * 2048)
    def job_p2_shared(self, n):
        k, T = self.k, self.sT
        def f():
            if n % 2 == 0:
                self.unit_w(n // 2)
                k.S("s_mul_i32", T[1], self.sRt, 112 * 896); k.S("s_add_u32", T[1], T[1], (n // 2) * 28 * 896)
                k.S("s_cmp_eq_u32", self.sGrp, 0); k.S("s_cselect_b32", self.sUW[2], self.sUW[0], T[1])
            k.S("s_add_u32", M0, self.sMp[0], n * 2048)
            b = 2 * (n % 2)
            k.dma(self.vP2d[b], self.sP2, self.sUW[2], 0, ('p2', n)); k.dma(self.vP2d[b + 1], self.sP2, self.sUW[2], 1024, ('p2', n))
        return f
    def p2_bases(self):
        k, T = self.k, self.sT
        k.S("s_mul_i32", T[1], self.sRt, 6144); k.S("s_add_u32", T[1], T[1], WB + 32768)
        k.S("s_lshl_b32", T[2], self.sRt, 13); k.S("s_add_u32", T[3], T[2], WB)
        k.S("s_cmp_eq_u32", self.sGrp, 0)
        k.S("s_cselect_b32", self.sMp[0], T[1], T[3])
        k.S("s_lshl_b32", T[1], self.sRt, 14); k.S("s_add_u32", T[2], T[2], W0R)
        k.S("s_cmp_eq_u32", self.sGrp, 0)
        k.S("s_cselect_b32", self.sMp[1], T[1], T[2])

    def x_reads(self, p):
        k = self.k
        off = XR + (p % 4) * 16384
        for t in range(2): k.ds_read("ds_read_b128", self.xt[4 * t:4 * t + 4], self.vXT[t], off)
        for sp in range(4): k.ds_read("ds_read_b128", a(16 * p + 4 * sp, 4), self.vXR[sp], off)
    def dots(self):
        k = self.k
        for i in range(8):
            k.V("v_dot2c_f32_bf16", self.sq, self.xt[i], self.xt[i])
            k.V("v_dot2c_f32_bf16", self.sum, self.sOnes, self.xt[i])
    def run_slots(self, slots, pre_read, pre_mfma, post_mfma, fill, dq, first_ring=0, tail_reads=None):
        k, LA = self.k, self.c['LA']
        NF = 6
        assert 2 <= LA <= 4
        dq.sort(key=lambda e: e[0])
        def frag(n): return a(112 + 4 * ((n + first_ring) % NF), 4)
        def read(n):
            if n in pre_read: pre_read[n]()
            sl = slots[n]
            k.ds_read("ds_read_b64_tr_b16", frag(n)[0:2], sl['addr'], sl['off'])
            k.ds_read("ds_read_b64_tr_b16", frag(n)[2:4], sl['addr'], sl['off'] + sl['second'])
        for n in range(min(LA, len(slots))): read(n)
        for n, sl in enumerate(slots):
            if n in pre_mfma: pre_mfma[n]()
            x = a(4 * sl['xi'], 4)
            C = 0 if sl['first'] else sl['acc']
            if n % 2 == 0 and n + 1 < len(slots): k.wait_regs(frag(n), frag(n + 1), x)
            if sl['wfirst']: k.mfma(True, sl['acc'], frag(n), x, C)
            else: k.mfma(True, sl['acc'], x, frag(n), C)
            if sl['cs'] is not None: k.mfma(False, sl['cs'], self.IND, frag(n), 0 if sl['csfirst'] else sl['cs'])
            if n + LA < len(slots): read(n + LA)
            if n in post_mfma: post_mfma[n]()
            while dq and dq[0][0] <= n: dq.pop(0)[1]()
            fill.run(sl.get('bud', self.c['bud']))
    def bar_wait(self, *toks, lg=False):
        def f():
            self.k.wait_tok(*toks)
            if lg: self.k.wait_lg_all()
            self.k.barrier()
        return f
    def stats_part1(self):
        k, T, tmp = self.k, self.sT, self.tmp
        it = []
        def a0():
            k.S("s_lshl_b32", T[3], self.sWv, 9); k.S("s_add_u32", T[3], T[3], STA)
            k.V("v_lshl_add_u32", tmp[4], self.lane, 3, T[3])
        it.append((12, a0))
        def a1():
            k.V("v_mov_b32", self.sp[0], self.sum); k.V("v_mov_b32", self.sp[1], self.sq)
        it.append((8, a1))
        it.append((4, lambda: k.ds_write("ds_write_b64", tmp[4], self.sp, 0, tok='st')))
        it.append((4, lambda: k.V("v_xor_b32", tmp[4], 2048, tmp[4])))
        return it
    def stats_part2(self):
        k, T, tmp = self.k, self.sT, self.tmp
        it = []
        it.append((4, lambda: k.ds_read("ds_read_b64", self.sp, tmp[4], 0)))
        it.append((4, lambda: k.V("v_add_f32", self.sum, self.sum, self.sp[0])))
        it.append((4, lambda: k.V("v_add_f32", self.sq, self.sq, self.sp[1])))
        it.append((8, lambda: (k.V("v_mov_b32", self.sp[0], self.sum), k.V("v_mov_b32", self.sp[1], self.sq))))
        it.append((8, lambda: (k.V("v_permlane32_swap_b32", self.sum, self.sp[0]), k.V("v_permlane32_swap_b32", self.sq, self.sp[1]))))
        it.append((8, lambda: (k.V("v_add_f32", self.sum, self.sum, self.sp[0]), k.V("v_add_f32", self.sq, self.sq, self.sp[1]))))
        mean, var = self.sum, self.sq
        it.append((8, lambda: (k.V("v_mul_f32", mean, -1.0 / 448, mean), k.V("v_mul_f32", var, 1.0 / 448, var))))
        it.append((4, lambda: k.Vneg("v_fma_f32", var, mean, mean, var, (True, False, False))))
        it.append((8, lambda: (k.V("v_max_f32", var, 0, var), k.V("v_add_f32", var, 1e-5, var))))
        it.append((8, lambda: k.V("v_sqrt_f32", self.irs, var)))
        it.append((4, lambda: k.V("v_cvt_pk_bf16_f32", self.sp[0], mean, mean)))
        it.append((8, lambda: k.V("v_rcp_f32", self.cc, self.irs)))
        it.append((4, lambda: k.V("v_and_b32", self.sp[1], 0xffff0000, self.sp[0])))
        it.append((4, lambda: k.V("v_sub_f32", self.sp[1], mean, self.sp[1])))
        it.append((4, lambda: k.V("v_mul_f32", self.cc, self.ccmul, self.cc)))
        it.append((4, lambda: k.V("v_cvt_pk_bf16_f32", self.sp[1], self.sp[1], self.sp[1])))
        for i in range(4):
            it.append((4, lambda i=i: k.V("v_cndmask_b32_e64", self.mneg[i], self.sp[0], self.sp[1], self.sHi)))
        return it
    def cs_pack(self, cs, idx, dst=None):
        k = self.k
        it = []
        it.append((4, lambda: k.V("v_cvt_pk_bf16_f32", cs[1], cs[0], cs[0])))
        it.append((4, lambda: k.V("v_and_b32", cs[1], 0xffff0000, cs[1])))
        it.append((4, lambda: k.V("v_sub_f32", cs[1], cs[0], cs[1])))
        if dst is None:
            it.append((4, lambda: k.V("v_cvt_pk_bf16_f32", cs[1], cs[0], cs[1])))
            it.append((4, lambda: k.ds_write("ds_write_b32", self.vCSW, cs[1], idx * 1024, tok='cs')))
        else:
            it.append((4, lambda: k.V("v_cvt_pk_bf16_f32", dst[0], cs[0], cs[1])))
            it.append((12, lambda: [k.V("v_mov_b32", dst[i], 0) for i in (1, 2, 3)]))
        return it
    def cs_apply(self, cs, idx, acc, wfirst, read=True):
        k = self.k
        it = []
        if read: it.append((4, lambda: k.ds_read("ds_read_b128", cs, self.vCSR, idx * 1024)))
        it.append((8, (lambda: k.mfma(True, acc, cs, self.mneg, acc)) if wfirst else (lambda: k.mfma(True, acc, self.mneg, cs, acc))))
        return it
    def epi_silu(self, acc, sbyte, tok):
        k, T = self.k, self.sT
        it = []; t = self.et; O = self.eo
        for g4 in range(4):
            A = [acc[4 * g4 + i] for i in range(4)]
            for i in range(4): it.append((4, lambda i=i, A=A: k.V("v_mul_f32", t[i], self.cc, A[i])))
            for i in range(4): it.append((8, lambda i=i: k.V("v_exp_f32", t[i], t[i])))
            for i in range(4): it.append((4, lambda i=i: k.V("v_fma_f32", t[i], t[i], self.irs, self.irs)))
            for i in range(4): it.append((8, lambda i=i: k.V("v_rcp_f32", t[i], t[i])))
            for i in range(4): it.append((4, lambda i=i, A=A: k.V("v_mul_f32", t[i], t[i], A[i])))
            for i in range(2): it.append((4, lambda i=i, g4=g4: k.V("v_cvt_pk_bf16_f32", O[2 * g4 + i], t[2 * i], t[2 * i + 1])))
            if g4 % 2 == 1:
                h = g4 // 2
                def st(h=h):
                    k.S("s_mov_b32", T[3], sbyte)
                    k.gstore(O[4 * h:4 * h + 4], self.vST, self.sWS, T[3], imm=1024 * h, mod=" sc1", tok=tok)
                it.append((8, st))
        return it
    def phi4(self, A, sc, dst2):
        k, t = self.k, self.et
        it = []
        for i in range(4): it.append((4, lambda i=i: k.V("v_mul_f32", A[i], sc[i], A[i])))
        for i in range(4): it.append((8, lambda i=i: k.V("v_exp_f32_e64", t[i], A[i], mod="clamp")))
        for i in range(4): it.append((4, lambda i=i: k.V("v_max_f32", A[i], 1e-6 * LOG2E, A[i])))
        for i in range(4): it.append((4, lambda i=i: k.V("v_fmac_f32", t[i], self.sLn2, A[i])))
        for i in range(2): it.append((4, lambda i=i: k.V("v_cvt_pk_bf16_f32", dst2[i], t[2 * i], t[2 * i + 1])))
        return it

    QOFF = [49152, 57344, 0, 8192, 16384, 24576, 32768]
    def flag_addr(self, base, sline, shift, sidx):
        k, T, tmp = self.k, self.sT, self.tmp
        k.S("s_lshl_b32", T[1], sline, shift + 7); k.S("s_lshl_b32", T[2], sidx, 7); k.S("s_add_u32", T[1], T[1], T[2]); k.S("s_add_u32", T[1], T[1], base)
        k.V("v_mov_b32", tmp[4], OOB); k.V("v_mov_b32", tmp[5], T[1])
        k.V("v_cmp_eq_u32", VCC, 0, self.lane); k.V("v_cndmask_b32", self.vFA, tmp[4], tmp[5])

    def role_h(self):
        k, T, tmp, c = self.k, self.sT, self.tmp, self.c
        k.label("L_roleH")
        self.ccmul = -LOG2E
        col = self.sCol
        k.S("s_and_b32", T[1], self.sIdx, 1); k.S("s_mul_i32", T[2], self.sIdx, 448)
        k.S("s_lshl_b32", T[3], T[1], 6); k.S("s_add_u32", col[0], T[2], T[3])
        for f in (self.job_x(0), self.job_w('w0', 0, col[0], W0R)): f()
        k.S("s_add_u32", col[1], col[0], 128); k.S("s_add_u32", col[2], col[0], 256)
        k.S("s_xor_b32", T[1], T[1], 1); k.S("s_mul_i32", T[1], T[1], 384); k.S("s_add_u32", col[3], T[2], T[1])
        self.prologue2()
        self.stamp('start')
        acc = self.blk[0:2]; cs = self.cs; vWH = self.vWH
        for f in (self.job_x(1), self.job_w('w0', 1, col[0], W0R + 8192)): f()
        for _, f in self.tr_addrs(self.vTX, 64, W0R): f()
        k.V("v_lshrrev_b32", tmp[4], 2, self.lane); k.S("s_lshl_b32", T[1], self.sRt, 4); k.V("v_add_u32", tmp[4], T[1], tmp[4])
        k.V("v_and_b32", tmp[5], 3, self.lane); k.V("v_lshlrev_b32", tmp[5], 4, tmp[5])
        k.S("s_movk_i32", T[1], 3584); k.V("v_mad_u32_u24", vWH, tmp[4], T[1], tmp[5])
        k.S("s_lshl_b32", T[1], self.sI, 2); k.S("s_add_u32", T[1], T[1], self.sRt)
        k.S("s_mul_i32", T[2], T[1], 112 * 1024); k.S("s_mul_i32", T[3], self.sIdx, 14 * 1024); k.S("s_add_u32", T[2], T[2], T[3])
        k.S("s_lshl_b32", T[3], self.sGrp, 11); k.S("s_add_u32", T[2], T[2], T[3]); k.S("s_add_u32", T[2], T[2], HB)
        k.V("v_lshl_add_u32", self.vST, self.lane, 4, T[2])
        k.S("s_mov_b32", T[0], T[1]); k.S("s_lshl_b32", T[3], self.sIdx, 1); k.S("s_add_u32", T[3], T[3], self.sGrp)
        self.flag_addr(FLH, T[0], 4, T[3])
        self.p2_bases()
        for _, f in self.tr_addrs(self.vTY, 64, WB): f()
        if c['deep']:
            for f in (self.job_x(2), self.job_w('w0', 2, col[0], W0R + 16384)): f()

        def job_h(m):
            def f():
                k.S("s_cmp_eq_u32", self.sGrp, 0)
                k.S("s_cselect_b32", T[0], self.sAs[2 * m], self.sAs[min(2 * m + 1, 6)])
                k.S("s_mul_i32", T[0], T[0], self.sRS64); k.S("s_add_u32", T[0], T[0], col[3])
                k.S("s_add_u32", M0, self.sMw, W0R + ((3 + m) % 4) * 8192) if m < 3 else (
                    k.S("s_lshl_b32", T[1], self.sRt, 10), k.S("s_add_u32", M0, T[1], W0R + 2 * 8192))
                k.dma(vWH, self.sW, T[0], 0, ('wh', m))
            return f
        slots = []
        for ps in range(3):
            for n in range(28):
                p, sp = divmod(n, 4)
                off = [(p % 4) * 8192, p * 8192, self.QOFF[p]][ps]
                slots.append(dict(acc=acc[ps % 2], wfirst=True, addr=(self.vTY if ps == 1 else self.vTX)[sp], off=off, second=512, xi=n,
                                  cs=cs[ps % 2] if sp == 0 else None, csfirst=p == 0, first=n == 0))
        fill = Fill(); dq = []
        pre_read, pre_mfma, post = {}, {}, {}
        for p in range(7):
            def br(p=p): self.bar_wait(('x', p), ('w0', p))(); self.stamp(f'B{p}'); self.x_reads(p)
            pre_read[4 * p] = br
            pre_mfma[4 * p] = self.dots
        if c['deep']:
            for p in range(4):
                nb = 4 * (p + 1) - c['LA']
                dq.append((nb, self.job_x(p + 3))); dq.append((nb + 1, self.job_w('w0', p + 3, col[0], W0R + ((p + 3) % 4) * 8192)))
            dq.insert(2, (3, self.warm_issue))
            for p, n in enumerate((17, 18, 19, 21, 22, 23, 25)): dq.append((n, self.job_w('w1', p, col[1], WB + p * 8192)))
            for p, n in enumerate((26, 27, 29, 31, 33, 35, 37)): dq.append((n, self.job_w('w2', p, col[2], XR + self.QOFF[p])))
            for m in range(4): dq.append((40 + 3 * m, job_h(m)))
        else:
            for p in range(5):
                dq.append((4 * p, self.job_x(p + 2))); dq.append((4 * p + 2, self.job_w('w0', p + 2, col[0], W0R + ((p + 2) % 4) * 8192)))
            dq.insert(2, (3, self.warm_issue))
            for p in range(7): dq.append((20 + p, self.job_w('w1', p, col[1], WB + p * 8192)))
            for p in range(7): dq.append((31 + 3 * p, self.job_w('w2', p, col[2], XR + self.QOFF[p])))
            for m in range(4): dq.append((50 + 2 * m, job_h(m)))
        for n in range(3): dq.append((62 + 4 * n, self.job_p2_shared(n)))
        if c['l2pf']:
            for q, n in enumerate(c['l2pf']): dq.append((n, self.l2pf_job(q)))
        def end1():
            self.stamp('p1end')
            fill.extend(self.stats_part1()); fill.extend(self.cs_pack(cs[0], 0))
        post[27] = end1
        pre_read[28] = self.bar_wait(('w1', 0), ('w1', 1))
        def b2():
            fill.drain(); self.bar_wait(('w1', 2), ('w1', 3), ('w1', 4), lg=True)()
            fill.extend(self.stats_part2()); fill.extend(self.cs_apply(cs[0], 0, acc[0], True))
            fill.extend(self.tr_addrs(self.vTX, 64, XR))
            fill.extend(self.epi_silu(acc[0], 0, ('h', 0)))
        pre_read[34] = b2
        pre_read[48] = self.bar_wait(('w1', 5), ('w1', 6))
        def end2():
            fill.drain(); self.stamp('p2end'); fill.extend(self.cs_pack(cs[1], 1))
        post[55] = end2
        pre_read[56] = self.bar_wait(*[('w2', p) for p in range(4)])
        def b3():
            fill.drain(); self.bar_wait(('w2', 4), ('w2', 5), ('w2', 6), lg=True)()
            fill.extend(self.cs_apply(cs[1], 1, acc[1], True)); fill.extend(self.epi_silu(acc[1], 4096, ('h', 1)))
        pre_read[62] = b3
        post[72] = lambda: self.flag_store(1, [('h', 0)])
        self.run_slots(slots, pre_read, pre_mfma, post, fill, dq)
        fill.drain(); self.stamp('p3end')
        for _, f in self.cs_pack(cs[0], 2): f()
        self.bar_wait(*[('wh', m) for m in range(4)], lg=True)()
        k.S("s_cmp_eq_u32", self.sGrp, 1)
        k.branch("s_cbranch_scc1", "L_hB")
        st = self.save()
        for _, f in self.cs_apply(cs[0], 2, acc[0], True): f()
        epi = self.epi_silu(acc[0], 8192, ('fin',))
        self.p2a_preamble(epi, mid=lambda: self.flag_store(2, [('h', 1)]))
        k.S("s_add_u32", T[4], self.sTag[0], 3); k.V("v_mov_b32", self.vFV[0], T[4])
        self.stamp('tail')
        self.joinA.append(self.exit_state()); k.branch("s_branch", "L_p2a")
        self.restore(st)
        k.label("L_hB")
        if c['prio']: k.sraw(f"s_setprio {c['prio']}")
        vTH = self.vTY
        k.V("v_lshlrev_b32", tmp[6], 6, self.vRowp); k.V("v_and_b32", tmp[5], 63, self.vColb); k.V("v_add_u32", tmp[6], tmp[6], tmp[5])
        for sp in range(4):
            k.S("s_add_u32", T[3], self.sRt, sp); k.S("s_and_b32", T[3], T[3], 3); k.S("s_lshl_b32", T[3], T[3], 10)
            k.S("s_add_u32", T[3], T[3], W0R); k.V("v_add_u32", vTH[sp], T[3], tmp[6])
        hoff = [3 * 8192, 3 * 8192 + 4096, 0, 4096, 8192, 8192 + 4096, 2 * 8192]
        slots = [dict(acc=acc[1], wfirst=True, addr=vTH[n % 4], off=hoff[n // 4], second=256, xi=n, cs=cs[1], csfirst=n == 0, first=n == 0) for n in range(28)]
        fill = Fill()
        fill.extend(self.cs_apply(cs[0], 2, acc[0], True)); fill.extend(self.epi_silu(acc[0], 8192, ('h', 2)))
        self.stamp('X')
        self.run_slots(slots, {}, {}, {3: lambda: self.stamp('pi'), 5: lambda: self.stamp('j3'), 9: lambda: self.stamp('e1'), 10: lambda: self.flag_store(2, [('h', 1)]), 11: lambda: self.stamp('G0'), 16: lambda: self.stamp('al0'), 22: lambda: self.stamp('al1')}, fill, [(4, self.job_p2_b(3))])
        fill.drain(); self.stamp('p4end')
        for _, f in self.cs_pack(cs[1], 0, dst=cs[0]): f()
        for _, f in self.cs_apply(cs[0], 0, acc[1], True, read=False): f()
        epi = self.epi_silu(acc[1], 10240, ('fin',))
        half = len(epi) // 2
        for _, f in epi[:half - 1]: f()
        self.flag_store(3, [('h', 2)])
        for _, f in epi[half - 1:]: f()
        k.S("s_add_u32", T[4], self.sTag[0], 4); k.V("v_mov_b32", self.vFV[0], T[4])
        self.stamp('tail')
        self.joinB.append(self.exit_state()); k.branch("s_branch", "L_p2b")

    def save(self):
        import copy
        k = self.k
        return (copy.deepcopy(k.vm), copy.deepcopy(k.lg), list(k.hist), k.pos)
    def restore(self, st):
        k = self.k
        k.vm, k.lg, k.hist, k.pos = [dict(e) for e in st[0]], [dict(e) for e in st[1]], list(st[2]), st[3]
    def exit_state(self):
        self.k.wait_lg_all()
        self.k.flush_hazards()
        return [dict(e) for e in self.k.vm]
    def merge(self, states):
        k = self.k
        young = {}
        for st in states:
            for i, e in enumerate(st):
                y = len(st) - 1 - i
                keys = [('t', e['tok'])] + [('r', r) for r in e['regs']]
                for key in keys: young[key] = min(young.get(key, 99), y)
        L = max(young.values()) + 1 if young else 0
        q = []
        for key, y in young.items(): q.append((L - 1 - y, key))
        k.vm = []
        for pos in range(L):
            es = [key for p_, key in q if p_ == pos]
            k.vm.append(dict(regs={x[1] for x in es if x[0] == 'r'}, tok=None, toks={x[1] for x in es if x[0] == 't'}))
        k.lg = []; k.hist = []

    def role_qkv(self):
        k, T, tmp, c = self.k, self.sT, self.tmp, self.c
        k.label("L_roleQ")
        self.ccmul = LOG2E
        col = self.sCol
        k.S("s_mul_i32", col[2], self.sIdx, 112); k.S("s_add_u32", col[0], col[2], 896); k.S("s_add_u32", col[1], col[2], 1792)
        def slab(p):
            for f in (self.job_x(p), self.job_w('k', p, col[0], KVR + p * 16384), self.job_w('v', p, col[1], KVR + p * 16384 + 8192)): f()
        slab(0)
        self.prologue2()
        self.stamp('start')
        accQ, accK, accV = self.blk
        csK, csV, csQ = self.cs
        R2 = [v(44), v(45), v(46), v(47), v(48), v(49), v(50), v(51), v(52), v(53), v(54), v(55), v(112), v(113), v(114), v(115)]
        R2q = [v(44, 4), v(48, 4), v(52, 4), v(112, 4)]
        slab(1)
        for _, f in self.tr_addrs(self.vTX, 56, KVR): f()
        for _, f in self.tr_addrs(self.vTY, 56, XR): f()
        head = col[3]
        k.S("s_lshl_b32", head, self.sIdx, 1); k.S("s_add_u32", head, head, self.sGrp)
        k.S("s_lshl_b32", T[1], head, 4); k.S("s_add_u32", T[1], T[1], self.sI); k.S("s_lshl_b32", T[1], T[1], 2); k.S("s_add_u32", T[1], T[1], self.sRt)
        k.S("s_lshl_b32", T[1], T[1], 10); k.S("s_add_u32", T[1], T[1], PB)
        k.V("v_lshl_add_u32", self.vST, self.lane, 4, T[1])
        k.S("s_lshl_b32", T[0], head, 1); k.S("s_lshr_b32", T[3], self.sRt, 1); k.S("s_add_u32", T[0], T[0], T[3])
        k.S("s_lshl_b32", T[3], self.sI, 1); k.S("s_and_b32", T[4], self.sRt, 1); k.S("s_add_u32", T[3], T[3], T[4])
        self.flag_addr(FLP, T[0], 5, T[3])
        self.p2_bases()
        slots = []
        for n in range(56):
            p, r = divmod(n, 8); sp, sub = divmod(r, 2)
            slots.append(dict(acc=(accK, accV)[sub], wfirst=False, addr=self.vTX[sp], off=(p % 4) * 16384 + 8192 * sub, second=512, xi=4 * p + sp,
                              cs=(csK, csV)[sub] if sp == 0 else None, csfirst=p == 0, first=n < 2))
        for n in range(28):
            p, sp = divmod(n, 4)
            slots.append(dict(acc=accQ, wfirst=True, addr=self.vTY[sp], off=self.QOFF[p], second=512, xi=n,
                              cs=csQ if sp == 0 else None, csfirst=p == 0, first=n == 0, bud=30))
        fill = Fill(); dq = []
        pre_read, pre_mfma, post = {}, {}, {}
        for p in range(7):
            def br(p=p): self.bar_wait(('x', p), ('k', p), ('v', p))(); self.stamp(f'B{p}'); self.x_reads(p)
            pre_read[8 * p] = br
            pre_mfma[8 * p] = self.dots
        if c['deep']:
            slab(2)
            for p in range(4):
                o = KVR + ((p + 3) % 4) * 16384
                nb = 8 * (p + 1) - c['LA']
                dq += [(nb, self.job_x(p + 3)), (nb + 1, self.job_w('k', p + 3, col[0], o)), (nb + 2, self.job_w('v', p + 3, col[1], o + 8192))]
            dq.insert(3, (9, self.warm_issue))
            for p, n in enumerate((33, 35, 38, 40, 46, 48, 55)): dq.append((n, self.job_w('q', p, col[2], XR + self.QOFF[p])))
        else:
            for p in range(5):
                o = KVR + ((p + 2) % 4) * 16384
                dq += [(8 * p, self.job_x(p + 2)), (8 * p + 3, self.job_w('k', p + 2, col[0], o)), (8 * p + 5, self.job_w('v', p + 2, col[1], o + 8192))]
            dq.insert(3, (6, self.warm_issue))
            for p, n in enumerate((40, 42, 44, 46, 49, 52, 54)): dq.append((n, self.job_w('q', p, col[2], XR + self.QOFF[p])))
        for n in range(3): dq.append((64 + 4 * n, self.job_p2_shared(n)))
        pk = self.xt; pv = accV[0:8]
        def end1():
            self.stamp('p1end')
            fill.extend(self.stats_part1()); fill.extend(self.cs_pack(csK, 0)); fill.extend(self.cs_pack(csV, 1))
        post[55] = end1
        pre_read[56] = self.bar_wait(('q', 0), ('q', 1))
        def b2():
            fill.drain(); self.bar_wait(('q', 2), ('q', 3), lg=True)()
            fill.extend(self.stats_part2())
            def r2w():
                k.S("s_lshl_b32", T[3], self.sWv, 7); k.S("s_add_u32", T[3], T[3], R2A)
                k.V("v_and_b32", tmp[4], 31, self.lane); k.V("v_lshl_add_u32", tmp[4], tmp[4], 2, T[3])
                k.ds_write("ds_write_b32", tmp[4], self.cc, 0)
                k.V("v_lshrrev_b32", tmp[4], 5, self.lane); k.V("v_lshl_add_u32", tmp[4], tmp[4], 4, T[3])
                for q in range(4): k.ds_read("ds_read_b128", R2q[q], tmp[4], 32 * q)
            fill.add(40, r2w)
            fill.extend(self.cs_apply(csK, 0, accK, False)); fill.extend(self.cs_apply(self.et, 1, accV, False))
            for g4 in range(4):
                fill.extend(self.phi4([accK[4 * g4 + i] for i in range(4)], [R2[4 * g4 + i] for i in range(4)], pk[2 * g4:2 * g4 + 2]))
            fill.add(4, lambda: k.V("v_mov_b32", self.et[0], ONES))
            for i in range(16): fill.add(4, lambda i=i: k.V("v_mul_f32", accV[i], R2[i], accV[i]))
            for i in range(8): fill.add(4, lambda i=i: k.V("v_cvt_pk_bf16_f32", pv[i], accV[2 * i], accV[2 * i + 1]))
            for i in range(8): fill.add(4, lambda i=i: k.V("v_cndmask_b32_e64", pv[i], pv[i], self.et[0], self.sPad))
            fill.add(8, lambda: k.mfma(True, accK, pk[0:4], pv[0:4], 0))
            fill.add(8, lambda: k.mfma(True, accK, pk[4:8], pv[4:8], accK))
        pre_read[62] = b2
        pre_read[72] = self.bar_wait(('q', 4), ('q', 5), ('q', 6))
        self.run_slots(slots, pre_read, pre_mfma, post, fill, dq)
        fill.drain(); self.stamp('p2end')
        for _, f in self.cs_pack(csQ, 2): f()
        k.S("s_lshl_b32", T[3], self.sGrp, 14); k.S("s_lshl_b32", T[4], self.sRt, 10); k.S("s_add_u32", T[4], T[4], T[3]); k.S("s_add_u32", T[4], T[4], EXA)
        k.V("v_lshl_add_u32", tmp[4], self.lane, 4, T[4])
        for d in range(4): k.ds_write("ds_write_b128", tmp[4], accK[4 * d:4 * d + 4], d * 4096)
        k.S("s_lshl_b32", T[4], self.sRt, 12); k.S("s_add_u32", T[4], T[4], T[3]); k.S("s_add_u32", T[4], T[4], EXA)
        k.V("v_lshl_add_u32", tmp[5], self.lane, 4, T[4])
        self.bar_wait(lg=True)()
        for sw in range(4): k.ds_read("ds_read_b128", accV[4 * sw:4 * sw + 4], tmp[5], sw * 1024)
        for _, f in self.cs_apply(csQ, 2, accQ, True): f()
        for i in range(4):
            k.V("v_add_f32", accV[i], accV[i], accV[4 + i]); k.V("v_add_f32", accV[8 + i], accV[8 + i], accV[12 + i])
        for i in range(4): k.V("v_add_f32", accV[i], accV[i], accV[8 + i])
        k.gstore(accV[0:4], self.vST, self.sWS, 0, mod=" sc1", tok=('pst',))
        self.stamp('p3end')
        k.S("s_lshl_b32", T[1], self.sI, 2); k.S("s_add_u32", T[1], T[1], self.sRt)
        k.S("s_lshl_b32", T[2], T[1], 4); k.S("s_add_u32", T[2], T[2], head); k.S("s_lshl_b32", T[2], T[2], 11); k.S("s_add_u32", T[2], T[2], QB)
        vSQ = self.vWH
        k.V("v_lshl_add_u32", vSQ, self.lane, 4, T[2])
        k.S("s_mov_b32", self.sCol[0], T[1])
        def qepi():
            it = []
            for g4 in range(4):
                it += self.phi4([accQ[4 * g4 + i] for i in range(4)], [self.cc] * 4, pk[2 * g4:2 * g4 + 2])
                if g4 % 2 == 1:
                    h = g4 // 2
                    it.append((4, lambda h=h: k.gstore(pk[4 * h:4 * h + 4], vSQ, self.sWS, 0, imm=1024 * h, mod=" sc1", tok=('fin',))))
            return it
        def pflag_then_qaddr():
            self.flag_store(1, [('pst',)])
            self.flag_addr(FLQ, self.sCol[0], 4, head)
            k.S("s_add_u32", T[4], self.sTag[0], 1); k.V("v_mov_b32", self.vFV[0], T[4])
        k.S("s_cmp_eq_u32", self.sIsRed, 1)
        k.branch("s_cbranch_scc1", "L_red")
        k.S("s_cmp_eq_u32", self.sGrp, 1)
        k.branch("s_cbranch_scc1", "L_qB")
        st = self.save()
        self.p2a_preamble(qepi(), mid=pflag_then_qaddr)
        self.stamp('tail')
        self.joinA.append(self.exit_state()); k.branch("s_branch", "L_p2a")
        self.restore(st)
        k.label("L_qB")
        if c['prio']: k.sraw(f"s_setprio {c['prio']}")
        for _, f in qepi(): f()
        self.job_p2_b(3)()
        pflag_then_qaddr()
        self.stamp('tail')
        self.joinB.append(self.exit_state()); k.branch("s_branch", "L_p2b")
        self.restore(st)
        k.label("L_red")
        for _, f in qepi(): f()
        pflag_then_qaddr()
        self.flag_store(1, [('fin',)])
        self.stamp('tail')
        self.reducer()

    def reducer(self):
        k, T, tmp, lane = self.k, self.sT, self.tmp, self.lane
        vP, vPA, vD = v(44, 2), v(46), v(47)
        k.S("s_lshl_b32", T[1], self.sRho, 12); k.S("s_add_u32", T[1], T[1], FLP)
        k.V("v_lshl_add_u32", tmp[4], lane, 7, T[1]); k.V("v_mov_b32", tmp[5], OOB)
        k.V("v_cmp_gt_u32", VCC, 32, lane); k.V("v_cndmask_b32", vPA, tmp[5], tmp[4])
        self.poll_issue(vP, vPA)
        k.S("s_lshr_b32", T[1], self.sRho, 1); k.S("s_lshl_b32", T[1], T[1], 16); k.S("s_and_b32", T[2], self.sRho, 1); k.S("s_lshl_b32", T[2], T[2], 11)
        k.S("s_add_u32", T[1], T[1], T[2]); k.S("s_lshl_b32", T[2], self.sWv, 7); k.S("s_add_u32", T[1], T[1], T[2]); k.S("s_add_u32", T[1], T[1], PB)
        k.V("v_lshrrev_b32", tmp[4], 3, lane); k.V("v_and_b32", tmp[5], 7, lane)
        k.V("v_lshlrev_b32", tmp[4], 12, tmp[4]); k.V("v_lshl_add_u32", tmp[4], tmp[5], 4, tmp[4]); k.V("v_add_u32", tmp[4], T[1], tmp[4])
        self.poll_check(vP, vPA, vD, 1, (-1, 0))
        self.stamp('c1')
        A, B = v(60, 8), v(68, 8)
        k.S("s_mov_b32", T[2], 32768)
        for i2, dst in enumerate((A, B)):
            for qq in range(2): k.gload(dst[4 * qq:4 * qq + 4], tmp[4], self.sWS, T[2] if i2 else 0, imm=1024 * qq, mod=" sc1")
        k.S("s_and_b32", T[3], self.sWv, 3); k.S("s_cmp_eq_u32", T[3], 3); k.S("s_cselect_b32", T[3], 4, 8)
        k.V("v_cmp_gt_u32", VCC, T[3], tmp[5]); k.V("v_mov_b32", tmp[6], 1.0); k.V("v_mov_b32", tmp[7], self.sLn2)
        k.V("v_cndmask_b32", tmp[6], tmp[6], tmp[7])
        k.S("s_and_b32", T[3], self.sRho, self.sGrp); k.S("s_and_b32", T[3], T[3], 1); k.S("s_cmp_eq_u32", T[3], 1); k.S("s_cselect_b32", T[3], 0, 1.0)
        k.V("v_mul_f32", tmp[7], T[3], tmp[6])
        k.S("s_lshl_b32", T[1], self.sRho, 10); k.S("s_lshl_b32", T[2], self.sWv, 7); k.S("s_add_u32", T[1], T[1], T[2]); k.S("s_add_u32", T[1], T[1], KVB)
        k.V("v_lshl_add_u32", tmp[4], lane, 4, T[1]); k.V("v_mov_b32", tmp[5], OOB)
        k.V("v_cmp_gt_u32", VCC, 8, lane); k.V("v_cndmask_b32", tmp[4], tmp[5], tmp[4])
        for i in range(8): k.V("v_add_f32", A[i], A[i], B[i])
        for i in range(8): k.emit(f"v_add_f32_dpp {B[i]}, {A[i]}, {A[i]} row_ror:8 row_mask:0xf bank_mask:0xf", 'perm', rd=[A[i]], wr=[B[i]])
        for op in ("v_permlane16_swap_b32", "v_permlane32_swap_b32"):
            for i in range(8): k.V("v_mov_b32", A[i], B[i])
            for i in range(8): k.V(op, A[i], B[i])
            for i in range(8): k.V("v_add_f32", B[i], A[i], B[i])
        for i in range(8): k.V("v_mul_f32", B[i], tmp[6] if i < 4 else tmp[7], B[i])
        for i in range(4): k.V("v_cvt_pk_bf16_f32", A[i], B[2 * i], B[2 * i + 1])
        k.gstore(A[0:4], tmp[4], self.sWS, 0, mod=" sc1", tok=('kv',))
        k.wait_tok(('kv',)); k.barrier()
        k.S("s_cmp_eq_u32", self.sWv, 0)
        k.branch("s_cbranch_scc0", "L_fin")
        k.S("s_lshr_b32", T[0], self.sRho, 3); k.S("s_and_b32", T[3], self.sRho, 7)
        self.flag_addr(FLK, T[0], 3, T[3])
        self.flag_store(1, [])
        self.stamp('c2')
        k.S("s_cmp_eq_u32", self.sRho, 0)
        k.branch("s_cbranch_scc0", "L_fin")
        k.V("v_lshlrev_b32", tmp[4], 7, lane); k.V("v_add_u32", tmp[4], FLK, tmp[4]); k.V("v_mov_b32", tmp[5], OOB)
        k.V("v_cmp_gt_u32", VCC, 32, lane); k.V("v_cndmask_b32", vPA, tmp[5], tmp[4])
        self.poll_issue(vP, vPA); self.poll_check(vP, vPA, vD, 1, (-1, 0))
        k.V("v_lshrrev_b32", tmp[4], 2, lane); k.V("v_lshlrev_b32", tmp[4], 13, tmp[4]); k.V("v_and_b32", tmp[5], 3, lane)
        k.V("v_lshl_add_u32", tmp[4], tmp[5], 8, tmp[4])
        for h in range(2):
            k.V("v_add_u32", vPA, FLH + 1024 * h, tmp[4])
            self.poll_issue(vP, vPA); self.poll_check(vP, vPA, vD, 1, (-1, -1))
        k.V("v_mov_b32", tmp[4], 0); k.V("v_mov_b32", tmp[5], OOB); k.V("v_cmp_eq_u32", VCC, 0, lane); k.V("v_cndmask_b32", tmp[4], tmp[5], tmp[4])
        k.V("v_mov_b32", self.vFV[0], self.sTag[0])
        k.gstore(self.vFV, tmp[4], self.sWS, 0, imm=EPOCH, mod=" sc1")
        k.branch("s_branch", "L_fin")

    def t2_base(self, dst0, dst1, base):
        k, tmp = self.k, self.tmp
        return [(4, lambda: k.V("v_bfe_u32", tmp[4], self.lane, 2, 2)),
                (4, lambda: k.V("v_lshrrev_b32", tmp[5], 5, self.lane)),
                (4, lambda: k.V("v_lshl_add_u32", tmp[4], tmp[5], 2, tmp[4])),
                (4, lambda: k.V("v_lshl_add_u32", tmp[4], tmp[4], 7, base)),
                (4, lambda: k.V("v_add_u32", dst0, tmp[4], self.vColb)),
                (4, lambda: k.V("v_xor_b32", tmp[5], 64, self.vColb)),
                (4, lambda: k.V("v_add_u32", dst1, tmp[4], tmp[5]))]
    def job_p2_a(self, n):
        k = self.k
        def f():
            if n % 2 == 0: self.unit_w(n // 2)
            src = self.sUW[2] if n == 1 else self.sUW[0]
            r, off = self.a_pos(n)
            k.S("s_add_u32", M0, self.sMp[r], off)
            b = 2 * (n % 2)
            if 'xW2' in self.c.get('exp', '') and n > 3: return
            k.dma(self.vP2d[b], self.sP2, src, 0, ('p2', n)); k.dma(self.vP2d[b + 1], self.sP2, src, 1024, ('p2', n))
        return f
    def job_p2_b(self, n):
        k, T = self.k, self.sT
        def f():
            k.S("s_mul_i32", T[1], self.sRt, 112 * 896); k.S("s_add_u32", T[1], T[1], (n // 2) * 28 * 896)
            k.S("s_add_u32", M0, self.sMp[0 if n < 4 else 1], (n % 4) * 2048)
            b = 2 * (n % 2)
            k.dma(self.vP2d[b], self.sP2, T[1], 0, ('p2', n)); k.dma(self.vP2d[b + 1], self.sP2, T[1], 1024, ('p2', n))
        return f
    def act(self, n, rt): return a(8 * (n % 14) + 4 * rt, 4)
    def act_load(self, n):
        k = self.k
        if n % 2 == 0: self.unit_a(n // 2)
        x = self.c.get('exp', '')
        if 'actx' in x:
            for rt in range(2): k.gload(self.act(n, rt), self.vP2d[0], self.sX, self.sUW[1], imm=1024 * (n % 2) + 2048 * rt, mod=" sc1")
            return
        if 'nosc' in x:
            for rt in range(2): k.gload(self.act(n, rt), self.vAct[rt], self.sWS, self.sUW[1], imm=1024 * (n % 2))
            return
        for rt in range(2): k.gload(self.act(n, rt), self.vAct[rt], self.sWS, self.sUW[1], imm=1024 * (n % 2), mod=" sc1")
    def p2a_regs(self):
        self.vAct = [v(76), v(77)]; self.aP, self.aPA, self.aD = v(78, 2), v(80), v(81)
        self.vT2 = [v(82), v(83), v(84), v(85)]
    def p2a_preamble(self, epi, mid):
        k, T, tmp, lane = self.k, self.sT, self.tmp, self.lane
        self.p2a_regs()
        k.V("v_and_b32", tmp[4], 1, lane); k.V("v_lshlrev_b32", tmp[4], 11, tmp[4])
        k.V("v_bfe_u32", tmp[5], lane, 1, 1); k.V("v_lshl_add_u32", tmp[4], tmp[5], 8, tmp[4])
        k.V("v_bfe_u32", tmp[5], lane, 2, 1); k.V("v_lshl_add_u32", tmp[4], tmp[5], 7, tmp[4])
        k.S("s_lshl_b32", T[1], self.sI2, 12); k.S("s_lshl_b32", T[2], self.sRt, 9); k.S("s_add_u32", T[1], T[1], T[2]); k.S("s_add_u32", T[1], T[1], FLH)
        k.V("v_add_u32", tmp[4], T[1], tmp[4]); k.V("v_mov_b32", tmp[5], OOB)
        k.V("v_cmp_gt_u32", VCC, 8, lane); k.V("v_cndmask_b32", self.aPA, tmp[5], tmp[4])
        self.stamp('X')
        self.poll_issue(self.aP, self.aPA)
        self.stamp('pi')
        k.S("s_mul_i32", T[1], self.sI2, 224 * 1024); k.S("s_mul_i32", T[2], self.sRt, 28 * 1024); k.S("s_add_u32", T[1], T[1], T[2]); k.S("s_add_u32", T[1], T[1], HB)
        k.V("v_lshl_add_u32", self.vAct[0], lane, 4, T[1]); k.V("v_add_u32", self.vAct[1], 112 * 1024, self.vAct[0])
        self.job_p2_a(3)()
        for _, f in self.t2_base(self.vT2[0], self.vT2[1], self.sMp[0]) + self.t2_base(self.vT2[2], self.vT2[3], self.sMp[1]): f()
        self.stamp('j3')
        n1 = (len(epi) * 2) // 5
        for _, f in epi[:n1]: f()
        self.stamp('e1')
        if mid: mid()
        self.stamp('preG0')
        self.poll_check(self.aP, self.aPA, self.aD, 1, 0xff)
        self.stamp('G0')
        rest = epi[n1:]
        step = max(1, len(rest) // 5)
        for n in range(4):
            self.act_load(n)
            self.stamp(f'al{n}')
            for _, f in rest[n * step:(n + 1) * step]: f()
        for _, f in rest[4 * step:]: f()
        self.pre_acts = 4
    def final_write_addrs(self, regs, base):
        k, tmp = self.k, self.tmp
        k.V("v_and_b32", tmp[4], 31, self.lane); k.V("v_lshl_add_u32", tmp[4], tmp[4], 8, base)
        k.V("v_lshrrev_b32", tmp[5], 5, self.lane); k.V("v_and_b32", tmp[6], 7, self.lane); k.V("v_xor_b32", tmp[5], tmp[5], tmp[6])
        for q in range(4):
            k.V("v_xor_b32", tmp[6], 2 * q, tmp[5]); k.V("v_lshl_add_u32", regs[q], tmp[6], 4, tmp[4])
    def x_res_load(self):
        k, T, tmp = self.k, self.sT, self.tmp
        self.vXO, self.xres = v(4), v(8, 4)
        k.S("s_lshl_b32", T[1], self.sI2, 3); k.S("s_add_u32", T[1], T[1], self.sWv); k.S("s_mul_i32", T[1], T[1], 8 * 896)
        k.S("s_lshl_b32", T[2], self.sC, 7); k.S("s_add_u32", T[1], T[1], T[2])
        k.V("v_lshrrev_b32", tmp[4], 3, self.lane); k.V("v_and_b32", tmp[5], 7, self.lane); k.V("v_lshlrev_b32", tmp[5], 4, tmp[5])
        k.S("s_movk_i32", T[2], 896); k.V("v_mad_u32_u24", tmp[4], tmp[4], T[2], tmp[5]); k.V("v_add_u32", self.vXO, T[1], tmp[4])
        k.gload(self.xres, self.vXO, self.sX, 0)

    def phase2a(self):
        k, T, c = self.k, self.sT, self.c
        k.label("L_p2a")
        self.merge(self.joinA)
        self.p2a_regs()
        look, wl = c['look'], c['wl']
        accF = [[v(28, 16), v(44, 16)], [v(60, 16), v(92, 16)]]
        def wf(n, ct): return a(112 + 4 * ((2 * n + ct) % 6), 4)
        def wread(n):
            k.wait_tok(('p2', n))
            r, off = self.a_pos(n)
            for ct in range(2):
                k.ds_read("ds_read_b64_tr_b16", wf(n, ct)[0:2], self.vT2[2 * r + ct], off)
                k.ds_read("ds_read_b64_tr_b16", wf(n, ct)[2:4], self.vT2[2 * r + ct], off + 1024)
        wread(0); wread(1)
        nw, na = 4, self.pre_acts
        checks = {8: (2, 0xff), 16: (3, 0xff), 24: (4, 0xf0)}
        for n in range(28):
            k.wait_regs(wf(n, 0), wf(n, 1), self.act(n, 0), self.act(n, 1))
            i = 0
            for rt in range(2):
                for ct in range(2):
                    k.mfma(True, accF[ct][rt], wf(n, ct), self.act(n, rt), 0 if n == 0 else accF[ct][rt])
                    if i == 0 and n + 2 < 28: wread(n + 2)
                    if i == 1:
                        cnt = 0
                        while na < 28 and na <= n + look and cnt < 2:
                            if na in checks:
                                self.stamp(f'b{na // 8}')
                                self.poll_check(self.aP, self.aPA, self.aD, *checks[na])
                                self.stamp(f'c{na // 8}')
                            self.act_load(na); na += 1; cnt += 1
                        if na + 2 in checks or (na + 3 in checks and False): self.poll_issue(self.aP, self.aPA)
                    if i == 3:
                        cnt = 0
                        while nw < 28 and nw <= n + wl and nw - 11 <= n and cnt < 2:
                            self.job_p2_a(nw)(); nw += 1; cnt += 1
                    i += 1
            if n == c['hookn']: self.flag_hook(); self.stamp('hook'); k.barrier(); self.stamp('J')
            self.stamp(f'n{n}')
            if n == 22: self.x_res_load()
        self.stamp('mainend')
        W = [v(12 + 0), v(13), v(14), v(15)]
        W = [v(108), v(109), v(110), v(111)]
        self.final_write_addrs(W, self.sMp[1])
        for rt in range(2):
            for ct in range(2):
                for q in range(4): k.ds_write("ds_write_b128", W[q], accF[ct][rt][4 * q:4 * q + 4], 8192 * rt + 128 * ct)
        self.joinF.append(self.exit_state()); k.branch("s_branch", "L_final")
    def flag_hook(self):
        k = self.k
        self.stamp('h0')
        k.wait_tok(('fin',))
        self.stamp('h1')
        k.gstore(self.vFV, self.vFA, self.sWS, 0, mod=" sc1", tok=('flag',))

    def phase2b(self):
        k, T, tmp, lane, c = self.k, self.sT, self.tmp, self.lane, self.c
        k.label("L_p2b")
        self.merge(self.joinB)
        vPQ, vKV, vP, vPA, vD, vPK = [v(10), v(11)], v(15), v(16, 2), v(18), v(19), v(110)
        vT2 = [v(20), v(23), v(108), v(109)]
        rc, rc2, den = v(12), v(13), v(14)
        kv = lambda hh, s_: v(24 + 8 * hh + 4 * s_, 4)
        pq = lambda hh, rt, s_: a(64 + 16 * hh + 8 * rt + 4 * s_, 4)
        N = [v(56, 16), v(72, 16)]; O = [v(88, 8), v(96, 8)]
        accS = [[a(0, 16), a(16, 16)], [a(32, 16), a(48, 16)]]
        k.V("v_and_b32", tmp[4], 1, lane); k.V("v_lshlrev_b32", tmp[4], 11, tmp[4])
        k.V("v_bfe_u32", tmp[5], lane, 1, 2); k.V("v_lshl_add_u32", tmp[4], tmp[5], 7, tmp[4])
        k.S("s_lshl_b32", T[1], self.sI2, 12); k.S("s_lshl_b32", T[2], self.sRt, 9); k.S("s_add_u32", T[1], T[1], T[2]); k.S("s_add_u32", T[1], T[1], FLQ)
        k.V("v_add_u32", tmp[4], T[1], tmp[4])
        k.V("v_mov_b32", tmp[5], OOB); k.V("v_cmp_gt_u32", VCC, 8, lane); k.V("v_cndmask_b32", vPA, tmp[5], tmp[4])
        k.S("s_lshl_b32", T[1], self.sRt, 10); k.S("s_add_u32", T[1], T[1], FLK)
        k.V("v_lshl_add_u32", tmp[4], lane, 7, T[1]); k.V("v_cndmask_b32", vPK, tmp[5], tmp[4])
        k.S("s_lshl_b32", T[1], self.sI2, 16); k.S("s_lshl_b32", T[2], self.sRt, 13); k.S("s_add_u32", T[1], T[1], T[2]); k.S("s_add_u32", T[1], T[1], QB)
        k.V("v_lshl_add_u32", vPQ[0], lane, 4, T[1]); k.V("v_add_u32", vPQ[1], 32768, vPQ[0])
        k.S("s_add_u32", T[1], T[2], KVB); k.V("v_lshl_add_u32", vKV, lane, 4, T[1])
        self.flag_hook()
        self.stamp('hook')
        k.barrier()
        self.stamp('J')
        for n in range(4, 8):
            if 'xWo' not in c.get('exp', ''): self.job_p2_b(n)()
        self.poll_issue(vP, vPA)
        self.poll_check(vP, vPA, vD, 1, 0xff)
        self.stamp('c1')
        k.S("s_movk_i32", T[0], 4096)
        for hh in range(4):
            for rt in range(2):
                for s_ in range(2):
                    if 'nopq' not in c.get('exp', ''): k.gload(pq(hh, rt, s_), vPQ[rt], self.sWS, T[0] if hh >= 2 else 0, imm=2048 * (hh % 2) + 1024 * s_, mod=" sc1")
        self.poll_issue(vP, vPK)
        for _, f in self.t2_base(vT2[0], vT2[1], self.sMp[0]) + self.t2_base(vT2[2], vT2[3], self.sMp[1]): f()
        self.x_res_load()
        self.poll_check(vP, vPK, vD, 1, 0xff)
        self.stamp('c2')
        k.S("s_movk_i32", T[0], 4096)
        for hh in range(4):
            for s_ in range(2):
                k.gload(kv(hh, s_), vKV, self.sWS, T[0] if hh >= 2 else 0, imm=2048 * (hh % 2) + 1024 * s_, mod=" sc1")
        Wf = [v(104, 4), v(112, 4), v(116, 4), v(4 + 0, 4)]
        Wf = [v(104, 4), v(112, 4), v(116, 4), v(16, 4)]
        def wread(hh, f):
            s_, ct = divmod(f, 2); n = 2 * hh + s_
            k.wait_tok(('p2', n))
            r = 0 if n < 4 else 1
            k.ds_read("ds_read_b64_tr_b16", Wf[f][0:2], vT2[2 * r + ct], (n % 4) * 2048)
            k.ds_read("ds_read_b64_tr_b16", Wf[f][2:4], vT2[2 * r + ct], (n % 4) * 2048 + 1024)
        def num(u):
            hh, rt = divmod(u, 2)
            k.mfma(True, N[u % 2], kv(hh, 0), pq(hh, rt, 0), 0)
            k.mfma(True, N[u % 2], kv(hh, 1), pq(hh, rt, 1), N[u % 2])
        def val(u):
            n_, o_ = N[u % 2], O[u % 2]
            it = [(4, lambda: k.V("v_mov_b32", den, n_[12])),
                  (4, lambda: k.V("v_permlane32_swap_b32", n_[12], den)),
                  (4, lambda: k.V("v_add_f32", den, 1e-6, den)),
                  (8, lambda: k.V("v_rcp_f32", rc, den)),
                  (4, lambda: k.V("v_cndmask_b32_e64", rc2, rc, 0, self.sHi))]
            for i in range(8):
                it.append((8, lambda i=i: [k.V("v_mul_f32", n_[j], rc if j < 12 else rc2, n_[j]) for j in (2 * i, 2 * i + 1)]))
                it.append((4, lambda i=i: k.V("v_cvt_pk_bf16_f32", o_[i], n_[2 * i], n_[2 * i + 1])))
            return it
        for f in range(4): wread(0, f)
        num(0); num(1)
        self.stamp('c3')
        for _, f in val(0): f()
        for u in range(8):
            hh, rt = divmod(u, 2)
            fill = Fill()
            if u + 1 < 8: fill.extend(val(u + 1))
            for f in range(4):
                s_, ct = divmod(f, 2)
                k.mfma(True, accS[ct][rt], Wf[f], O[u % 2][4 * s_:4 * s_ + 4], 0 if (hh == 0 and s_ == 0) else accS[ct][rt])
                if rt == 1 and hh < 3: wread(hh + 1, f)
                if f == 0 and u + 2 < 8: num(u + 2)
                fill.run(30)
            fill.drain()
        self.stamp('mainend')
        W = [v(24), v(25), v(26), v(27)]
        self.final_write_addrs(W, self.sMp[0])
        k.S("s_sub_u32", T[1], self.sMp[1], self.sMp[0])
        for rt in range(2):
            if rt == 1:
                for q in range(4): k.V("v_add_u32", W[q], T[1], W[q])
            for ct in range(2):
                for q in range(4): k.ds_write("ds_write_b128", W[q], accS[ct][rt][4 * q:4 * q + 4], 128 * ct)
        self.joinF.append(self.exit_state())

    def final(self):
        k, T, tmp, lane = self.k, self.sT, self.tmp, self.lane
        k.label("L_final")
        self.merge(self.joinF)
        vF, vS = [v(24), v(25)], [v(26), v(27)]
        k.V("v_lshrrev_b32", tmp[4], 3, lane); k.V("v_and_b32", tmp[5], 7, lane); k.V("v_lshlrev_b32", tmp[5], 1, tmp[5])
        k.V("v_xor_b32", tmp[5], tmp[5], tmp[4]); k.V("v_lshlrev_b32", tmp[4], 8, tmp[4])
        k.S("s_lshl_b32", T[1], self.sWv, 11); k.S("s_lshl_b32", T[2], self.sRt, 11)
        k.S("s_cmp_eq_u32", self.sGrp, 0); k.S("s_cselect_b32", T[3], WB, W0R); k.S("s_add_u32", T[2], T[2], T[3])
        for h in range(2):
            if h: k.V("v_xor_b32", tmp[5], 1, tmp[5])
            k.V("v_lshl_add_u32", tmp[6], tmp[5], 4, tmp[4])
            k.V("v_add_u32", vF[h], T[1], tmp[6]); k.V("v_add_u32", vS[h], T[2], tmp[6])
        k.barrier()
        self.stamp('Z')
        F = [v(28 + 8 * i, 8) for i in range(4)]; S = [v(60 + 8 * i, 8) for i in range(4)]
        for src in range(4):
            for h in range(2): k.ds_read("ds_read_b128", F[src][4 * h:4 * h + 4], vF[h], src * 16384)
        for src in range(4):
            for h in range(2): k.ds_read("ds_read_b128", S[src][4 * h:4 * h + 4], vS[h], src * 8192)
        def tree(X):
            for i in range(8): k.V("v_add_f32", X[0][i], X[0][i], X[1][i])
            for i in range(8): k.V("v_add_f32", X[2][i], X[2][i], X[3][i])
            for i in range(8): k.V("v_add_f32", X[0][i], X[0][i], X[2][i])
        tree(F)
        t = F[1]; xu = F[2]
        for i in range(8): k.V("v_mul_f32", t[i], -LOG2E, F[0][i])
        for i in range(8): k.V("v_exp_f32", t[i], t[i])
        for i in range(8): k.V("v_add_f32", t[i], 1.0, t[i])
        for i in range(8): k.V("v_rcp_f32", t[i], t[i])
        tree(S)
        for i in range(8): k.V("v_mul_f32", t[i], t[i], F[0][i])
        for i in range(4):
            k.V("v_lshlrev_b32", xu[2 * i], 16, self.xres[i]); k.V("v_and_b32", xu[2 * i + 1], 0xffff0000, self.xres[i])
        for i in range(8): k.V("v_fmac_f32", xu[i], S[0][i], t[i])
        for i in range(4): k.V("v_cvt_pk_bf16_f32", self.xres[i], xu[2 * i], xu[2 * i + 1])
        k.gstore(self.xres, self.vXO, self.sOUT, 0)

    def build(self):
        k = self.k
        self.joinF = []
        self.prologue()
        k.S("s_cmp_eq_u32", self.sIsH, 1)
        k.branch("s_cbranch_scc0", "L_roleQ")
        st = self.save()
        self.role_h()
        self.restore(st)
        self.role_qkv()
        self.phase2a()
        self.phase2b()
        self.final()
        k.label("L_fin")
        k.raw("  s_waitcnt vmcnt(0)")
        self.stamp_flush()
        k.label("L_end")
        k.raw("  s_endpgm")
        head = open(__file__.rsplit('/', 1)[0] + "/header.txt").read() if '/' in __file__ else open("header.txt").read()
        head = head.replace("@LDS@", str(LDS_BYTES))
        tail = f""".section .rodata,"a"
.p2align 6
.amdhsa_kernel {NAME}_kernel
  .amdhsa_next_free_vgpr {NV + NA}
  .amdhsa_next_free_sgpr 102
  .amdhsa_accum_offset {NV}
  .amdhsa_group_segment_fixed_size 0
  .amdhsa_kernarg_size 72
  .amdhsa_user_sgpr_count 2
  .amdhsa_user_sgpr_kernarg_segment_ptr 1
  .amdhsa_system_sgpr_workgroup_id_x 1
  .amdhsa_float_denorm_mode_32 3
.end_amdhsa_kernel
"""
        if self.c['stamps']: head += '; stamps: ' + ','.join(self.c['stamps']) + '\n'
        return head + k.text() + tail

if __name__ == "__main__":
    import json
    out = sys.argv[1]
    cfg = json.loads(sys.argv[2]) if len(sys.argv) > 2 else {}
    g = Gen(**cfg)
    txt = g.build()
    open(out, "w").write(txt)
    n = sum(1 for l in g.k.out if l.startswith("  ") and not l.startswith("  ;"))
    print(f"{out}: {n} instructions, {g.k.nops} nop states, {g.k.waits} auto waits", file=sys.stderr)
    if cfg.get('verbose'):
        for l in g.k.log: print(l, file=sys.stderr)
```

```python
import sys, math
from asmlib import *

NAME = "recurrent_scan__linear_attn_block__dense_activation_silu__prompt"
NV, NA = 120, 136
EPOCH, FLH, FLQ, FLP, FLK = 0, 0x10000, 0x30000, 0x50000, 0x70000
KVB, PB, QB, HB, WSEND = 0x78000, 0x80000, 0x200000, 0x400000, 0xB00000
STAMPS = 0xC00000
XR, W0R, WB, MISC = 0, 65536, 98304, 155648
KVR, EXA = 90112, 65536
CSA, STA, R2A = MISC, MISC + 4096, MISC + 3072
LDS_BYTES = 163840
OOB = 0x40000000
LOG2E = 1.4426950408889634
LN2 = 0.6931471805599453
ONES = 0x3f803f80

DEF = dict(LA=3, bud=26, stamps=False, spin=200000, warm=True, codepf=True, look=6, stop=None, sleep=8, rot=2, prio=1, hookn=1, wl=9, deep=1, l2pf=0, xmap=1, redoff=4)

class Gen:
    def __init__(self, **cfg):
        self.c = dict(DEF); self.c.update(cfg)
        self.k = K()
        self.sa = Alloc('s', 52, 100)
        self.joinA, self.joinB = [], []
        self.lane = v(0); self.vFA = v(1); self.vFV = v(2, 2); self.vP2d = [v(4 + i) for i in range(4)]
        self.vRowp, self.vColb, self.vST, self.vWD = v(8), v(9), v(10), v(11)
        self.cc, self.irs, self.sum, self.sq, self.vCSW, self.vCSR = v(15), v(16), v(17), v(18), v(19), v(20)
        self.vStampA, self.vStampD, self.vWH = v(21), v(22), v(23)
        self.IND, self.mneg, self.et, self.xt = v(24, 4), v(28, 4), v(32, 4), v(36, 8)
        self.sp = v(34, 2); self.eo = self.xt
        self.vTX = [v(44 + i) for i in range(4)]; self.vXR = [v(48 + i) for i in range(4)]
        self.vXT = [v(52), v(53)]; self.vXD = [v(54), v(55)]; self.vTY = [v(56 + i) for i in range(4)]
        self.blk = [v(60, 16), v(76, 16), v(92, 16)]
        self.cs = [v(108, 4), v(112, 4), v(116, 4)]
        self.tmp = [v(92), v(93), v(94), v(95), v(12), v(13), v(14), v(96)]
        self.vDummy, self.vDummy2, self.vWH2 = v(21), v(22), v(116)

    STAMP_PAIRS = [4, 6, 8, 10, 12, 14, 16, 18, 44, 46, 20, 100]
    def stamp(self, name):
        if not self.c['stamps']: return
        names = self.c['stamps']
        if name not in names: return
        for idx in [i for i, x in enumerate(names) if x == name]: self._stamp(idx)
    def _stamp(self, idx):
        if idx == 0: self.k.raw(f"  s_memrealtime s[{self.STAMP_PAIRS[10]}:{self.STAMP_PAIRS[10] + 1}]")
        op = "s_memrealtime" if (self.c.get('rt') and idx % 2 == 0 and idx > 0) else "s_memtime"
        self.k.raw(f"  {op} s[{self.STAMP_PAIRS[idx]}:{self.STAMP_PAIRS[idx] + 1}]")
    def stamp_flush(self):
        if not self.c['stamps']: return
        k, T, P = self.k, self.sT, self.STAMP_PAIRS
        k.raw(f"  s_memtime s[{P[9]}:{P[9] + 1}]")
        k.raw(f"  s_memrealtime s[{P[11]}:{P[11] + 1}]")
        k.raw("  s_waitcnt lgkmcnt(0)")
        k.raw("  s_mov_b32 s38, 0xd00000")
        k.raw(f"  s_lshl_b32 {T[0]}, s2, 3\n  s_add_u32 {T[0]}, {T[0]}, {self.sWv}\n  s_lshl_b32 {T[0]}, {T[0]}, 7\n  s_add_u32 {T[0]}, {T[0]}, {STAMPS}")
        k.raw(f"  v_mov_b32 v12, 0x40000000\n  v_mov_b32 v13, 0\n  v_cmp_eq_u32 vcc, 0, v0\n  s_nop 1\n  v_cndmask_b32 v12, v12, v13, vcc")
        for i, p in enumerate(P):
            k.raw(f"  v_mov_b32 v14, s{p}\n  buffer_store_dword v14, v12, s[36:39], {T[0]} offen offset:{4 * i}\n  s_nop 1")
        if self.c.get('dbgwg') is not None:
            skip = k.newlabel("Ldbg")
            k.raw(f"  s_lshl_b32 {T[1]}, s2, 3\n  s_add_u32 {T[1]}, {T[1]}, {self.sWv}\n  s_cmp_eq_u32 {T[1]}, {self.c['dbgwg']}\n  s_cbranch_scc0 {skip}")
            k.raw("  s_load_dwordx2 s[40:41], s[0:1], 56\n  s_waitcnt lgkmcnt(0)\n  s_mov_b32 s42, 256\n  s_mov_b32 s43, 0x20000")
            k.raw(f"  s_sub_u32 {T[1]}, s{P[11]}, s{P[10]}\n  v_mov_b32 v14, {T[1]}\n  buffer_store_dword v14, v12, s[40:43], 0 offen\n  s_nop 1")
            for i in range(1, 10):
                k.raw(f"  s_sub_u32 {T[1]}, s{P[i]}, s{P[0]}\n  s_cmp_eq_u32 s{P[i]}, 0\n  s_cselect_b32 {T[1]}, 0, {T[1]}\n  v_mov_b32 v14, {T[1]}\n  buffer_store_dword v14, v12, s[40:43], 0 offen offset:{4 * i}\n  s_nop 1")
            k.label(skip)

    def flag_store(self, val, toks):
        k = self.k
        self.stamp(f'f{val}a')
        k.wait_tok(*toks)
        self.stamp(f'f{val}b')
        k.S("s_add_u32", self.sT[4], self.sTag[0], val)
        k.V("v_mov_b32", self.vFV[0], self.sT[4])
        k.gstore(self.vFV, self.vFA, self.sWS, 0, mod=" sc1", tok=('flag',))

    def poll_issue(self, vP, vPA):
        self.k.gload(vP, vPA, self.sWS, 0, mod=" sc1")

    def poll_check(self, vP, vPA, vD, need, mask):
        k = self.k
        top, done = k.newlabel("Lspin"), k.newlabel("Lok")
        k.wait_regs(vP)
        k.label(top)
        k.V("v_subrev_u32", vD, self.sTag[0], vP[0])
        k.V("v_cmp_eq_u32", VCC, self.sTag[1], vP[1])
        k.V("v_subrev_u32", vD, need, vD)
        k.V("v_cmp_ge_u32_e64", self.sM0, 15 - need, vD)
        k.S("s_and_b64", self.sM0, self.sM0, VCC)
        k.S("s_mov_b64", self.sM1, mask) if not isinstance(mask, tuple) else (k.S("s_mov_b32", self.sM1[0], mask[0]), k.S("s_mov_b32", self.sM1[1], mask[1]))
        k.S("s_and_b64", self.sM0, self.sM0, self.sM1)
        k.S("s_cmp_eq_u64", self.sM0, self.sM1)
        k.branch("s_cbranch_scc1", done)
        k.S("s_sub_u32", self.sSpin, self.sSpin, 1)
        k.branch("s_cbranch_scc1", done + "x")
        if self.c['sleep']: k.raw(f"  s_sleep {self.c['sleep']}")
        k.raw(f"  buffer_load_dwordx2 {vP}, {vPA}, {self.sWS}, 0 offen sc1")
        k.raw("  s_waitcnt vmcnt(0)")
        k.raw(f"  s_branch {top}")
        k.label(done + "x")
        k.raw(f"  s_mov_b32 {self.sSpin}, 0")
        k.label(done)

    def prologue(self):
        k, sa, c = self.k, self.sa, self.c
        self.sX, self.sW, self.sP2, self.sWS, self.sOUT, self.sDBG, self.sTMP = (s(n, 4) for n in (24, 28, 32, 36, 40, 44, 48))
        k.S("s_cmp_ge_u32", s(2), 256)
        k.branch("s_cbranch_scc1", "L_end")
        k.raw("  s_load_dwordx4 s[4:7], s[0:1], 0")
        k.raw("  s_load_dwordx2 s[8:9], s[0:1], 16")
        k.raw("  s_load_dwordx4 s[12:15], s[0:1], 32")
        k.raw("  s_load_dwordx4 s[16:19], s[0:1], 48")
        k.raw("  s_load_dwordx2 s[20:21], s[0:1], 64")
        g = sa.get
        self.sTag = g(2); self.sM0 = g(2); self.sM1 = g(2); self.sPad = g(2); self.sHi = g(2)
        self.sT = [g() for _ in range(6)]
        (self.sWv, self.sRt, self.sGrp, self.sI, self.sIdx, self.sIsH, self.sIsRed, self.sRho, self.sI2, self.sC,
         self.sRot2, self.sSpin, self.sXb, self.sMx, self.sMw, self.sRS) = [g() for _ in range(16)]
        self.sAs = [g() for _ in range(7)]
        self.sCol = [g() for _ in range(4)]
        self.sMp = [g() for _ in range(2)]
        self.sUW = [g() for _ in range(3)]
        T = self.sT
        lane, tmp = self.lane, self.tmp
        if c['codepf']:
            k.comment("pull this kernel's code into L2: 1/32 of its lines per workgroup")
            k.raw("  s_getpc_b64 s[48:49]")
            k.label("L_pc")
            k.S("s_and_b32", s(49), s(49), 0xffff)
            k.raw("  s_mov_b32 s50, L_end-L_pc")
            k.S("s_mov_b32", s(51), 0x20000)
            k.S("s_lshr_b32", T[0], s(2), 3)
            k.S("s_lshl_b32", T[0], T[0], 7)
            k.V("v_lshlrev_b32", tmp[0], 12, v(0))
            k.V("v_cmp_gt_u32", VCC, 16, v(0))
            k.V("v_mov_b32", tmp[1], OOB)
            k.V("v_cndmask_b32", tmp[0], tmp[1], tmp[0])
            k.gload(self.vDummy, tmp[0], self.sTMP, T[0])
        k.V("v_lshrrev_b32", tmp[0], 6, v(0))
        k.V("v_and_b32", lane, 63, v(0))
        k.V("v_readfirstlane_b32", self.sWv, tmp[0])
        xcd, n, q, sub = T[0], T[1], T[2], T[3]
        k.S("s_and_b32", xcd, s(2), 7)
        k.S("s_lshr_b32", n, s(2), 3)
        k.S("s_lshr_b32", q, xcd, 1)
        k.S("s_lshr_b32", sub, n, 3)
        k.S("s_and_b32", T[4], xcd, 1)
        k.S("s_lshl_b32", T[4], T[4], 3)
        k.S("s_and_b32", T[5], n, 7)
        k.S("s_add_u32", self.sI, T[4], T[5])
        k.S("s_lshr_b32", self.sIsH, sub, 1)
        k.S("s_and_b32", T[4], sub, 1)
        k.S("s_lshl_b32", self.sIdx, q, 1)
        k.S("s_add_u32", self.sIdx, self.sIdx, T[4])
        k.S("s_and_b32", self.sRt, self.sWv, 3)
        k.S("s_lshr_b32", self.sGrp, self.sWv, 2)
        if c['rot'] == 7:
            k.S("s_lshl_b32", T[4], sub, 1)
            k.S("s_add_u32", T[4], T[4], T[5])
            k.S("s_cmp_ge_u32", T[4], 7); k.S("s_cselect_b32", T[5], 7, 0); k.S("s_sub_u32", T[4], T[4], T[5])
            k.S("s_cmp_ge_u32", T[4], 7); k.S("s_cselect_b32", T[5], 7, 0); k.S("s_sub_u32", self.sAs[0], T[4], T[5])
        elif c['rot'] == 1:
            k.S("s_mov_b32", self.sAs[0], 0)
        else:
            k.S("s_add_u32", T[4], sub, T[5]); k.S("s_and_b32", T[4], T[4], c['rot'] - 1); k.S("s_mul_i32", self.sAs[0], T[4], 7 // c['rot'] + (c['rot'] == 4))
        for p in range(1, 7):
            k.S("s_add_u32", self.sAs[p], self.sAs[p - 1], 1)
            k.S("s_cmp_eq_u32", self.sAs[p], 7)
            k.S("s_cselect_b32", self.sAs[p], 0, self.sAs[p])
        k.S("s_cmp_eq_u32", q, 3); k.S("s_cselect_b32", T[4], 0, 8)
        k.S("s_sub_u32", T[5], n, T[4])
        k.S("s_cmp_lt_u32", T[5], 4); k.S("s_cselect_b32", self.sIsRed, 1, 0)
        k.S("s_add_u32", self.sRho, xcd, c['redoff']); k.S("s_and_b32", self.sRho, self.sRho, 7)
        k.S("s_lshl_b32", self.sRho, self.sRho, 2); k.S("s_and_b32", T[5], n, 3); k.S("s_add_u32", self.sRho, self.sRho, T[5])
        k.S("s_add_u32", T[4], T[4], 4)
        k.S("s_cmp_ge_u32", n, T[4]); k.S("s_cselect_b32", T[4], 4, 0); k.S("s_sub_u32", T[4], n, T[4])
        k.S("s_lshr_b32", self.sC, T[4], 2)
        k.S("s_and_b32", T[4], T[4], 3)
        if c['xmap']:
            k.S("s_and_b32", self.sI2, xcd, 6); k.S("s_lshl_b32", self.sI2, self.sI2, 1); k.S("s_add_u32", self.sI2, self.sI2, T[4])
            k.S("s_bitcmp1_b32", xcd, 0); k.S("s_cselect_b32", T[5], 0, 16); k.S("s_add_u32", self.sI2, self.sI2, T[5])
        else:
            k.S("s_lshl_b32", self.sI2, xcd, 2); k.S("s_add_u32", self.sI2, self.sI2, T[4])
        k.S("s_add_u32", self.sRot2, T[4], self.sC); k.S("s_and_b32", self.sRot2, self.sRot2, 3)
        k.S("s_cmp_eq_u32", self.sIsH, 1); k.S("s_cselect_b32", self.sRS, 3584, 2688)
        k.S("s_lshl_b32", T[4], self.sI, 2); k.S("s_add_u32", T[4], T[4], self.sRt)
        k.S("s_mul_i32", self.sXb, T[4], 32 * 896)
        k.S("s_lshl_b32", self.sMx, self.sRt, 12); k.S("s_lshl_b32", T[4], self.sGrp, 11); k.S("s_add_u32", self.sMx, self.sMx, T[4])
        k.S("s_lshl_b32", self.sMw, self.sWv, 10)
        k.S("s_mov_b32", self.sSpin, c['spin'])
        l3, c7, l4, cs = tmp[0], tmp[1], tmp[2], tmp[3]
        k.V("v_lshrrev_b32", l3, 3, lane)
        k.V("v_and_b32", c7, 7, lane)
        k.V("v_lshrrev_b32", l4, 4, lane)
        k.V("v_xor_b32", tmp[4], c7, l4)
        k.V("v_lshlrev_b32", tmp[4], 4, tmp[4])
        k.S("s_movk_i32", T[4], 896)
        k.V("v_mad_u32_u24", tmp[5], l3, T[4], tmp[4])
        k.S("s_mul_i32", T[5], self.sGrp, 14336)
        k.V("v_add_u32", self.vXD[0], T[5], tmp[5])
        k.V("v_xor_b32", tmp[4], 64, tmp[4])
        k.V("v_mad_u32_u24", tmp[5], l3, T[4], tmp[4])
        k.S("s_add_u32", T[5], T[5], 6144)
        k.V("v_add_u32", self.vXD[1], T[5], tmp[5])
        k.V("v_and_b32", tmp[4], 1, l4)
        k.V("v_lshlrev_b32", tmp[4], 2, tmp[4])
        k.V("v_xor_b32", cs, c7, tmp[4])
        k.S("s_cmp_eq_u32", self.sIsH, 1); k.S("s_cselect_b32", T[5], 7, 6)
        k.V("v_min_u32", tmp[4], T[5], cs)
        k.V("v_lshlrev_b32", tmp[4], 4, tmp[4])
        k.S("s_lshl_b32", T[5], self.sWv, 3)
        k.V("v_add_u32", tmp[5], T[5], l3)
        k.V("v_mad_u32_u24", self.vWD, tmp[5], self.sRS, tmp[4])
        k.V("v_lshlrev_b32", tmp[4], 4, cs)
        k.V("v_mad_u32_u24", tmp[4], l3, T[4], tmp[4])
        k.S("s_lshl_b32", T[5], self.sC, 7)
        k.V("v_add_u32", self.vP2d[0], T[5], tmp[4])
        k.V("v_add_u32", self.vP2d[1], 6144, self.vP2d[0])
        k.V("v_add_u32", self.vP2d[2], 14336, self.vP2d[0])
        k.V("v_add_u32", self.vP2d[3], 14336 + 6144, self.vP2d[0])
        k.hard_wait("s_waitcnt lgkmcnt(0)")
        def srd(d, lo, hi, size):
            k.S("s_mov_b32", d[0], lo); k.S("s_and_b32", d[1], hi, 0xffff)
            k.S("s_mov_b32", d[2], size); k.S("s_mov_b32", d[3], 0x20000)
        srd(self.sX, s(4), s(5), 2048 * 896)
        k.S("s_cmp_eq_u32", self.sIsH, 1)
        k.S("s_cselect_b32", self.sW[0], s(12), s(6)); k.S("s_cselect_b32", self.sW[1], s(13), s(7))
        k.S("s_cselect_b32", self.sW[2], 448 * 3584, 448 * 2688)
        k.S("s_and_b32", self.sW[1], self.sW[1], 0xffff); k.S("s_mov_b32", self.sW[3], 0x20000)
        k.raw("  s_load_dwordx2 %s, s[20:21], %d" % (self.sTag, EPOCH))
        self.sRS64 = self.sRS
        k.S("s_lshl_b32", self.sRS64, self.sRS, 6)
        self.sOnes, self.sLn2 = s(22), s(23)
        k.S("s_mov_b32", self.sOnes, ONES); k.S("s_mov_b32", self.sLn2, LN2)

    def prologue2(self):
        k, c, T, tmp, lane = self.k, self.c, self.sT, self.tmp, self.lane
        def srd(d, lo, hi, size):
            k.S("s_mov_b32", d[0], lo); k.S("s_and_b32", d[1], hi, 0xffff)
            k.S("s_mov_b32", d[2], size); k.S("s_mov_b32", d[3], 0x20000)
        self.warm_setup()
        k.S("s_cmp_eq_u32", self.sGrp, 0)
        k.S("s_cselect_b32", self.sP2[0], s(14), s(8)); k.S("s_cselect_b32", self.sP2[1], s(15), s(9))
        k.S("s_cselect_b32", self.sP2[2], 1792 * 896, 448 * 896)
        k.S("s_and_b32", self.sP2[1], self.sP2[1], 0xffff); k.S("s_mov_b32", self.sP2[3], 0x20000)
        k.S("s_xor_b32", T[0], self.sIsH, 1); k.S("s_and_b32", self.sIsRed, self.sIsRed, T[0])
        k.S("s_cmp_eq_u32", self.sIsRed, 1); k.S("s_cselect_b32", self.sP2[2], 0, self.sP2[2])
        srd(self.sWS, s(20), s(21), WSEND)
        srd(self.sOUT, s(16), s(17), 2048 * 896)
        k.S("s_mov_b32", self.sPad[0], 0xf0000000); k.S("s_mov_b32", self.sPad[1], 0xf0000000)
        k.S("s_mov_b32", self.sHi[0], 0); k.S("s_mov_b32", self.sHi[1], -1)
        if c['stamps']:
            for p in self.STAMP_PAIRS: k.S("s_mov_b32", s(p), 0)
        row, hf, gx, base = tmp[0], tmp[1], tmp[2], tmp[3]
        k.V("v_and_b32", row, 31, lane)
        k.V("v_lshrrev_b32", hf, 5, lane)
        k.V("v_bfe_u32", gx, lane, 1, 3)
        k.S("s_lshl_b32", T[0], self.sRt, 12)
        k.V("v_lshl_add_u32", base, row, 7, T[0])
        def xaddr(dst, sp_reg_or_int):
            k.S("s_add_u32", T[1], self.sRt, sp_reg_or_int); k.S("s_and_b32", T[1], T[1], 3); k.S("s_lshl_b32", T[1], T[1], 1)
            k.V("v_add_u32", tmp[4], T[1], hf); k.V("v_xor_b32", tmp[4], tmp[4], gx)
            k.V("v_lshl_add_u32", dst, tmp[4], 4, base)
        for sp in range(4): xaddr(self.vXR[sp], sp)
        k.S("s_lshl_b32", T[2], self.sGrp, 1); xaddr(self.vXT[0], T[2])
        k.S("s_add_u32", T[2], T[2], 1); xaddr(self.vXT[1], T[2])
        k.S("s_lshl_b32", T[0], self.sGrp, 9); k.S("s_add_u32", T[0], T[0], CSA)
        k.V("v_lshl_add_u32", self.vCSR, row, 4, T[0])
        k.S("s_lshl_b32", T[0], self.sRt, 2)
        k.V("v_add_u32", self.vCSW, T[0], self.vCSR)
        k.V("v_lshrrev_b32", tmp[4], 4, lane); k.V("v_lshrrev_b32", tmp[5], 2, lane)
        k.V("v_xor_b32", tmp[4], tmp[4], tmp[5]); k.V("v_and_b32", tmp[4], 1, tmp[4])
        k.V("v_cmp_eq_u32", VCC, 0, tmp[4]); k.V("v_mov_b32", tmp[5], ONES)
        k.V("v_cndmask_b32", self.IND[0], 0, tmp[5])
        for i in range(1, 4): k.V("v_mov_b32", self.IND[i], self.IND[0])
        k.V("v_bfe_u32", tmp[4], lane, 2, 2)
        k.V("v_lshl_add_u32", self.vRowp, hf, 3, tmp[4])
        k.V("v_bfe_u32", tmp[4], lane, 4, 1); k.V("v_lshlrev_b32", tmp[4], 5, tmp[4])
        k.V("v_and_b32", tmp[5], 3, lane); k.V("v_lshl_add_u32", tmp[4], tmp[5], 3, tmp[4])
        k.V("v_bfe_u32", tmp[5], lane, 3, 1); k.V("v_lshl_add_u32", self.vColb, tmp[5], 6, tmp[4])
        k.V("v_mov_b32", self.sum, 0); k.V("v_mov_b32", self.sq, 0)
        k.hard_wait("s_waitcnt lgkmcnt(0)")
        k.S("s_and_b32", self.sTag[0], self.sTag[0], -16); k.S("s_add_u32", self.sTag[0], self.sTag[0], 16)
        k.V("v_mov_b32", self.vFV[1], self.sTag[1])

    def warm_setup(self):
        k, c, T, tmp, lane = self.k, self.c, self.sT, self.tmp, self.lane
        if c['warm']:
            k.comment("touch the weights once, spread over all workgroups, so later misses are served on-die")
            k.S("s_and_b32", T[0], self.sWv, 3)
            k.S("s_cmp_eq_u32", T[0], 0); k.S("s_cselect_b32", s(48), s(14), s(12)); k.S("s_cselect_b32", s(49), s(15), s(13))
            k.S("s_cmp_eq_u32", T[0], 2); k.S("s_cselect_b32", s(48), s(8), s(48)); k.S("s_cselect_b32", s(49), s(9), s(49))
            k.S("s_cselect_b32", T[1], 13, 49); k.S("s_cselect_b32", s(50), 448 * 896, 1792 * 896)
            k.S("s_cmp_eq_u32", T[0], 3); k.S("s_cselect_b32", s(48), s(6), s(48)); k.S("s_cselect_b32", s(49), s(7), s(49))
            k.S("s_cselect_b32", T[1], 37, T[1]); k.S("s_cselect_b32", s(50), 448 * 2688, s(50))
            k.S("s_and_b32", s(49), s(49), 0xffff); k.S("s_mov_b32", s(51), 0x20000)
            k.S("s_cmp_eq_u32", self.sGrp, 0); k.S("s_cselect_b32", T[2], T[1], 0)
            k.S("s_mul_i32", T[1], T[1], s(2)); k.S("s_lshl_b32", T[1], T[1], 7)
            k.V("v_lshlrev_b32", tmp[4], 7, lane)
            k.V("v_cmp_gt_u32", VCC, T[2], lane)
            k.V("v_mov_b32", tmp[5], OOB)
            k.V("v_cndmask_b32", tmp[4], tmp[5], tmp[4])
            k.V("v_add_u32", self.vWH2, T[1], tmp[4])
    def warm_issue(self):
        if self.c['warm']: self.k.gload(self.vDummy2, self.vWH2, self.sTMP, 0)
        if self.c.get('pagetouch'):
            k, T, tmp, lane = self.k, self.sT, self.tmp, self.lane
            st = self.c['pagetouch']
            k.S("s_cmp_eq_u32", self.sGrp, 0); k.S("s_cselect_b32", T[0], 0, OOB)
            k.S("s_cmp_eq_u32", self.sRt, 0); k.S("s_cselect_b32", T[1], T[0], OOB)
            k.S("s_mov_b32", T[2], st); k.V("v_mul_lo_u32", tmp[5], lane, T[2]); k.V("v_add_u32", tmp[5], 0x180000 % st + 64, tmp[5])
            k.gload(self.vDummy, tmp[5], self.sWS, T[1])
            k.S("s_cmp_eq_u32", self.sRt, 1); k.S("s_cselect_b32", T[1], T[0], OOB)
            k.V("v_lshlrev_b32", tmp[5], 15, lane)
            k.gload(self.vDummy, tmp[5], self.sOUT, T[1])

    def l2pf_job(self, q):
        k, T, tmp, lane = self.k, self.sT, self.tmp, self.lane
        def f():
            if q == 0:
                k.S("s_lshr_b32", T[0], s(2), 3); k.S("s_and_b32", T[0], T[0], 15); k.S("s_lshl_b32", T[0], T[0], 2); k.S("s_add_u32", T[0], T[0], self.sRt)
                k.S("s_cmp_eq_u32", self.sGrp, 0); k.S("s_cselect_b32", T[1], 196 * 128, 49 * 128); k.S("s_mul_i32", T[0], T[0], T[1])
                k.V("v_lshl_add_u32", self.vWH2, lane, 7, T[0]); k.V("v_mov_b32", tmp[5], OOB)
                k.V("v_cmp_gt_u32", VCC, 49, lane); k.V("v_cndmask_b32", self.vWH2, tmp[5], self.vWH2)
                k.gload(self.vDummy2, self.vWH2, self.sP2, 0)
            else:
                k.S("s_cmp_eq_u32", self.sGrp, 0); k.S("s_cselect_b32", T[0], q * 49 * 128, OOB)
                k.gload(self.vDummy2, self.vWH2, self.sP2, T[0])
        return f

    def tr_addrs(self, dst, omul, base):
        k, T, tmp = self.k, self.sT, self.tmp
        items = []
        items.append((8, lambda: (k.S("s_mul_i32", T[3], self.sGrp, omul), k.V("v_add_u32", tmp[6], T[3], self.vColb))))
        items.append((4, lambda: k.V("v_and_b32", tmp[6], 127, tmp[6])))
        items.append((4, lambda: k.V("v_lshl_add_u32", tmp[6], self.vRowp, 7, tmp[6])))
        for sp in range(4):
            def f(sp=sp):
                k.S("s_add_u32", T[3], self.sRt, sp); k.S("s_and_b32", T[3], T[3], 3); k.S("s_lshl_b32", T[3], T[3], 11)
                k.S("s_add_u32", T[3], T[3], base)
                k.V("v_add_u32", dst[sp], T[3], tmp[6])
            items.append((20, f))
        return items

    def job_x(self, p):
        k, T = self.k, self.sT
        def f():
            k.S("s_add_u32", M0, self.sMx, XR + (p % 4) * 16384)
            k.S("s_lshl_b32", T[0], self.sAs[p], 7); k.S("s_add_u32", T[0], T[0], self.sXb)
            k.dma(self.vXD[0], self.sX, T[0], 0, ('x', p)); k.dma(self.vXD[1], self.sX, T[0], 1024, ('x', p))
        return f
    def job_w(self, name, p, col, lds):
        k, T = self.k, self.sT
        def f():
            k.S("s_add_u32", M0, self.sMw, lds)
            k.S("s_mul_i32", T[0], self.sAs[p], self.sRS64); k.S("s_add_u32", T[0], T[0], col)
            k.dma(self.vWD, self.sW, T[0], 0, (name, p))
        return f
    def unit_ra(self, pos):
        k, T = self.k, self.sT
        G, q = pos // 4, pos % 4
        k.S("s_add_u32", T[1], self.sRot2, q); k.S("s_and_b32", T[1], T[1], 3 if G < 3 else 1)
        k.S("s_lshr_b32", T[2], T[1], 1); k.S("s_add_u32", T[2], T[2], 2 * G)
        k.S("s_and_b32", T[1], T[1], 1)
    def unit_w(self, pos):
        k, T, U = self.k, self.sT, self.sUW
        self.unit_ra(pos)
        k.S("s_add_u32", T[2], T[2], T[1])
        k.S("s_cmp_eq_u32", T[2], 7); k.S("s_cselect_b32", T[2], 0, T[2])
        k.S("s_mul_i32", T[1], T[1], 7); k.S("s_add_u32", T[2], T[2], T[1])
        k.S("s_mul_i32", T[1], self.sRt, 14); k.S("s_add_u32", T[2], T[2], T[1])
        k.S("s_mul_i32", U[0], T[2], 32 * 896)
    def unit_a(self, pos):
        k, T, U = self.k, self.sT, self.sUW
        self.unit_ra(pos)
        k.S("s_mul_i32", T[1], T[1], 7); k.S("s_add_u32", T[2], T[2], T[1]); k.S("s_lshl_b32", U[1], T[2], 11)
    def a_pos(self, n):
        pos = n % 11
        return (0, pos * 2048) if pos < 3 else (1, (pos - 3) * 2048)
    def job_p2_shared(self, n):
        k, T = self.k, self.sT
        def f():
            if n % 2 == 0:
                self.unit_w(n // 2)
                k.S("s_mul_i32", T[1], self.sRt, 112 * 896); k.S("s_add_u32", T[1], T[1], (n // 2) * 28 * 896)
                k.S("s_cmp_eq_u32", self.sGrp, 0); k.S("s_cselect_b32", self.sUW[2], self.sUW[0], T[1])
            k.S("s_add_u32", M0, self.sMp[0], n * 2048)
            b = 2 * (n % 2)
            k.dma(self.vP2d[b], self.sP2, self.sUW[2], 0, ('p2', n)); k.dma(self.vP2d[b + 1], self.sP2, self.sUW[2], 1024, ('p2', n))
        return f
    def p2_bases(self):
        k, T = self.k, self.sT
        k.S("s_mul_i32", T[1], self.sRt, 6144); k.S("s_add_u32", T[1], T[1], WB + 32768)
        k.S("s_lshl_b32", T[2], self.sRt, 13); k.S("s_add_u32", T[3], T[2], WB)
        k.S("s_cmp_eq_u32", self.sGrp, 0)
        k.S("s_cselect_b32", self.sMp[0], T[1], T[3])
        k.S("s_lshl_b32", T[1], self.sRt, 14); k.S("s_add_u32", T[2], T[2], W0R)
        k.S("s_cmp_eq_u32", self.sGrp, 0)
        k.S("s_cselect_b32", self.sMp[1], T[1], T[2])

    def x_reads(self, p):
        k = self.k
        off = XR + (p % 4) * 16384
        for t in range(2): k.ds_read("ds_read_b128", self.xt[4 * t:4 * t + 4], self.vXT[t], off)
        for sp in range(4): k.ds_read("ds_read_b128", a(16 * p + 4 * sp, 4), self.vXR[sp], off)
    def dots(self):
        k = self.k
        for i in range(8):
            k.V("v_dot2c_f32_bf16", self.sq, self.xt[i], self.xt[i])
            k.V("v_dot2c_f32_bf16", self.sum, self.sOnes, self.xt[i])
    def run_slots(self, slots, pre_read, pre_mfma, post_mfma, fill, dq, first_ring=0, tail_reads=None):
        k, LA = self.k, self.c['LA']
        NF = 6
        assert 2 <= LA <= 4
        dq.sort(key=lambda e: e[0])
        def frag(n): return a(112 + 4 * ((n + first_ring) % NF), 4)
        def read(n):
            if n in pre_read: pre_read[n]()
            sl = slots[n]
            k.ds_read("ds_read_b64_tr_b16", frag(n)[0:2], sl['addr'], sl['off'])
            k.ds_read("ds_read_b64_tr_b16", frag(n)[2:4], sl['addr'], sl['off'] + sl['second'])
        for n in range(min(LA, len(slots))): read(n)
        for n, sl in enumerate(slots):
            if n in pre_mfma: pre_mfma[n]()
            x = a(4 * sl['xi'], 4)
            C = 0 if sl['first'] else sl['acc']
            if n % 2 == 0 and n + 1 < len(slots): k.wait_regs(frag(n), frag(n + 1), x)
            if sl['wfirst']: k.mfma(True, sl['acc'], frag(n), x, C)
            else: k.mfma(True, sl['acc'], x, frag(n), C)
            if sl['cs'] is not None: k.mfma(False, sl['cs'], self.IND, frag(n), 0 if sl['csfirst'] else sl['cs'])
            if n + LA < len(slots): read(n + LA)
            if n in post_mfma: post_mfma[n]()
            while dq and dq[0][0] <= n: dq.pop(0)[1]()
            fill.run(sl.get('bud', self.c['bud']))
    def bar_wait(self, *toks, lg=False):
        def f():
            self.k.wait_tok(*toks)
            if lg: self.k.wait_lg_all()
            self.k.barrier()
        return f
    def stats_part1(self):
        k, T, tmp = self.k, self.sT, self.tmp
        it = []
        def a0():
            k.S("s_lshl_b32", T[3], self.sWv, 9); k.S("s_add_u32", T[3], T[3], STA)
            k.V("v_lshl_add_u32", tmp[4], self.lane, 3, T[3])
        it.append((12, a0))
        def a1():
            k.V("v_mov_b32", self.sp[0], self.sum); k.V("v_mov_b32", self.sp[1], self.sq)
        it.append((8, a1))
        it.append((4, lambda: k.ds_write("ds_write_b64", tmp[4], self.sp, 0, tok='st')))
        it.append((4, lambda: k.V("v_xor_b32", tmp[4], 2048, tmp[4])))
        return it
    def stats_part2(self):
        k, T, tmp = self.k, self.sT, self.tmp
        it = []
        it.append((4, lambda: k.ds_read("ds_read_b64", self.sp, tmp[4], 0)))
        it.append((4, lambda: k.V("v_add_f32", self.sum, self.sum, self.sp[0])))
        it.append((4, lambda: k.V("v_add_f32", self.sq, self.sq, self.sp[1])))
        it.append((8, lambda: (k.V("v_mov_b32", self.sp[0], self.sum), k.V("v_mov_b32", self.sp[1], self.sq))))
        it.append((8, lambda: (k.V("v_permlane32_swap_b32", self.sum, self.sp[0]), k.V("v_permlane32_swap_b32", self.sq, self.sp[1]))))
        it.append((8, lambda: (k.V("v_add_f32", self.sum, self.sum, self.sp[0]), k.V("v_add_f32", self.sq, self.sq, self.sp[1]))))
        mean, var = self.sum, self.sq
        it.append((8, lambda: (k.V("v_mul_f32", mean, -1.0 / 448, mean), k.V("v_mul_f32", var, 1.0 / 448, var))))
        it.append((4, lambda: k.Vneg("v_fma_f32", var, mean, mean, var, (True, False, False))))
        it.append((8, lambda: (k.V("v_max_f32", var, 0, var), k.V("v_add_f32", var, 1e-5, var))))
        it.append((8, lambda: k.V("v_sqrt_f32", self.irs, var)))
        it.append((4, lambda: k.V("v_cvt_pk_bf16_f32", self.sp[0], mean, mean)))
        it.append((8, lambda: k.V("v_rcp_f32", self.cc, self.irs)))
        it.append((4, lambda: k.V("v_and_b32", self.sp[1], 0xffff0000, self.sp[0])))
        it.append((4, lambda: k.V("v_sub_f32", self.sp[1], mean, self.sp[1])))
        it.append((4, lambda: k.V("v_mul_f32", self.cc, self.ccmul, self.cc)))
        it.append((4, lambda: k.V("v_cvt_pk_bf16_f32", self.sp[1], self.sp[1], self.sp[1])))
        for i in range(4):
            it.append((4, lambda i=i: k.V("v_cndmask_b32_e64", self.mneg[i], self.sp[0], self.sp[1], self.sHi)))
        return it
    def cs_pack(self, cs, idx, dst=None):
        k = self.k
        it = []
        it.append((4, lambda: k.V("v_cvt_pk_bf16_f32", cs[1], cs[0], cs[0])))
        it.append((4, lambda: k.V("v_and_b32", cs[1], 0xffff0000, cs[1])))
        it.append((4, lambda: k.V("v_sub_f32", cs[1], cs[0], cs[1])))
        if dst is None:
            it.append((4, lambda: k.V("v_cvt_pk_bf16_f32", cs[1], cs[0], cs[1])))
            it.append((4, lambda: k.ds_write("ds_write_b32", self.vCSW, cs[1], idx * 1024, tok='cs')))
        else:
            it.append((4, lambda: k.V("v_cvt_pk_bf16_f32", dst[0], cs[0], cs[1])))
            it.append((12, lambda: [k.V("v_mov_b32", dst[i], 0) for i in (1, 2, 3)]))
        return it
    def cs_apply(self, cs, idx, acc, wfirst, read=True):
        k = self.k
        it = []
        if read: it.append((4, lambda: k.ds_read("ds_read_b128", cs, self.vCSR, idx * 1024)))
        it.append((8, (lambda: k.mfma(True, acc, cs, self.mneg, acc)) if wfirst else (lambda: k.mfma(True, acc, self.mneg, cs, acc))))
        return it
    def epi_silu(self, acc, sbyte, tok):
        k, T = self.k, self.sT
        it = []; t = self.et; O = self.eo
        for g4 in range(4):
            A = [acc[4 * g4 + i] for i in range(4)]
            for i in range(4): it.append((4, lambda i=i, A=A: k.V("v_mul_f32", t[i], self.cc, A[i])))
            for i in range(4): it.append((8, lambda i=i: k.V("v_exp_f32", t[i], t[i])))
            for i in range(4): it.append((4, lambda i=i: k.V("v_fma_f32", t[i], t[i], self.irs, self.irs)))
            for i in range(4): it.append((8, lambda i=i: k.V("v_rcp_f32", t[i], t[i])))
            for i in range(4): it.append((4, lambda i=i, A=A: k.V("v_mul_f32", t[i], t[i], A[i])))
            for i in range(2): it.append((4, lambda i=i, g4=g4: k.V("v_cvt_pk_bf16_f32", O[2 * g4 + i], t[2 * i], t[2 * i + 1])))
            if g4 % 2 == 1:
                h = g4 // 2
                def st(h=h):
                    k.S("s_mov_b32", T[3], sbyte)
                    k.gstore(O[4 * h:4 * h + 4], self.vST, self.sWS, T[3], imm=1024 * h, mod=" sc1", tok=tok)
                it.append((8, st))
        return it
    def phi4(self, A, sc, dst2):
        k, t = self.k, self.et
        it = []
        for i in range(4): it.append((4, lambda i=i: k.V("v_mul_f32", A[i], sc[i], A[i])))
        for i in range(4): it.append((8, lambda i=i: k.V("v_exp_f32_e64", t[i], A[i], mod="clamp")))
        for i in range(4): it.append((4, lambda i=i: k.V("v_max_f32", A[i], 1e-6 * LOG2E, A[i])))
        for i in range(4): it.append((4, lambda i=i: k.V("v_fmac_f32", t[i], self.sLn2, A[i])))
        for i in range(2): it.append((4, lambda i=i: k.V("v_cvt_pk_bf16_f32", dst2[i], t[2 * i], t[2 * i + 1])))
        return it

    QOFF = [49152, 57344, 0, 8192, 16384, 24576, 32768]
    def flag_addr(self, base, sline, shift, sidx):
        k, T, tmp = self.k, self.sT, self.tmp
        k.S("s_lshl_b32", T[1], sline, shift + 7); k.S("s_lshl_b32", T[2], sidx, 7); k.S("s_add_u32", T[1], T[1], T[2]); k.S("s_add_u32", T[1], T[1], base)
        k.V("v_mov_b32", tmp[4], OOB); k.V("v_mov_b32", tmp[5], T[1])
        k.V("v_cmp_eq_u32", VCC, 0, self.lane); k.V("v_cndmask_b32", self.vFA, tmp[4], tmp[5])

    def role_h(self):
        k, T, tmp, c = self.k, self.sT, self.tmp, self.c
        k.label("L_roleH")
        self.ccmul = -LOG2E
        col = self.sCol
        k.S("s_and_b32", T[1], self.sIdx, 1); k.S("s_mul_i32", T[2], self.sIdx, 448)
        k.S("s_lshl_b32", T[3], T[1], 6); k.S("s_add_u32", col[0], T[2], T[3])
        for f in (self.job_x(0), self.job_w('w0', 0, col[0], W0R)): f()
        k.S("s_add_u32", col[1], col[0], 128); k.S("s_add_u32", col[2], col[0], 256)
        k.S("s_xor_b32", T[1], T[1], 1); k.S("s_mul_i32", T[1], T[1], 384); k.S("s_add_u32", col[3], T[2], T[1])
        self.prologue2()
        self.stamp('start')
        acc = self.blk[0:2]; cs = self.cs; vWH = self.vWH
        for f in (self.job_x(1), self.job_w('w0', 1, col[0], W0R + 8192)): f()
        for _, f in self.tr_addrs(self.vTX, 64, W0R): f()
        k.V("v_lshrrev_b32", tmp[4], 2, self.lane); k.S("s_lshl_b32", T[1], self.sRt, 4); k.V("v_add_u32", tmp[4], T[1], tmp[4])
        k.V("v_and_b32", tmp[5], 3, self.lane); k.V("v_lshlrev_b32", tmp[5], 4, tmp[5])
        k.S("s_movk_i32", T[1], 3584); k.V("v_mad_u32_u24", vWH, tmp[4], T[1], tmp[5])
        k.S("s_lshl_b32", T[1], self.sI, 2); k.S("s_add_u32", T[1], T[1], self.sRt)
        k.S("s_mul_i32", T[2], T[1], 112 * 1024); k.S("s_mul_i32", T[3], self.sIdx, 14 * 1024); k.S("s_add_u32", T[2], T[2], T[3])
        k.S("s_lshl_b32", T[3], self.sGrp, 11); k.S("s_add_u32", T[2], T[2], T[3]); k.S("s_add_u32", T[2], T[2], HB)
        k.V("v_lshl_add_u32", self.vST, self.lane, 4, T[2])
        k.S("s_mov_b32", T[0], T[1]); k.S("s_lshl_b32", T[3], self.sIdx, 1); k.S("s_add_u32", T[3], T[3], self.sGrp)
        self.flag_addr(FLH, T[0], 4, T[3])
        self.p2_bases()
        for _, f in self.tr_addrs(self.vTY, 64, WB): f()
        if c['deep']:
            for f in (self.job_x(2), self.job_w('w0', 2, col[0], W0R + 16384)): f()

        def job_h(m):
            def f():
                k.S("s_cmp_eq_u32", self.sGrp, 0)
                k.S("s_cselect_b32", T[0], self.sAs[2 * m], self.sAs[min(2 * m + 1, 6)])
                k.S("s_mul_i32", T[0], T[0], self.sRS64); k.S("s_add_u32", T[0], T[0], col[3])
                k.S("s_add_u32", M0, self.sMw, W0R + ((3 + m) % 4) * 8192) if m < 3 else (
                    k.S("s_lshl_b32", T[1], self.sRt, 10), k.S("s_add_u32", M0, T[1], W0R + 2 * 8192))
                k.dma(vWH, self.sW, T[0], 0, ('wh', m))
            return f
        slots = []
        for ps in range(3):
            for n in range(28):
                p, sp = divmod(n, 4)
                off = [(p % 4) * 8192, p * 8192, self.QOFF[p]][ps]
                slots.append(dict(acc=acc[ps % 2], wfirst=True, addr=(self.vTY if ps == 1 else self.vTX)[sp], off=off, second=512, xi=n,
                                  cs=cs[ps % 2] if sp == 0 else None, csfirst=p == 0, first=n == 0))
        fill = Fill(); dq = []
        pre_read, pre_mfma, post = {}, {}, {}
        for p in range(7):
            def br(p=p): self.bar_wait(('x', p), ('w0', p))(); self.stamp(f'B{p}'); self.x_reads(p)
            pre_read[4 * p] = br
            pre_mfma[4 * p] = self.dots
        if c['deep']:
            for p in range(4):
                nb = 4 * (p + 1) - c['LA']
                dq.append((nb, self.job_x(p + 3))); dq.append((nb + 1, self.job_w('w0', p + 3, col[0], W0R + ((p + 3) % 4) * 8192)))
            dq.insert(2, (3, self.warm_issue))
            for p, n in enumerate((17, 18, 19, 21, 22, 23, 25)): dq.append((n, self.job_w('w1', p, col[1], WB + p * 8192)))
            for p, n in enumerate((26, 27, 29, 31, 33, 35, 37)): dq.append((n, self.job_w('w2', p, col[2], XR + self.QOFF[p])))
            for m in range(4): dq.append((40 + 3 * m, job_h(m)))
        else:
            for p in range(5):
                dq.append((4 * p, self.job_x(p + 2))); dq.append((4 * p + 2, self.job_w('w0', p + 2, col[0], W0R + ((p + 2) % 4) * 8192)))
            dq.insert(2, (3, self.warm_issue))
            for p in range(7): dq.append((20 + p, self.job_w('w1', p, col[1], WB + p * 8192)))
            for p in range(7): dq.append((31 + 3 * p, self.job_w('w2', p, col[2], XR + self.QOFF[p])))
            for m in range(4): dq.append((50 + 2 * m, job_h(m)))
        for n in range(3): dq.append((62 + 4 * n, self.job_p2_shared(n)))
        if c['l2pf']:
            for q, n in enumerate(c['l2pf']): dq.append((n, self.l2pf_job(q)))
        def end1():
            self.stamp('p1end')
            fill.extend(self.stats_part1()); fill.extend(self.cs_pack(cs[0], 0))
        post[27] = end1
        pre_read[28] = self.bar_wait(('w1', 0), ('w1', 1))
        def b2():
            fill.drain(); self.bar_wait(('w1', 2), ('w1', 3), ('w1', 4), lg=True)()
            fill.extend(self.stats_part2()); fill.extend(self.cs_apply(cs[0], 0, acc[0], True))
            fill.extend(self.tr_addrs(self.vTX, 64, XR))
            fill.extend(self.epi_silu(acc[0], 0, ('h', 0)))
        pre_read[34] = b2
        pre_read[48] = self.bar_wait(('w1', 5), ('w1', 6))
        def end2():
            fill.drain(); self.stamp('p2end'); fill.extend(self.cs_pack(cs[1], 1))
        post[55] = end2
        pre_read[56] = self.bar_wait(*[('w2', p) for p in range(4)])
        def b3():
            fill.drain(); self.bar_wait(('w2', 4), ('w2', 5), ('w2', 6), lg=True)()
            fill.extend(self.cs_apply(cs[1], 1, acc[1], True)); fill.extend(self.epi_silu(acc[1], 4096, ('h', 1)))
        pre_read[62] = b3
        post[72] = lambda: self.flag_store(1, [('h', 0)])
        self.run_slots(slots, pre_read, pre_mfma, post, fill, dq)
        fill.drain(); self.stamp('p3end')
        for _, f in self.cs_pack(cs[0], 2): f()
        self.bar_wait(*[('wh', m) for m in range(4)], lg=True)()
        k.S("s_cmp_eq_u32", self.sGrp, 1)
        k.branch("s_cbranch_scc1", "L_hB")
        st = self.save()
        for _, f in self.cs_apply(cs[0], 2, acc[0], True): f()
        epi = self.epi_silu(acc[0], 8192, ('fin',))
        self.p2a_preamble(epi, mid=lambda: self.flag_store(2, [('h', 1)]))
        k.S("s_add_u32", T[4], self.sTag[0], 3); k.V("v_mov_b32", self.vFV[0], T[4])
        self.stamp('tail')
        self.joinA.append(self.exit_state()); k.branch("s_branch", "L_p2a")
        self.restore(st)
        k.label("L_hB")
        if c['prio']: k.sraw(f"s_setprio {c['prio']}")
        vTH = self.vTY
        k.V("v_lshlrev_b32", tmp[6], 6, self.vRowp); k.V("v_and_b32", tmp[5], 63, self.vColb); k.V("v_add_u32", tmp[6], tmp[6], tmp[5])
        for sp in range(4):
            k.S("s_add_u32", T[3], self.sRt, sp); k.S("s_and_b32", T[3], T[3], 3); k.S("s_lshl_b32", T[3], T[3], 10)
            k.S("s_add_u32", T[3], T[3], W0R); k.V("v_add_u32", vTH[sp], T[3], tmp[6])
        hoff = [3 * 8192, 3 * 8192 + 4096, 0, 4096, 8192, 8192 + 4096, 2 * 8192]
        slots = [dict(acc=acc[1], wfirst=True, addr=vTH[n % 4], off=hoff[n // 4], second=256, xi=n, cs=cs[1], csfirst=n == 0, first=n == 0) for n in range(28)]
        fill = Fill()
        fill.extend(self.cs_apply(cs[0], 2, acc[0], True)); fill.extend(self.epi_silu(acc[0], 8192, ('h', 2)))
        self.stamp('X')
        self.run_slots(slots, {}, {}, {3: lambda: self.stamp('pi'), 5: lambda: self.stamp('j3'), 9: lambda: self.stamp('e1'), 10: lambda: self.flag_store(2, [('h', 1)]), 11: lambda: self.stamp('G0'), 16: lambda: self.stamp('al0'), 22: lambda: self.stamp('al1')}, fill, [(4, self.job_p2_b(3))])
        fill.drain(); self.stamp('p4end')
        for _, f in self.cs_pack(cs[1], 0, dst=cs[0]): f()
        for _, f in self.cs_apply(cs[0], 0, acc[1], True, read=False): f()
        epi = self.epi_silu(acc[1], 10240, ('fin',))
        half = len(epi) // 2
        for _, f in epi[:half - 1]: f()
        self.flag_store(3, [('h', 2)])
        for _, f in epi[half - 1:]: f()
        k.S("s_add_u32", T[4], self.sTag[0], 4); k.V("v_mov_b32", self.vFV[0], T[4])
        self.stamp('tail')
        self.joinB.append(self.exit_state()); k.branch("s_branch", "L_p2b")

    def save(self):
        import copy
        k = self.k
        return (copy.deepcopy(k.vm), copy.deepcopy(k.lg), list(k.hist), k.pos)
    def restore(self, st):
        k = self.k
        k.vm, k.lg, k.hist, k.pos = [dict(e) for e in st[0]], [dict(e) for e in st[1]], list(st[2]), st[3]
    def exit_state(self):
        self.k.wait_lg_all()
        self.k.flush_hazards()
        return [dict(e) for e in self.k.vm]
    def merge(self, states):
        k = self.k
        young = {}
        for st in states:
            for i, e in enumerate(st):
                y = len(st) - 1 - i
                keys = [('t', e['tok'])] + [('r', r) for r in e['regs']]
                for key in keys: young[key] = min(young.get(key, 99), y)
        L = max(young.values()) + 1 if young else 0
        q = []
        for key, y in young.items(): q.append((L - 1 - y, key))
        k.vm = []
        for pos in range(L):
            es = [key for p_, key in q if p_ == pos]
            k.vm.append(dict(regs={x[1] for x in es if x[0] == 'r'}, tok=None, toks={x[1] for x in es if x[0] == 't'}))
        k.lg = []; k.hist = []

    def role_qkv(self):
        k, T, tmp, c = self.k, self.sT, self.tmp, self.c
        k.label("L_roleQ")
        self.ccmul = LOG2E
        col = self.sCol
        k.S("s_mul_i32", col[2], self.sIdx, 112); k.S("s_add_u32", col[0], col[2], 896); k.S("s_add_u32", col[1], col[2], 1792)
        def slab(p):
            for f in (self.job_x(p), self.job_w('k', p, col[0], KVR + p * 16384), self.job_w('v', p, col[1], KVR + p * 16384 + 8192)): f()
        slab(0)
        self.prologue2()
        self.stamp('start')
        accQ, accK, accV = self.blk
        csK, csV, csQ = self.cs
        R2 = [v(44), v(45), v(46), v(47), v(48), v(49), v(50), v(51), v(52), v(53), v(54), v(55), v(112), v(113), v(114), v(115)]
        R2q = [v(44, 4), v(48, 4), v(52, 4), v(112, 4)]
        slab(1)
        for _, f in self.tr_addrs(self.vTX, 56, KVR): f()
        for _, f in self.tr_addrs(self.vTY, 56, XR): f()
        head = col[3]
        k.S("s_lshl_b32", head, self.sIdx, 1); k.S("s_add_u32", head, head, self.sGrp)
        k.S("s_lshl_b32", T[1], head, 4); k.S("s_add_u32", T[1], T[1], self.sI); k.S("s_lshl_b32", T[1], T[1], 2); k.S("s_add_u32", T[1], T[1], self.sRt)
        k.S("s_lshl_b32", T[1], T[1], 10); k.S("s_add_u32", T[1], T[1], PB)
        k.V("v_lshl_add_u32", self.vST, self.lane, 4, T[1])
        k.S("s_lshl_b32", T[0], head, 1); k.S("s_lshr_b32", T[3], self.sRt, 1); k.S("s_add_u32", T[0], T[0], T[3])
        k.S("s_lshl_b32", T[3], self.sI, 1); k.S("s_and_b32", T[4], self.sRt, 1); k.S("s_add_u32", T[3], T[3], T[4])
        self.flag_addr(FLP, T[0], 5, T[3])
        self.p2_bases()
        slots = []
        for n in range(56):
            p, r = divmod(n, 8); sp, sub = divmod(r, 2)
            slots.append(dict(acc=(accK, accV)[sub], wfirst=False, addr=self.vTX[sp], off=(p % 4) * 16384 + 8192 * sub, second=512, xi=4 * p + sp,
                              cs=(csK, csV)[sub] if sp == 0 else None, csfirst=p == 0, first=n < 2))
        for n in range(28):
            p, sp = divmod(n, 4)
            slots.append(dict(acc=accQ, wfirst=True, addr=self.vTY[sp], off=self.QOFF[p], second=512, xi=n,
                              cs=csQ if sp == 0 else None, csfirst=p == 0, first=n == 0, bud=30))
        fill = Fill(); dq = []
        pre_read, pre_mfma, post = {}, {}, {}
        for p in range(7):
            def br(p=p): self.bar_wait(('x', p), ('k', p), ('v', p))(); self.stamp(f'B{p}'); self.x_reads(p)
            pre_read[8 * p] = br
            pre_mfma[8 * p] = self.dots
        if c['deep']:
            slab(2)
            for p in range(4):
                o = KVR + ((p + 3) % 4) * 16384
                nb = 8 * (p + 1) - c['LA']
                dq += [(nb, self.job_x(p + 3)), (nb + 1, self.job_w('k', p + 3, col[0], o)), (nb + 2, self.job_w('v', p + 3, col[1], o + 8192))]
            dq.insert(3, (9, self.warm_issue))
            for p, n in enumerate((33, 35, 38, 40, 46, 48, 55)): dq.append((n, self.job_w('q', p, col[2], XR + self.QOFF[p])))
        else:
            for p in range(5):
                o = KVR + ((p + 2) % 4) * 16384
                dq += [(8 * p, self.job_x(p + 2)), (8 * p + 3, self.job_w('k', p + 2, col[0], o)), (8 * p + 5, self.job_w('v', p + 2, col[1], o + 8192))]
            dq.insert(3, (6, self.warm_issue))
            for p, n in enumerate((40, 42, 44, 46, 49, 52, 54)): dq.append((n, self.job_w('q', p, col[2], XR + self.QOFF[p])))
        for n in range(3): dq.append((64 + 4 * n, self.job_p2_shared(n)))
        pk = self.xt; pv = accV[0:8]
        def end1():
            self.stamp('p1end')
            fill.extend(self.stats_part1()); fill.extend(self.cs_pack(csK, 0)); fill.extend(self.cs_pack(csV, 1))
        post[55] = end1
        pre_read[56] = self.bar_wait(('q', 0), ('q', 1))
        def b2():
            fill.drain(); self.bar_wait(('q', 2), ('q', 3), lg=True)()
            fill.extend(self.stats_part2())
            def r2w():
                k.S("s_lshl_b32", T[3], self.sWv, 7); k.S("s_add_u32", T[3], T[3], R2A)
                k.V("v_and_b32", tmp[4], 31, self.lane); k.V("v_lshl_add_u32", tmp[4], tmp[4], 2, T[3])
                k.ds_write("ds_write_b32", tmp[4], self.cc, 0)
                k.V("v_lshrrev_b32", tmp[4], 5, self.lane); k.V("v_lshl_add_u32", tmp[4], tmp[4], 4, T[3])
                for q in range(4): k.ds_read("ds_read_b128", R2q[q], tmp[4], 32 * q)
            fill.add(40, r2w)
            fill.extend(self.cs_apply(csK, 0, accK, False)); fill.extend(self.cs_apply(self.et, 1, accV, False))
            for g4 in range(4):
                fill.extend(self.phi4([accK[4 * g4 + i] for i in range(4)], [R2[4 * g4 + i] for i in range(4)], pk[2 * g4:2 * g4 + 2]))
            fill.add(4, lambda: k.V("v_mov_b32", self.et[0], ONES))
            for i in range(16): fill.add(4, lambda i=i: k.V("v_mul_f32", accV[i], R2[i], accV[i]))
            for i in range(8): fill.add(4, lambda i=i: k.V("v_cvt_pk_bf16_f32", pv[i], accV[2 * i], accV[2 * i + 1]))
            for i in range(8): fill.add(4, lambda i=i: k.V("v_cndmask_b32_e64", pv[i], pv[i], self.et[0], self.sPad))
            fill.add(8, lambda: k.mfma(True, accK, pk[0:4], pv[0:4], 0))
            fill.add(8, lambda: k.mfma(True, accK, pk[4:8], pv[4:8], accK))
        pre_read[62] = b2
        pre_read[72] = self.bar_wait(('q', 4), ('q', 5), ('q', 6))
        self.run_slots(slots, pre_read, pre_mfma, post, fill, dq)
        fill.drain(); self.stamp('p2end')
        for _, f in self.cs_pack(csQ, 2): f()
        k.S("s_lshl_b32", T[3], self.sGrp, 14); k.S("s_lshl_b32", T[4], self.sRt, 10); k.S("s_add_u32", T[4], T[4], T[3]); k.S("s_add_u32", T[4], T[4], EXA)
        k.V("v_lshl_add_u32", tmp[4], self.lane, 4, T[4])
        for d in range(4): k.ds_write("ds_write_b128", tmp[4], accK[4 * d:4 * d + 4], d * 4096)
        k.S("s_lshl_b32", T[4], self.sRt, 12); k.S("s_add_u32", T[4], T[4], T[3]); k.S("s_add_u32", T[4], T[4], EXA)
        k.V("v_lshl_add_u32", tmp[5], self.lane, 4, T[4])
        self.bar_wait(lg=True)()
        for sw in range(4): k.ds_read("ds_read_b128", accV[4 * sw:4 * sw + 4], tmp[5], sw * 1024)
        for _, f in self.cs_apply(csQ, 2, accQ, True): f()
        for i in range(4):
            k.V("v_add_f32", accV[i], accV[i], accV[4 + i]); k.V("v_add_f32", accV[8 + i], accV[8 + i], accV[12 + i])
        for i in range(4): k.V("v_add_f32", accV[i], accV[i], accV[8 + i])
        k.gstore(accV[0:4], self.vST, self.sWS, 0, mod=" sc1", tok=('pst',))
        self.stamp('p3end')
        k.S("s_lshl_b32", T[1], self.sI, 2); k.S("s_add_u32", T[1], T[1], self.sRt)
        k.S("s_lshl_b32", T[2], T[1], 4); k.S("s_add_u32", T[2], T[2], head); k.S("s_lshl_b32", T[2], T[2], 11); k.S("s_add_u32", T[2], T[2], QB)
        vSQ = self.vWH
        k.V("v_lshl_add_u32", vSQ, self.lane, 4, T[2])
        k.S("s_mov_b32", self.sCol[0], T[1])
        def qepi():
            it = []
            for g4 in range(4):
                it += self.phi4([accQ[4 * g4 + i] for i in range(4)], [self.cc] * 4, pk[2 * g4:2 * g4 + 2])
                if g4 % 2 == 1:
                    h = g4 // 2
                    it.append((4, lambda h=h: k.gstore(pk[4 * h:4 * h + 4], vSQ, self.sWS, 0, imm=1024 * h, mod=" sc1", tok=('fin',))))
            return it
        def pflag_then_qaddr():
            self.flag_store(1, [('pst',)])
            self.flag_addr(FLQ, self.sCol[0], 4, head)
            k.S("s_add_u32", T[4], self.sTag[0], 1); k.V("v_mov_b32", self.vFV[0], T[4])
        k.S("s_cmp_eq_u32", self.sIsRed, 1)
        k.branch("s_cbranch_scc1", "L_red")
        k.S("s_cmp_eq_u32", self.sGrp, 1)
        k.branch("s_cbranch_scc1", "L_qB")
        st = self.save()
        self.p2a_preamble(qepi(), mid=pflag_then_qaddr)
        self.stamp('tail')
        self.joinA.append(self.exit_state()); k.branch("s_branch", "L_p2a")
        self.restore(st)
        k.label("L_qB")
        if c['prio']: k.sraw(f"s_setprio {c['prio']}")
        for _, f in qepi(): f()
        self.job_p2_b(3)()
        pflag_then_qaddr()
        self.stamp('tail')
        self.joinB.append(self.exit_state()); k.branch("s_branch", "L_p2b")
        self.restore(st)
        k.label("L_red")
        for _, f in qepi(): f()
        pflag_then_qaddr()
        self.flag_store(1, [('fin',)])
        self.stamp('tail')
        self.reducer()

    def reducer(self):
        k, T, tmp, lane = self.k, self.sT, self.tmp, self.lane
        vP, vPA, vD = v(44, 2), v(46), v(47)
        k.S("s_lshl_b32", T[1], self.sRho, 12); k.S("s_add_u32", T[1], T[1], FLP)
        k.V("v_lshl_add_u32", tmp[4], lane, 7, T[1]); k.V("v_mov_b32", tmp[5], OOB)
        k.V("v_cmp_gt_u32", VCC, 32, lane); k.V("v_cndmask_b32", vPA, tmp[5], tmp[4])
        self.poll_issue(vP, vPA)
        k.S("s_lshr_b32", T[1], self.sRho, 1); k.S("s_lshl_b32", T[1], T[1], 16); k.S("s_and_b32", T[2], self.sRho, 1); k.S("s_lshl_b32", T[2], T[2], 11)
        k.S("s_add_u32", T[1], T[1], T[2]); k.S("s_lshl_b32", T[2], self.sWv, 7); k.S("s_add_u32", T[1], T[1], T[2]); k.S("s_add_u32", T[1], T[1], PB)
        k.V("v_lshrrev_b32", tmp[4], 3, lane); k.V("v_and_b32", tmp[5], 7, lane)
        k.V("v_lshlrev_b32", tmp[4], 12, tmp[4]); k.V("v_lshl_add_u32", tmp[4], tmp[5], 4, tmp[4]); k.V("v_add_u32", tmp[4], T[1], tmp[4])
        self.poll_check(vP, vPA, vD, 1, (-1, 0))
        self.stamp('c1')
        A, B = v(60, 8), v(68, 8)
        k.S("s_mov_b32", T[2], 32768)
        for i2, dst in enumerate((A, B)):
            for qq in range(2): k.gload(dst[4 * qq:4 * qq + 4], tmp[4], self.sWS, T[2] if i2 else 0, imm=1024 * qq, mod=" sc1")
        k.S("s_and_b32", T[3], self.sWv, 3); k.S("s_cmp_eq_u32", T[3], 3); k.S("s_cselect_b32", T[3], 4, 8)
        k.V("v_cmp_gt_u32", VCC, T[3], tmp[5]); k.V("v_mov_b32", tmp[6], 1.0); k.V("v_mov_b32", tmp[7], self.sLn2)
        k.V("v_cndmask_b32", tmp[6], tmp[6], tmp[7])
        k.S("s_and_b32", T[3], self.sRho, self.sGrp); k.S("s_and_b32", T[3], T[3], 1); k.S("s_cmp_eq_u32", T[3], 1); k.S("s_cselect_b32", T[3], 0, 1.0)
        k.V("v_mul_f32", tmp[7], T[3], tmp[6])
        k.S("s_lshl_b32", T[1], self.sRho, 10); k.S("s_lshl_b32", T[2], self.sWv, 7); k.S("s_add_u32", T[1], T[1], T[2]); k.S("s_add_u32", T[1], T[1], KVB)
        k.V("v_lshl_add_u32", tmp[4], lane, 4, T[1]); k.V("v_mov_b32", tmp[5], OOB)
        k.V("v_cmp_gt_u32", VCC, 8, lane); k.V("v_cndmask_b32", tmp[4], tmp[5], tmp[4])
        for i in range(8): k.V("v_add_f32", A[i], A[i], B[i])
        for i in range(8): k.emit(f"v_add_f32_dpp {B[i]}, {A[i]}, {A[i]} row_ror:8 row_mask:0xf bank_mask:0xf", 'perm', rd=[A[i]], wr=[B[i]])
        for op in ("v_permlane16_swap_b32", "v_permlane32_swap_b32"):
            for i in range(8): k.V("v_mov_b32", A[i], B[i])
            for i in range(8): k.V(op, A[i], B[i])
            for i in range(8): k.V("v_add_f32", B[i], A[i], B[i])
        for i in range(8): k.V("v_mul_f32", B[i], tmp[6] if i < 4 else tmp[7], B[i])
        for i in range(4): k.V("v_cvt_pk_bf16_f32", A[i], B[2 * i], B[2 * i + 1])
        k.gstore(A[0:4], tmp[4], self.sWS, 0, mod=" sc1", tok=('kv',))
        k.wait_tok(('kv',)); k.barrier()
        k.S("s_cmp_eq_u32", self.sWv, 0)
        k.branch("s_cbranch_scc0", "L_fin")
        k.S("s_lshr_b32", T[0], self.sRho, 3); k.S("s_and_b32", T[3], self.sRho, 7)
        self.flag_addr(FLK, T[0], 3, T[3])
        self.flag_store(1, [])
        self.stamp('c2')
        k.S("s_cmp_eq_u32", self.sRho, 0)
        k.branch("s_cbranch_scc0", "L_fin")
        k.V("v_lshlrev_b32", tmp[4], 7, lane); k.V("v_add_u32", tmp[4], FLK, tmp[4]); k.V("v_mov_b32", tmp[5], OOB)
        k.V("v_cmp_gt_u32", VCC, 32, lane); k.V("v_cndmask_b32", vPA, tmp[5], tmp[4])
        self.poll_issue(vP, vPA); self.poll_check(vP, vPA, vD, 1, (-1, 0))
        k.V("v_lshrrev_b32", tmp[4], 2, lane); k.V("v_lshlrev_b32", tmp[4], 13, tmp[4]); k.V("v_and_b32", tmp[5], 3, lane)
        k.V("v_lshl_add_u32", tmp[4], tmp[5], 8, tmp[4])
        for h in range(2):
            k.V("v_add_u32", vPA, FLH + 1024 * h, tmp[4])
            self.poll_issue(vP, vPA); self.poll_check(vP, vPA, vD, 1, (-1, -1))
        k.V("v_mov_b32", tmp[4], 0); k.V("v_mov_b32", tmp[5], OOB); k.V("v_cmp_eq_u32", VCC, 0, lane); k.V("v_cndmask_b32", tmp[4], tmp[5], tmp[4])
        k.V("v_mov_b32", self.vFV[0], self.sTag[0])
        k.gstore(self.vFV, tmp[4], self.sWS, 0, imm=EPOCH, mod=" sc1")
        k.branch("s_branch", "L_fin")

    def t2_base(self, dst0, dst1, base):
        k, tmp = self.k, self.tmp
        return [(4, lambda: k.V("v_bfe_u32", tmp[4], self.lane, 2, 2)),
                (4, lambda: k.V("v_lshrrev_b32", tmp[5], 5, self.lane)),
                (4, lambda: k.V("v_lshl_add_u32", tmp[4], tmp[5], 2, tmp[4])),
                (4, lambda: k.V("v_lshl_add_u32", tmp[4], tmp[4], 7, base)),
                (4, lambda: k.V("v_add_u32", dst0, tmp[4], self.vColb)),
                (4, lambda: k.V("v_xor_b32", tmp[5], 64, self.vColb)),
                (4, lambda: k.V("v_add_u32", dst1, tmp[4], tmp[5]))]
    def job_p2_a(self, n):
        k = self.k
        def f():
            if n % 2 == 0: self.unit_w(n // 2)
            src = self.sUW[2] if n == 1 else self.sUW[0]
            r, off = self.a_pos(n)
            k.S("s_add_u32", M0, self.sMp[r], off)
            b = 2 * (n % 2)
            if 'xW2' in self.c.get('exp', '') and n > 3: return
            k.dma(self.vP2d[b], self.sP2, src, 0, ('p2', n)); k.dma(self.vP2d[b + 1], self.sP2, src, 1024, ('p2', n))
        return f
    def job_p2_b(self, n):
        k, T = self.k, self.sT
        def f():
            k.S("s_mul_i32", T[1], self.sRt, 112 * 896); k.S("s_add_u32", T[1], T[1], (n // 2) * 28 * 896)
            k.S("s_add_u32", M0, self.sMp[0 if n < 4 else 1], (n % 4) * 2048)
            b = 2 * (n % 2)
            k.dma(self.vP2d[b], self.sP2, T[1], 0, ('p2', n)); k.dma(self.vP2d[b + 1], self.sP2, T[1], 1024, ('p2', n))
        return f
    def act(self, n, rt): return a(8 * (n % 14) + 4 * rt, 4)
    def act_load(self, n):
        k = self.k
        if n % 2 == 0: self.unit_a(n // 2)
        x = self.c.get('exp', '')
        if 'actx' in x:
            for rt in range(2): k.gload(self.act(n, rt), self.vP2d[0], self.sX, self.sUW[1], imm=1024 * (n % 2) + 2048 * rt, mod=" sc1")
            return
        if 'nosc' in x:
            for rt in range(2): k.gload(self.act(n, rt), self.vAct[rt], self.sWS, self.sUW[1], imm=1024 * (n % 2))
            return
        for rt in range(2): k.gload(self.act(n, rt), self.vAct[rt], self.sWS, self.sUW[1], imm=1024 * (n % 2), mod=" sc1")
    def p2a_regs(self):
        self.vAct = [v(76), v(77)]; self.aP, self.aPA, self.aD = v(78, 2), v(80), v(81)
        self.vT2 = [v(82), v(83), v(84), v(85)]
    def p2a_preamble(self, epi, mid):
        k, T, tmp, lane = self.k, self.sT, self.tmp, self.lane
        self.p2a_regs()
        k.V("v_and_b32", tmp[4], 1, lane); k.V("v_lshlrev_b32", tmp[4], 11, tmp[4])
        k.V("v_bfe_u32", tmp[5], lane, 1, 1); k.V("v_lshl_add_u32", tmp[4], tmp[5], 8, tmp[4])
        k.V("v_bfe_u32", tmp[5], lane, 2, 1); k.V("v_lshl_add_u32", tmp[4], tmp[5], 7, tmp[4])
        k.S("s_lshl_b32", T[1], self.sI2, 12); k.S("s_lshl_b32", T[2], self.sRt, 9); k.S("s_add_u32", T[1], T[1], T[2]); k.S("s_add_u32", T[1], T[1], FLH)
        k.V("v_add_u32", tmp[4], T[1], tmp[4]); k.V("v_mov_b32", tmp[5], OOB)
        k.V("v_cmp_gt_u32", VCC, 8, lane); k.V("v_cndmask_b32", self.aPA, tmp[5], tmp[4])
        self.stamp('X')
        self.poll_issue(self.aP, self.aPA)
        self.stamp('pi')
        k.S("s_mul_i32", T[1], self.sI2, 224 * 1024); k.S("s_mul_i32", T[2], self.sRt, 28 * 1024); k.S("s_add_u32", T[1], T[1], T[2]); k.S("s_add_u32", T[1], T[1], HB)
        k.V("v_lshl_add_u32", self.vAct[0], lane, 4, T[1]); k.V("v_add_u32", self.vAct[1], 112 * 1024, self.vAct[0])
        self.job_p2_a(3)()
        for _, f in self.t2_base(self.vT2[0], self.vT2[1], self.sMp[0]) + self.t2_base(self.vT2[2], self.vT2[3], self.sMp[1]): f()
        self.stamp('j3')
        n1 = (len(epi) * 2) // 5
        for _, f in epi[:n1]: f()
        self.stamp('e1')
        if mid: mid()
        self.stamp('preG0')
        self.poll_check(self.aP, self.aPA, self.aD, 1, 0xff)
        self.stamp('G0')
        rest = epi[n1:]
        step = max(1, len(rest) // 5)
        for n in range(4):
            self.act_load(n)
            self.stamp(f'al{n}')
            for _, f in rest[n * step:(n + 1) * step]: f()
        for _, f in rest[4 * step:]: f()
        self.pre_acts = 4
    def final_write_addrs(self, regs, base):
        k, tmp = self.k, self.tmp
        k.V("v_and_b32", tmp[4], 31, self.lane); k.V("v_lshl_add_u32", tmp[4], tmp[4], 8, base)
        k.V("v_lshrrev_b32", tmp[5], 5, self.lane); k.V("v_and_b32", tmp[6], 7, self.lane); k.V("v_xor_b32", tmp[5], tmp[5], tmp[6])
        for q in range(4):
            k.V("v_xor_b32", tmp[6], 2 * q, tmp[5]); k.V("v_lshl_add_u32", regs[q], tmp[6], 4, tmp[4])
    def x_res_load(self):
        k, T, tmp = self.k, self.sT, self.tmp
        self.vXO, self.xres = v(4), v(8, 4)
        k.S("s_lshl_b32", T[1], self.sI2, 3); k.S("s_add_u32", T[1], T[1], self.sWv); k.S("s_mul_i32", T[1], T[1], 8 * 896)
        k.S("s_lshl_b32", T[2], self.sC, 7); k.S("s_add_u32", T[1], T[1], T[2])
        k.V("v_lshrrev_b32", tmp[4], 3, self.lane); k.V("v_and_b32", tmp[5], 7, self.lane); k.V("v_lshlrev_b32", tmp[5], 4, tmp[5])
        k.S("s_movk_i32", T[2], 896); k.V("v_mad_u32_u24", tmp[4], tmp[4], T[2], tmp[5]); k.V("v_add_u32", self.vXO, T[1], tmp[4])
        k.gload(self.xres, self.vXO, self.sX, 0)

    def phase2a(self):
        k, T, c = self.k, self.sT, self.c
        k.label("L_p2a")
        self.merge(self.joinA)
        self.p2a_regs()
        look, wl = c['look'], c['wl']
        accF = [[v(28, 16), v(44, 16)], [v(60, 16), v(92, 16)]]
        def wf(n, ct): return a(112 + 4 * ((2 * n + ct) % 6), 4)
        def wread(n):
            k.wait_tok(('p2', n))
            r, off = self.a_pos(n)
            for ct in range(2):
                k.ds_read("ds_read_b64_tr_b16", wf(n, ct)[0:2], self.vT2[2 * r + ct], off)
                k.ds_read("ds_read_b64_tr_b16", wf(n, ct)[2:4], self.vT2[2 * r + ct], off + 1024)
        wread(0); wread(1)
        nw, na = 4, self.pre_acts
        checks = {8: (2, 0xff), 16: (3, 0xff), 24: (4, 0xf0)}
        for n in range(28):
            k.wait_regs(wf(n, 0), wf(n, 1), self.act(n, 0), self.act(n, 1))
            i = 0
            for rt in range(2):
                for ct in range(2):
                    k.mfma(True, accF[ct][rt], wf(n, ct), self.act(n, rt), 0 if n == 0 else accF[ct][rt])
                    if i == 0 and n + 2 < 28: wread(n + 2)
                    if i == 1:
                        cnt = 0
                        while na < 28 and na <= n + look and cnt < 2:
                            if na in checks:
                                self.stamp(f'b{na // 8}')
                                self.poll_check(self.aP, self.aPA, self.aD, *checks[na])
                                self.stamp(f'c{na // 8}')
                            self.act_load(na); na += 1; cnt += 1
                        if na + 2 in checks or (na + 3 in checks and False): self.poll_issue(self.aP, self.aPA)
                    if i == 3:
                        cnt = 0
                        while nw < 28 and nw <= n + wl and nw - 11 <= n and cnt < 2:
                            self.job_p2_a(nw)(); nw += 1; cnt += 1
                    i += 1
            if n == c['hookn']: self.flag_hook(); self.stamp('hook'); k.barrier(); self.stamp('J')
            self.stamp(f'n{n}')
            if n == 22: self.x_res_load()
        self.stamp('mainend')
        W = [v(12 + 0), v(13), v(14), v(15)]
        W = [v(108), v(109), v(110), v(111)]
        self.final_write_addrs(W, self.sMp[1])
        for rt in range(2):
            for ct in range(2):
                for q in range(4): k.ds_write("ds_write_b128", W[q], accF[ct][rt][4 * q:4 * q + 4], 8192 * rt + 128 * ct)
        self.joinF.append(self.exit_state()); k.branch("s_branch", "L_final")
    def flag_hook(self):
        k = self.k
        self.stamp('h0')
        k.wait_tok(('fin',))
        self.stamp('h1')
        k.gstore(self.vFV, self.vFA, self.sWS, 0, mod=" sc1", tok=('flag',))

    def phase2b(self):
        k, T, tmp, lane, c = self.k, self.sT, self.tmp, self.lane, self.c
        k.label("L_p2b")
        self.merge(self.joinB)
        vPQ, vKV, vP, vPA, vD, vPK = [v(10), v(11)], v(15), v(16, 2), v(18), v(19), v(110)
        vT2 = [v(20), v(23), v(108), v(109)]
        rc, rc2, den = v(12), v(13), v(14)
        kv = lambda hh, s_: v(24 + 8 * hh + 4 * s_, 4)
        pq = lambda hh, rt, s_: a(64 + 16 * hh + 8 * rt + 4 * s_, 4)
        N = [v(56, 16), v(72, 16)]; O = [v(88, 8), v(96, 8)]
        accS = [[a(0, 16), a(16, 16)], [a(32, 16), a(48, 16)]]
        k.V("v_and_b32", tmp[4], 1, lane); k.V("v_lshlrev_b32", tmp[4], 11, tmp[4])
        k.V("v_bfe_u32", tmp[5], lane, 1, 2); k.V("v_lshl_add_u32", tmp[4], tmp[5], 7, tmp[4])
        k.S("s_lshl_b32", T[1], self.sI2, 12); k.S("s_lshl_b32", T[2], self.sRt, 9); k.S("s_add_u32", T[1], T[1], T[2]); k.S("s_add_u32", T[1], T[1], FLQ)
        k.V("v_add_u32", tmp[4], T[1], tmp[4])
        k.V("v_mov_b32", tmp[5], OOB); k.V("v_cmp_gt_u32", VCC, 8, lane); k.V("v_cndmask_b32", vPA, tmp[5], tmp[4])
        k.S("s_lshl_b32", T[1], self.sRt, 10); k.S("s_add_u32", T[1], T[1], FLK)
        k.V("v_lshl_add_u32", tmp[4], lane, 7, T[1]); k.V("v_cndmask_b32", vPK, tmp[5], tmp[4])
        k.S("s_lshl_b32", T[1], self.sI2, 16); k.S("s_lshl_b32", T[2], self.sRt, 13); k.S("s_add_u32", T[1], T[1], T[2]); k.S("s_add_u32", T[1], T[1], QB)
        k.V("v_lshl_add_u32", vPQ[0], lane, 4, T[1]); k.V("v_add_u32", vPQ[1], 32768, vPQ[0])
        k.S("s_add_u32", T[1], T[2], KVB); k.V("v_lshl_add_u32", vKV, lane, 4, T[1])
        self.flag_hook()
        self.stamp('hook')
        k.barrier()
        self.stamp('J')
        for n in range(4, 8):
            if 'xWo' not in c.get('exp', ''): self.job_p2_b(n)()
        self.poll_issue(vP, vPA)
        self.poll_check(vP, vPA, vD, 1, 0xff)
        self.stamp('c1')
        k.S("s_movk_i32", T[0], 4096)
        for hh in range(4):
            for rt in range(2):
                for s_ in range(2):
                    if 'nopq' not in c.get('exp', ''): k.gload(pq(hh, rt, s_), vPQ[rt], self.sWS, T[0] if hh >= 2 else 0, imm=2048 * (hh % 2) + 1024 * s_, mod=" sc1")
        self.poll_issue(vP, vPK)
        for _, f in self.t2_base(vT2[0], vT2[1], self.sMp[0]) + self.t2_base(vT2[2], vT2[3], self.sMp[1]): f()
        self.x_res_load()
        self.poll_check(vP, vPK, vD, 1, 0xff)
        self.stamp('c2')
        k.S("s_movk_i32", T[0], 4096)
        for hh in range(4):
            for s_ in range(2):
                k.gload(kv(hh, s_), vKV, self.sWS, T[0] if hh >= 2 else 0, imm=2048 * (hh % 2) + 1024 * s_, mod=" sc1")
        Wf = [v(104, 4), v(112, 4), v(116, 4), v(4 + 0, 4)]
        Wf = [v(104, 4), v(112, 4), v(116, 4), v(16, 4)]
        def wread(hh, f):
            s_, ct = divmod(f, 2); n = 2 * hh + s_
            k.wait_tok(('p2', n))
            r = 0 if n < 4 else 1
            k.ds_read("ds_read_b64_tr_b16", Wf[f][0:2], vT2[2 * r + ct], (n % 4) * 2048)
            k.ds_read("ds_read_b64_tr_b16", Wf[f][2:4], vT2[2 * r + ct], (n % 4) * 2048 + 1024)
        def num(u):
            hh, rt = divmod(u, 2)
            k.mfma(True, N[u % 2], kv(hh, 0), pq(hh, rt, 0), 0)
            k.mfma(True, N[u % 2], kv(hh, 1), pq(hh, rt, 1), N[u % 2])
        def val(u):
            n_, o_ = N[u % 2], O[u % 2]
            it = [(4, lambda: k.V("v_mov_b32", den, n_[12])),
                  (4, lambda: k.V("v_permlane32_swap_b32", n_[12], den)),
                  (4, lambda: k.V("v_add_f32", den, 1e-6, den)),
                  (8, lambda: k.V("v_rcp_f32", rc, den)),
                  (4, lambda: k.V("v_cndmask_b32_e64", rc2, rc, 0, self.sHi))]
            for i in range(8):
                it.append((8, lambda i=i: [k.V("v_mul_f32", n_[j], rc if j < 12 else rc2, n_[j]) for j in (2 * i, 2 * i + 1)]))
                it.append((4, lambda i=i: k.V("v_cvt_pk_bf16_f32", o_[i], n_[2 * i], n_[2 * i + 1])))
            return it
        for f in range(4): wread(0, f)
        num(0); num(1)
        self.stamp('c3')
        for _, f in val(0): f()
        for u in range(8):
            hh, rt = divmod(u, 2)
            fill = Fill()
            if u + 1 < 8: fill.extend(val(u + 1))
            for f in range(4):
                s_, ct = divmod(f, 2)
                k.mfma(True, accS[ct][rt], Wf[f], O[u % 2][4 * s_:4 * s_ + 4], 0 if (hh == 0 and s_ == 0) else accS[ct][rt])
                if rt == 1 and hh < 3: wread(hh + 1, f)
                if f == 0 and u + 2 < 8: num(u + 2)
                fill.run(30)
            fill.drain()
        self.stamp('mainend')
        W = [v(24), v(25), v(26), v(27)]
        self.final_write_addrs(W, self.sMp[0])
        k.S("s_sub_u32", T[1], self.sMp[1], self.sMp[0])
        for rt in range(2):
            if rt == 1:
                for q in range(4): k.V("v_add_u32", W[q], T[1], W[q])
            for ct in range(2):
                for q in range(4): k.ds_write("ds_write_b128", W[q], accS[ct][rt][4 * q:4 * q + 4], 128 * ct)
        self.joinF.append(self.exit_state())

    def final(self):
        k, T, tmp, lane = self.k, self.sT, self.tmp, self.lane
        k.label("L_final")
        self.merge(self.joinF)
        vF, vS = [v(24), v(25)], [v(26), v(27)]
        k.V("v_lshrrev_b32", tmp[4], 3, lane); k.V("v_and_b32", tmp[5], 7, lane); k.V("v_lshlrev_b32", tmp[5], 1, tmp[5])
        k.V("v_xor_b32", tmp[5], tmp[5], tmp[4]); k.V("v_lshlrev_b32", tmp[4], 8, tmp[4])
        k.S("s_lshl_b32", T[1], self.sWv, 11); k.S("s_lshl_b32", T[2], self.sRt, 11)
        k.S("s_cmp_eq_u32", self.sGrp, 0); k.S("s_cselect_b32", T[3], WB, W0R); k.S("s_add_u32", T[2], T[2], T[3])
        for h in range(2):
            if h: k.V("v_xor_b32", tmp[5], 1, tmp[5])
            k.V("v_lshl_add_u32", tmp[6], tmp[5], 4, tmp[4])
            k.V("v_add_u32", vF[h], T[1], tmp[6]); k.V("v_add_u32", vS[h], T[2], tmp[6])
        k.barrier()
        self.stamp('Z')
        F = [v(28 + 8 * i, 8) for i in range(4)]; S = [v(60 + 8 * i, 8) for i in range(4)]
        for src in range(4):
            for h in range(2): k.ds_read("ds_read_b128", F[src][4 * h:4 * h + 4], vF[h], src * 16384)
        for src in range(4):
            for h in range(2): k.ds_read("ds_read_b128", S[src][4 * h:4 * h + 4], vS[h], src * 8192)
        def tree(X):
            for i in range(8): k.V("v_add_f32", X[0][i], X[0][i], X[1][i])
            for i in range(8): k.V("v_add_f32", X[2][i], X[2][i], X[3][i])
            for i in range(8): k.V("v_add_f32", X[0][i], X[0][i], X[2][i])
        tree(F)
        t = F[1]; xu = F[2]
        for i in range(8): k.V("v_mul_f32", t[i], -LOG2E, F[0][i])
        for i in range(8): k.V("v_exp_f32", t[i], t[i])
        for i in range(8): k.V("v_add_f32", t[i], 1.0, t[i])
        for i in range(8): k.V("v_rcp_f32", t[i], t[i])
        tree(S)
        for i in range(8): k.V("v_mul_f32", t[i], t[i], F[0][i])
        for i in range(4):
            k.V("v_lshlrev_b32", xu[2 * i], 16, self.xres[i]); k.V("v_and_b32", xu[2 * i + 1], 0xffff0000, self.xres[i])
        for i in range(8): k.V("v_fmac_f32", xu[i], S[0][i], t[i])
        for i in range(4): k.V("v_cvt_pk_bf16_f32", self.xres[i], xu[2 * i], xu[2 * i + 1])
        k.gstore(self.xres, self.vXO, self.sOUT, 0, mod=self.c.get('outmod', ''))

    def build(self):
        k = self.k
        self.joinF = []
        self.prologue()
        k.S("s_cmp_eq_u32", self.sIsH, 1)
        k.branch("s_cbranch_scc0", "L_roleQ")
        st = self.save()
        self.role_h()
        self.restore(st)
        self.role_qkv()
        self.phase2a()
        self.phase2b()
        self.final()
        k.label("L_fin")
        if not self.c.get('nofinalwait'): k.raw("  s_waitcnt vmcnt(0)")
        self.stamp_flush()
        k.label("L_end")
        k.raw("  s_endpgm")
        head = open(__file__.rsplit('/', 1)[0] + "/header.txt").read() if '/' in __file__ else open("header.txt").read()
        head = head.replace("@LDS@", str(LDS_BYTES))
        tail = f""".section .rodata,"a"
.p2align 6
.amdhsa_kernel {NAME}_kernel
  .amdhsa_next_free_vgpr {NV + NA}
  .amdhsa_next_free_sgpr 102
  .amdhsa_accum_offset {NV}
  .amdhsa_group_segment_fixed_size 0
  .amdhsa_kernarg_size 72
  .amdhsa_user_sgpr_count 2
  .amdhsa_user_sgpr_kernarg_segment_ptr 1
  .amdhsa_system_sgpr_workgroup_id_x 1
  .amdhsa_float_denorm_mode_32 3
.end_amdhsa_kernel
"""
        if self.c['stamps']: head += '; stamps: ' + ','.join(self.c['stamps']) + '\n'
        return head + k.text() + tail

if __name__ == "__main__":
    import json
    out = sys.argv[1]
    cfg = json.loads(sys.argv[2]) if len(sys.argv) > 2 else {}
    g = Gen(**cfg)
    txt = g.build()
    open(out, "w").write(txt)
    n = sum(1 for l in g.k.out if l.startswith("  ") and not l.startswith("  ;"))
    print(f"{out}: {n} instructions, {g.k.nops} nop states, {g.k.waits} auto waits", file=sys.stderr)
    if cfg.get('verbose'):
        for l in g.k.log: print(l, file=sys.stderr)
```

```python
import sys, math
from asmlib import *

NAME = "recurrent_scan__linear_attn_block__dense_activation_silu__prompt"
NV, NA = 120, 136
EPOCH, FLH, FLQ, FLP, FLK = 0, 0x10000, 0x30000, 0x50000, 0x70000
KVB, PB, QB, HB, WSEND = 0x78000, 0x80000, 0x200000, 0x400000, 0xB00000
STAMPS = 0xC00000
XR, W0R, WB, MISC = 0, 65536, 98304, 155648
KVR, EXA = 90112, 65536
CSA, STA, R2A = MISC, MISC + 4096, MISC + 3072
CNT = STA
LDS_BYTES = 163840
OOB = 0x40000000
LOG2E = 1.4426950408889634
LN2 = 0.6931471805599453
ONES = 0x3f803f80

DEF = dict(LA=3, bud=26, stamps=False, spin=200000, warm=True, codepf=True, look=6, stop=None, sleep=8, rot=2, prio=1, hookn=-1, wl=9, deep=1, l2pf=0, xmap=1, redoff=4, k1=1, pflagn=20, qpf=0, touch=0, wd=2, ramp=2, J=0, qfirst=1, hfirst=1, kvfirst=0, prioL=1, prioM=0, hookfirst=0, budq=56, xbar=79, tilemajor=1)

class Gen:
    def __init__(self, **cfg):
        self.c = dict(DEF); self.c.update(cfg)
        self.k = K()
        self.sa = Alloc('s', 52, 100)
        self.joinA, self.joinB = [], []
        self.lane = v(0); self.vFA = v(1); self.vFV = v(2, 2); self.vP2d = [v(4 + i) for i in range(4)]
        self.vRowp, self.vColb, self.vST, self.vWD = v(8), v(9), v(10), v(11)
        self.cc, self.irs, self.sum, self.sq, self.vCSW, self.vCSR = v(15), v(16), v(17), v(18), v(19), v(20)
        self.vStampA, self.vStampD, self.vWH = v(21), v(22), v(23)
        self.IND, self.mneg, self.et, self.xt = v(24, 4), v(28, 4), v(32, 4), v(36, 8)
        self.sp = v(34, 2); self.eo = self.xt
        self.vTX = [v(44 + i) for i in range(4)]; self.vXR = [v(48 + i) for i in range(4)]
        self.vXT = [v(52), v(53)]; self.vXD = [v(54), v(55)]; self.vTY = [v(56 + i) for i in range(4)]
        self.blk = [v(60, 16), v(76, 16), v(92, 16)]
        self.cs = [v(108, 4), v(112, 4), v(116, 4)]
        self.tmp = [v(92), v(93), v(94), v(95), v(12), v(13), v(14), v(96)]
        self.vDummy, self.vDummy2, self.vWH2 = v(21), v(22), v(116)
        self.vPFa = v(116)

    STAMP_PAIRS = [4, 6, 8, 10, 12, 14, 16, 18, 44, 46, 20, 100]
    def stamp(self, name):
        if not self.c['stamps']: return
        names = self.c['stamps']
        if name not in names: return
        for idx in [i for i, x in enumerate(names) if x == name]: self._stamp(idx)
    def _stamp(self, idx):
        if idx == 0: self.k.raw(f"  s_memrealtime s[{self.STAMP_PAIRS[10]}:{self.STAMP_PAIRS[10] + 1}]")
        op = "s_memrealtime" if (self.c.get('rt') and idx % 2 == 0 and idx > 0) else "s_memtime"
        self.k.raw(f"  {op} s[{self.STAMP_PAIRS[idx]}:{self.STAMP_PAIRS[idx] + 1}]")
    def stamp_flush(self):
        if not self.c['stamps']: return
        k, T, P = self.k, self.sT, self.STAMP_PAIRS
        k.raw(f"  s_memtime s[{P[9]}:{P[9] + 1}]")
        k.raw(f"  s_memrealtime s[{P[11]}:{P[11] + 1}]")
        k.raw("  s_waitcnt lgkmcnt(0)")
        k.raw("  s_mov_b32 s38, 0xd00000")
        k.raw(f"  s_lshl_b32 {T[0]}, s2, 3\n  s_add_u32 {T[0]}, {T[0]}, {self.sWv}\n  s_lshl_b32 {T[0]}, {T[0]}, 7\n  s_add_u32 {T[0]}, {T[0]}, {STAMPS}")
        k.raw(f"  v_mov_b32 v12, 0x40000000\n  v_mov_b32 v13, 0\n  v_cmp_eq_u32 vcc, 0, v0\n  s_nop 1\n  v_cndmask_b32 v12, v12, v13, vcc")
        for i, p in enumerate(P):
            k.raw(f"  v_mov_b32 v14, s{p}\n  buffer_store_dword v14, v12, s[36:39], {T[0]} offen offset:{4 * i}\n  s_nop 1")
        if self.c.get('dbgwg') is not None:
            skip = k.newlabel("Ldbg")
            k.raw(f"  s_lshl_b32 {T[1]}, s2, 3\n  s_add_u32 {T[1]}, {T[1]}, {self.sWv}\n  s_cmp_eq_u32 {T[1]}, {self.c['dbgwg']}\n  s_cbranch_scc0 {skip}")
            k.raw("  s_load_dwordx2 s[40:41], s[0:1], 56\n  s_waitcnt lgkmcnt(0)\n  s_mov_b32 s42, 256\n  s_mov_b32 s43, 0x20000")
            k.raw(f"  s_sub_u32 {T[1]}, s{P[11]}, s{P[10]}\n  v_mov_b32 v14, {T[1]}\n  buffer_store_dword v14, v12, s[40:43], 0 offen\n  s_nop 1")
            for i in range(1, 10):
                k.raw(f"  s_sub_u32 {T[1]}, s{P[i]}, s{P[0]}\n  s_cmp_eq_u32 s{P[i]}, 0\n  s_cselect_b32 {T[1]}, 0, {T[1]}\n  v_mov_b32 v14, {T[1]}\n  buffer_store_dword v14, v12, s[40:43], 0 offen offset:{4 * i}\n  s_nop 1")
            k.label(skip)

    def flag_store(self, val, toks, mod=None):
        k = self.k
        self.stamp(f'f{val}a')
        k.wait_tok(*toks)
        self.stamp(f'f{val}b')
        k.S("s_add_u32", self.sT[4], self.sTag[0], val)
        k.V("v_mov_b32", self.vFV[0], self.sT[4])
        k.gstore(self.vFV, self.vFA, self.sWS, 0, mod=mod or self.c.get('fmod', " sc1"), tok=('flag',))

    def poll_issue(self, vP, vPA):
        self.k.gload(vP, vPA, self.sWS, 0, mod=" sc1")

    def poll_check(self, vP, vPA, vD, need, mask):
        k = self.k
        top, done = k.newlabel("Lspin"), k.newlabel("Lok")
        k.wait_regs(vP)
        k.label(top)
        k.V("v_subrev_u32", vD, self.sTag[0], vP[0])
        k.V("v_cmp_eq_u32", VCC, self.sTag[1], vP[1])
        k.V("v_subrev_u32", vD, need, vD)
        k.V("v_cmp_ge_u32_e64", self.sM0, 15 - need, vD)
        k.S("s_and_b64", self.sM0, self.sM0, VCC)
        k.S("s_mov_b64", self.sM1, mask) if not isinstance(mask, tuple) else (k.S("s_mov_b32", self.sM1[0], mask[0]), k.S("s_mov_b32", self.sM1[1], mask[1]))
        k.S("s_and_b64", self.sM0, self.sM0, self.sM1)
        k.S("s_cmp_eq_u64", self.sM0, self.sM1)
        k.branch("s_cbranch_scc1", done)
        k.S("s_sub_u32", self.sSpin, self.sSpin, 1)
        k.branch("s_cbranch_scc1", done + "x")
        if self.c['sleep']: k.raw(f"  s_sleep {self.c['sleep']}")
        k.raw(f"  buffer_load_dwordx2 {vP}, {vPA}, {self.sWS}, 0 offen sc1")
        k.raw("  s_waitcnt vmcnt(0)")
        k.raw(f"  s_branch {top}")
        k.label(done + "x")
        k.raw(f"  s_mov_b32 {self.sSpin}, 0")
        k.label(done)

    def prologue(self):
        k, sa, c = self.k, self.sa, self.c
        self.sX, self.sW, self.sP2, self.sWS, self.sOUT, self.sDBG, self.sTMP = (s(n, 4) for n in (24, 28, 32, 36, 40, 44, 48))
        k.S("s_cmp_ge_u32", s(2), 256)
        k.branch("s_cbranch_scc1", "L_end")
        if c['stamps'] and 'early' in c['stamps']: k.raw("  s_memtime s[100:101]")
        k.raw("  s_load_dwordx4 s[4:7], s[0:1], 0")
        k.raw("  s_load_dwordx2 s[8:9], s[0:1], 16")
        k.raw("  s_load_dwordx4 s[12:15], s[0:1], 32")
        k.raw("  s_load_dwordx4 s[16:19], s[0:1], 48")
        k.raw("  s_load_dwordx2 s[20:21], s[0:1], 64")
        g = sa.get
        self.sTag = g(2); self.sM0 = g(2); self.sM1 = g(2); self.sPad = g(2); self.sHi = g(2)
        self.sT = [g() for _ in range(6)]
        (self.sWv, self.sRt, self.sGrp, self.sI, self.sIdx, self.sIsH, self.sIsRed, self.sRho, self.sI2, self.sC,
         self.sRot2, self.sSpin, self.sXb, self.sMx, self.sMw, self.sRS) = [g() for _ in range(16)]
        self.sAs = [g() for _ in range(7)]
        self.sCol = [g() for _ in range(4)]
        self.sMp = [g() for _ in range(2)]
        self.sUW = [g() for _ in range(3)]
        T = self.sT
        lane, tmp = self.lane, self.tmp
        if c['codepf']:
            k.comment("pull this kernel's code into L2: 1/32 of its lines per workgroup")
            k.raw("  s_getpc_b64 s[48:49]")
            k.label("L_pc")
            k.S("s_and_b32", s(49), s(49), 0xffff)
            k.raw("  s_mov_b32 s50, L_end-L_pc")
            k.S("s_mov_b32", s(51), 0x20000)
            k.S("s_lshr_b32", T[0], s(2), 3)
            k.S("s_lshl_b32", T[0], T[0], 7)
            k.V("v_lshlrev_b32", tmp[0], 12, v(0))
            k.V("v_cmp_gt_u32", VCC, 16, v(0))
            k.V("v_mov_b32", tmp[1], OOB)
            k.V("v_cndmask_b32", tmp[0], tmp[1], tmp[0])
            k.gload(self.vDummy, tmp[0], self.sTMP, T[0])
        k.V("v_lshrrev_b32", tmp[0], 6, v(0))
        k.V("v_and_b32", lane, 63, v(0))
        k.V("v_readfirstlane_b32", self.sWv, tmp[0])
        xcd, n, q, sub = T[0], T[1], T[2], T[3]
        k.S("s_and_b32", xcd, s(2), 7)
        k.S("s_lshr_b32", n, s(2), 3)
        k.S("s_lshr_b32", q, xcd, 1)
        k.S("s_lshr_b32", sub, n, 3)
        k.S("s_and_b32", T[4], xcd, 1)
        k.S("s_lshl_b32", T[4], T[4], 3)
        k.S("s_and_b32", T[5], n, 7)
        k.S("s_add_u32", self.sI, T[4], T[5])
        k.S("s_lshr_b32", self.sIsH, sub, 1)
        k.S("s_and_b32", T[4], sub, 1)
        k.S("s_lshl_b32", self.sIdx, q, 1)
        k.S("s_add_u32", self.sIdx, self.sIdx, T[4])
        if c.get('local'):
            k.S("s_lshl_b32", self.sI, xcd, 1); k.S("s_and_b32", T[4], n, 1); k.S("s_add_u32", self.sI, self.sI, T[4])
            k.S("s_lshr_b32", self.sIdx, n, 1); k.S("s_and_b32", self.sIdx, self.sIdx, 7)
            k.S("s_lshr_b32", self.sIsH, n, 4)
            k.S("s_lshr_b32", T[5], n, 1); k.S("s_xor_b32", T[5], T[5], n)
        k.S("s_and_b32", self.sRt, self.sWv, 3)
        k.S("s_lshr_b32", self.sGrp, self.sWv, 2)
        if c['rot'] == 7:
            k.S("s_lshl_b32", T[4], sub, 1)
            k.S("s_add_u32", T[4], T[4], T[5])
            k.S("s_cmp_ge_u32", T[4], 7); k.S("s_cselect_b32", T[5], 7, 0); k.S("s_sub_u32", T[4], T[4], T[5])
            k.S("s_cmp_ge_u32", T[4], 7); k.S("s_cselect_b32", T[5], 7, 0); k.S("s_sub_u32", self.sAs[0], T[4], T[5])
        elif c['rot'] == 1:
            k.S("s_mov_b32", self.sAs[0], 0)
        else:
            k.S("s_add_u32", T[4], sub, T[5]); k.S("s_and_b32", T[4], T[4], c['rot'] - 1); k.S("s_mul_i32", self.sAs[0], T[4], 7 // c['rot'] + (c['rot'] == 4))
        k.S("s_cmp_eq_u32", self.sIsH, 1); k.S("s_cselect_b32", self.sRS, 3584, 2688)
        k.S("s_lshl_b32", T[4], self.sI, 2); k.S("s_add_u32", T[4], T[4], self.sRt)
        k.S("s_mul_i32", self.sXb, T[4], 32 * 896)
        k.S("s_lshl_b32", self.sMx, self.sRt, 12); k.S("s_lshl_b32", T[4], self.sGrp, 11); k.S("s_add_u32", self.sMx, self.sMx, T[4])
        k.S("s_lshl_b32", self.sMw, self.sWv, 10)
        l3, c7, l4, cs = tmp[0], tmp[1], tmp[2], tmp[3]
        k.V("v_lshrrev_b32", l3, 3, lane)
        k.V("v_and_b32", c7, 7, lane)
        k.V("v_lshrrev_b32", l4, 4, lane)
        k.V("v_xor_b32", tmp[4], c7, l4)
        k.V("v_lshlrev_b32", tmp[4], 4, tmp[4])
        k.S("s_movk_i32", T[4], 896)
        k.V("v_mad_u32_u24", tmp[5], l3, T[4], tmp[4])
        k.S("s_mul_i32", T[5], self.sGrp, 14336)
        k.V("v_add_u32", self.vXD[0], T[5], tmp[5])
        k.V("v_xor_b32", tmp[4], 64, tmp[4])
        k.V("v_mad_u32_u24", tmp[5], l3, T[4], tmp[4])
        k.S("s_add_u32", T[5], T[5], 6144)
        k.V("v_add_u32", self.vXD[1], T[5], tmp[5])
        k.V("v_and_b32", tmp[4], 1, l4)
        k.V("v_lshlrev_b32", tmp[4], 2, tmp[4])
        k.V("v_xor_b32", cs, c7, tmp[4])
        k.S("s_cmp_eq_u32", self.sIsH, 1); k.S("s_cselect_b32", T[5], 7, 6)
        k.V("v_min_u32", tmp[4], T[5], cs)
        k.V("v_lshlrev_b32", tmp[4], 4, tmp[4])
        k.S("s_lshl_b32", T[5], self.sWv, 3)
        k.V("v_add_u32", tmp[5], T[5], l3)
        k.V("v_mad_u32_u24", self.vWD, tmp[5], self.sRS, tmp[4])
        col = self.sCol
        k.S("s_mul_i32", col[2], self.sIdx, 112); k.S("s_add_u32", col[1], col[2], 1792); k.S("s_add_u32", T[4], col[2], 896)
        k.S("s_and_b32", T[5], self.sIdx, 1); k.S("s_lshl_b32", T[5], T[5], 6); k.S("s_lshl_b32", col[0], col[2], 2); k.S("s_add_u32", col[0], col[0], T[5])
        k.S("s_cmp_eq_u32", self.sIsH, 1); k.S("s_cselect_b32", col[0], col[0], T[4])
        k.S("s_cselect_b32", col[3], W0R, KVR); k.S("s_cselect_b32", self.sMp[0], OOB, col[1]); k.S("s_cselect_b32", self.sMp[1], WB, KVR + 8192)
        k.S("s_add_u32", col[3], col[3], self.sMw); k.S("s_add_u32", self.sMp[1], self.sMp[1], self.sMw)
        k.hard_wait("s_waitcnt lgkmcnt(0)")
        if c['stamps'] and 'karg' in c['stamps']: k.raw("  s_memtime s[98:99]")
        def srd(d, lo, hi, size):
            k.S("s_mov_b32", d[0], lo); k.S("s_and_b32", d[1], hi, 0xffff)
            k.S("s_mov_b32", d[2], size); k.S("s_mov_b32", d[3], 0x20000)
        srd(self.sX, s(4), s(5), 2048 * 896)
        k.S("s_cmp_eq_u32", self.sIsH, 1)
        k.S("s_cselect_b32", self.sW[0], s(12), s(6)); k.S("s_cselect_b32", self.sW[1], s(13), s(7))
        k.S("s_cselect_b32", self.sW[2], 448 * 3584, 448 * 2688)
        k.S("s_and_b32", self.sW[1], self.sW[1], 0xffff); k.S("s_mov_b32", self.sW[3], 0x20000)
        self.sRS64 = self.sRS
        k.S("s_lshl_b32", self.sRS64, self.sRS, 6)
        self.job_x(0)()
        k.S("s_mov_b32", M0, col[3]); k.S("s_mul_i32", self.sUW[0], self.sAs[0], self.sRS64); k.S("s_add_u32", T[4], self.sUW[0], col[0])
        k.dma(self.vWD, self.sW, T[4], 0, ('w0', 0)); k.vm[-1]['toks'] = {('k', 0)}
        k.S("s_mov_b32", M0, self.sMp[1]); k.S("s_add_u32", T[4], self.sUW[0], self.sMp[0])
        k.dma(self.vWD, self.sW, T[4], 0, ('v', 0))
        k.raw("  s_load_dwordx2 %s, s[20:21], %d" % (self.sTag, EPOCH))
        k.S("s_mov_b32", self.sSpin, c['spin'])
        xcd, n, q = T[0], T[1], T[2]
        k.S("s_and_b32", xcd, s(2), 7); k.S("s_lshr_b32", n, s(2), 3); k.S("s_lshr_b32", q, xcd, 1)
        for p in range(1, 7):
            k.S("s_add_u32", self.sAs[p], self.sAs[p - 1], 1)
            k.S("s_cmp_eq_u32", self.sAs[p], 7)
            k.S("s_cselect_b32", self.sAs[p], 0, self.sAs[p])
        if c.get('local'): k.S("s_mov_b32", T[4], 4)
        else: k.S("s_cmp_eq_u32", q, 3); k.S("s_cselect_b32", T[4], 0, 8)
        k.S("s_sub_u32", T[5], n, T[4])
        k.S("s_cmp_lt_u32", T[5], 4); k.S("s_cselect_b32", self.sIsRed, 1, 0)
        k.S("s_add_u32", self.sRho, xcd, c['redoff']); k.S("s_and_b32", self.sRho, self.sRho, 7)
        k.S("s_lshl_b32", self.sRho, self.sRho, 2); k.S("s_and_b32", T[5], n, 3); k.S("s_add_u32", self.sRho, self.sRho, T[5])
        k.S("s_add_u32", T[4], T[4], 4)
        k.S("s_cmp_ge_u32", n, T[4]); k.S("s_cselect_b32", T[4], 4, 0); k.S("s_sub_u32", T[4], n, T[4])
        k.S("s_lshr_b32", self.sC, T[4], 2)
        k.S("s_and_b32", T[4], T[4], 3)
        if c['xmap'] and not c.get('local'):
            k.S("s_and_b32", self.sI2, xcd, 6); k.S("s_lshl_b32", self.sI2, self.sI2, 1); k.S("s_add_u32", self.sI2, self.sI2, T[4])
            k.S("s_bitcmp1_b32", xcd, 0); k.S("s_cselect_b32", T[5], 0, 16); k.S("s_add_u32", self.sI2, self.sI2, T[5])
        else:
            k.S("s_lshl_b32", self.sI2, xcd, 2); k.S("s_add_u32", self.sI2, self.sI2, T[4])
        k.S("s_add_u32", self.sRot2, T[4], self.sC); k.S("s_and_b32", self.sRot2, self.sRot2, 0 if 'rot0' in c.get('exp', '') else 3)
        k.S("s_movk_i32", T[4], 896)
        k.V("v_lshlrev_b32", tmp[4], 4, cs)
        k.V("v_mad_u32_u24", tmp[4], l3, T[4], tmp[4])
        k.S("s_lshl_b32", T[5], self.sC, 7)
        k.V("v_add_u32", self.vP2d[0], T[5], tmp[4])
        k.V("v_add_u32", self.vP2d[1], 6144, self.vP2d[0])
        k.V("v_add_u32", self.vP2d[2], 14336, self.vP2d[0])
        k.V("v_add_u32", self.vP2d[3], 14336 + 6144, self.vP2d[0])
        self.sOnes, self.sLn2 = s(22), s(23)
        k.S("s_mov_b32", self.sOnes, ONES); k.S("s_mov_b32", self.sLn2, LN2)

    def prologue2(self):
        k, c, T, tmp, lane = self.k, self.c, self.sT, self.tmp, self.lane
        def srd(d, lo, hi, size):
            k.S("s_mov_b32", d[0], lo); k.S("s_and_b32", d[1], hi, 0xffff)
            k.S("s_mov_b32", d[2], size); k.S("s_mov_b32", d[3], 0x20000)
        self.warm_setup()
        k.S("s_cmp_eq_u32", self.sGrp, 0)
        k.S("s_cselect_b32", self.sP2[0], s(14), s(8)); k.S("s_cselect_b32", self.sP2[1], s(15), s(9))
        k.S("s_cselect_b32", self.sP2[2], 1792 * 896, 448 * 896)
        k.S("s_and_b32", self.sP2[1], self.sP2[1], 0xffff); k.S("s_mov_b32", self.sP2[3], 0x20000)
        k.S("s_xor_b32", T[0], self.sIsH, 1); k.S("s_and_b32", self.sIsRed, self.sIsRed, T[0])
        if not c['qpf']: k.S("s_cmp_eq_u32", self.sIsRed, 1); k.S("s_cselect_b32", self.sP2[2], 0, self.sP2[2])
        srd(self.sWS, s(20), s(21), WSEND)
        srd(self.sOUT, s(16), s(17), 2048 * 896)
        if c.get('prio0'):
            lab = k.newlabel("Lpr")
            k.S("s_cmp_eq_u32", self.sGrp, c['prio0'] - 1); k.branch("s_cbranch_scc0", lab); k.sraw("s_setprio 1"); k.label(lab)
        k.S("s_mov_b32", self.sPad[0], 0xf0000000); k.S("s_mov_b32", self.sPad[1], 0xf0000000)
        k.S("s_mov_b32", self.sHi[0], 0); k.S("s_mov_b32", self.sHi[1], -1)
        if c['stamps']:
            for p in self.STAMP_PAIRS[:11]: k.S("s_mov_b32", s(p), 0)
            if 'early' in c['stamps']: k.S("s_mov_b32", s(self.STAMP_PAIRS[c['stamps'].index('early')]), s(100))
            if 'karg' in c['stamps']: k.S("s_mov_b32", s(self.STAMP_PAIRS[c['stamps'].index('karg')]), s(98))
        row, hf, gx, base = tmp[0], tmp[1], tmp[2], tmp[3]
        k.V("v_and_b32", row, 31, lane)
        k.V("v_lshrrev_b32", hf, 5, lane)
        k.V("v_bfe_u32", gx, lane, 1, 3)
        k.S("s_lshl_b32", T[0], self.sRt, 12)
        k.V("v_lshl_add_u32", base, row, 7, T[0])
        def xaddr(dst, sp_reg_or_int):
            k.S("s_add_u32", T[1], self.sRt, sp_reg_or_int); k.S("s_and_b32", T[1], T[1], 3); k.S("s_lshl_b32", T[1], T[1], 1)
            k.V("v_add_u32", tmp[4], T[1], hf); k.V("v_xor_b32", tmp[4], tmp[4], gx)
            k.V("v_lshl_add_u32", dst, tmp[4], 4, base)
        for sp in range(4): xaddr(self.vXR[sp], sp)
        k.S("s_lshl_b32", T[2], self.sGrp, 1); xaddr(self.vXT[0], T[2])
        k.S("s_add_u32", T[2], T[2], 1); xaddr(self.vXT[1], T[2])
        k.S("s_lshl_b32", T[0], self.sGrp, 9); k.S("s_add_u32", T[0], T[0], CSA)
        k.V("v_lshl_add_u32", self.vCSR, row, 4, T[0])
        k.S("s_lshl_b32", T[0], self.sRt, 2)
        k.V("v_add_u32", self.vCSW, T[0], self.vCSR)
        k.V("v_lshrrev_b32", tmp[4], 4, lane); k.V("v_lshrrev_b32", tmp[5], 2, lane)
        k.V("v_xor_b32", tmp[4], tmp[4], tmp[5]); k.V("v_and_b32", tmp[4], 1, tmp[4])
        k.V("v_cmp_eq_u32", VCC, 0, tmp[4]); k.V("v_mov_b32", tmp[5], ONES)
        k.V("v_cndmask_b32", self.IND[0], 0, tmp[5])
        for i in range(1, 4): k.V("v_mov_b32", self.IND[i], self.IND[0])
        k.V("v_bfe_u32", tmp[4], lane, 2, 2)
        k.V("v_lshl_add_u32", self.vRowp, hf, 3, tmp[4])
        k.V("v_bfe_u32", tmp[4], lane, 4, 1); k.V("v_lshlrev_b32", tmp[4], 5, tmp[4])
        k.V("v_and_b32", tmp[5], 3, lane); k.V("v_lshl_add_u32", tmp[4], tmp[5], 3, tmp[4])
        k.V("v_bfe_u32", tmp[5], lane, 3, 1); k.V("v_lshl_add_u32", self.vColb, tmp[5], 6, tmp[4])
        k.V("v_mov_b32", self.sum, 0); k.V("v_mov_b32", self.sq, 0)
        self.cnt_init = True
        k.hard_wait("s_waitcnt lgkmcnt(0)")
        k.S("s_and_b32", self.sTag[0], self.sTag[0], -16); k.S("s_add_u32", self.sTag[0], self.sTag[0], 16)
        k.V("v_mov_b32", self.vFV[1], self.sTag[1])

    def warm_setup(self):
        k, c, T, tmp, lane = self.k, self.c, self.sT, self.tmp, self.lane
        if c['warm']:
            k.comment("touch the weights once, spread over all workgroups, so later misses are served on-die")
            k.S("s_and_b32", T[0], self.sWv, 3)
            k.S("s_cmp_eq_u32", T[0], 0); k.S("s_cselect_b32", s(48), s(14), s(12)); k.S("s_cselect_b32", s(49), s(15), s(13))
            k.S("s_cmp_eq_u32", T[0], 2); k.S("s_cselect_b32", s(48), s(8), s(48)); k.S("s_cselect_b32", s(49), s(9), s(49))
            k.S("s_cselect_b32", T[1], 13, 49); k.S("s_cselect_b32", s(50), 448 * 896, 1792 * 896)
            k.S("s_cmp_eq_u32", T[0], 3); k.S("s_cselect_b32", s(48), s(6), s(48)); k.S("s_cselect_b32", s(49), s(7), s(49))
            k.S("s_cselect_b32", T[1], 37, T[1]); k.S("s_cselect_b32", s(50), 448 * 2688, s(50))
            k.S("s_and_b32", s(49), s(49), 0xffff); k.S("s_mov_b32", s(51), 0x20000)
            k.S("s_cmp_eq_u32", self.sGrp, 0); k.S("s_cselect_b32", T[2], T[1], 0)
            k.S("s_mul_i32", T[1], T[1], s(2)); k.S("s_lshl_b32", T[1], T[1], 7)
            k.V("v_lshlrev_b32", tmp[4], 7, lane)
            k.V("v_cmp_gt_u32", VCC, T[2], lane)
            k.V("v_mov_b32", tmp[5], OOB)
            k.V("v_cndmask_b32", tmp[4], tmp[5], tmp[4])
            k.V("v_add_u32", self.vWH2, T[1], tmp[4])
    def warm_issue(self):
        if self.c['warm']: self.k.gload(self.vDummy2, self.vWH2, self.sTMP, 0)
        if self.c.get('pagetouch'):
            k, T, tmp, lane = self.k, self.sT, self.tmp, self.lane
            st = self.c['pagetouch']
            k.S("s_cmp_eq_u32", self.sGrp, 0); k.S("s_cselect_b32", T[0], 0, OOB)
            k.S("s_cmp_eq_u32", self.sRt, 0); k.S("s_cselect_b32", T[1], T[0], OOB)
            k.S("s_mov_b32", T[2], st); k.V("v_mul_lo_u32", tmp[5], lane, T[2]); k.V("v_add_u32", tmp[5], 0x180000 % st + 64, tmp[5])
            k.gload(self.vDummy, tmp[5], self.sWS, T[1])
            k.S("s_cmp_eq_u32", self.sRt, 1); k.S("s_cselect_b32", T[1], T[0], OOB)
            k.V("v_lshlrev_b32", tmp[5], 15, lane)
            k.gload(self.vDummy, tmp[5], self.sOUT, T[1])

    def l2pf_job(self, q):
        k, T, tmp, lane = self.k, self.sT, self.tmp, self.lane
        def f():
            if q == 0:
                k.S("s_lshr_b32", T[0], s(2), 3); k.S("s_and_b32", T[0], T[0], 15); k.S("s_lshl_b32", T[0], T[0], 2); k.S("s_add_u32", T[0], T[0], self.sRt)
                k.S("s_cmp_eq_u32", self.sGrp, 0); k.S("s_cselect_b32", T[1], 196 * 128, 49 * 128); k.S("s_mul_i32", T[0], T[0], T[1])
                k.V("v_lshl_add_u32", self.vPFa, lane, 7, T[0]); k.V("v_mov_b32", tmp[5], OOB)
                k.V("v_cmp_gt_u32", VCC, 49, lane); k.V("v_cndmask_b32", self.vPFa, tmp[5], self.vPFa)
                k.gload(self.vDummy2, self.vPFa, self.sP2, 0)
            else:
                k.S("s_cmp_eq_u32", self.sGrp, 0); k.S("s_cselect_b32", T[0], q * 49 * 128, OOB)
                k.gload(self.vDummy2, self.vPFa, self.sP2, T[0])
        return f

    def tr_addrs(self, dst, omul, base):
        k, T, tmp = self.k, self.sT, self.tmp
        items = []
        items.append((8, lambda: (k.S("s_mul_i32", T[3], self.sGrp, omul), k.V("v_add_u32", tmp[6], T[3], self.vColb))))
        items.append((4, lambda: k.V("v_and_b32", tmp[6], 127, tmp[6])))
        items.append((4, lambda: k.V("v_lshl_add_u32", tmp[6], self.vRowp, 7, tmp[6])))
        for sp in range(4):
            def f(sp=sp):
                k.S("s_add_u32", T[3], self.sRt, sp); k.S("s_and_b32", T[3], T[3], 3); k.S("s_lshl_b32", T[3], T[3], 11)
                k.S("s_add_u32", T[3], T[3], base)
                k.V("v_add_u32", dst[sp], T[3], tmp[6])
            items.append((20, f))
        return items

    def job_x(self, p):
        k, T = self.k, self.sT
        def f():
            k.S("s_add_u32", M0, self.sMx, XR + (p % 4) * 16384)
            k.S("s_lshl_b32", T[5], self.sAs[p], 7); k.S("s_add_u32", T[5], T[5], self.sXb)
            k.dma(self.vXD[0], self.sX, T[5], 0, ('x', p)); k.dma(self.vXD[1], self.sX, T[5], 1024, ('x', p))
        return f
    def job_w(self, name, p, col, lds):
        k, T = self.k, self.sT
        def f():
            k.S("s_add_u32", M0, self.sMw, lds)
            k.S("s_mul_i32", T[0], self.sAs[p], self.sRS64); k.S("s_add_u32", T[0], T[0], col)
            k.dma(self.vWD, self.sW, T[0], 0, (name, p))
        return f
    def unit_ra(self, pos):
        k, T = self.k, self.sT
        G, q = pos // 4, pos % 4
        k.S("s_add_u32", T[1], self.sRot2, q); k.S("s_and_b32", T[1], T[1], 3 if G < 3 else 1)
        k.S("s_lshr_b32", T[2], T[1], 1); k.S("s_add_u32", T[2], T[2], 2 * G)
        k.S("s_and_b32", T[1], T[1], 1)
    def unit_w(self, pos):
        k, T, U = self.k, self.sT, self.sUW
        self.unit_ra(pos)
        k.S("s_add_u32", T[2], T[2], T[1])
        k.S("s_cmp_eq_u32", T[2], 7); k.S("s_cselect_b32", T[2], 0, T[2])
        k.S("s_mul_i32", T[1], T[1], 7); k.S("s_add_u32", T[2], T[2], T[1])
        k.S("s_mul_i32", T[1], self.sRt, 14); k.S("s_add_u32", T[2], T[2], T[1])
        if 'w2x' in self.c.get('exp', ''): k.S("s_and_b32", T[2], T[2], 1)
        k.S("s_mul_i32", U[0], T[2], 32 * 896)
    def unit_a(self, pos):
        k, T, U = self.k, self.sT, self.sUW
        self.unit_ra(pos)
        k.S("s_mul_i32", T[1], T[1], 7); k.S("s_add_u32", T[2], T[2], T[1]); k.S("s_lshl_b32", U[1], T[2], 11)
    def a_pos(self, n):
        pos = n if n < 11 else [0, 1, 3, 4, 5, 6, 7, 8, 9, 10][(n - 11) % 10]
        return (0, pos * 2048) if pos < 3 else (1, (pos - 3) * 2048)
    def job_p2_shared(self, n):
        k, T = self.k, self.sT
        def f():
            if n % 2 == 0:
                self.unit_w(n // 2)
                k.S("s_mul_i32", T[1], self.sRt, 112 * 896); k.S("s_add_u32", T[1], T[1], (n // 2) * 28 * 896)
                k.S("s_cmp_eq_u32", self.sGrp, 0); k.S("s_cselect_b32", self.sUW[2], self.sUW[0], T[1])
            k.S("s_add_u32", M0, self.sMp[0], n * 2048)
            b = 2 * (n % 2)
            k.dma(self.vP2d[b], self.sP2, self.sUW[2], 0, ('p2', n)); k.dma(self.vP2d[b + 1], self.sP2, self.sUW[2], 1024, ('p2', n))
        return f
    def p2_bases(self):
        k, T = self.k, self.sT
        k.S("s_mul_i32", T[1], self.sRt, 6144); k.S("s_add_u32", T[1], T[1], WB + 32768)
        k.S("s_lshl_b32", T[2], self.sRt, 13); k.S("s_add_u32", T[3], T[2], WB)
        k.S("s_cmp_eq_u32", self.sGrp, 0)
        k.S("s_cselect_b32", self.sMp[0], T[1], T[3])
        k.S("s_lshl_b32", T[1], self.sRt, 14); k.S("s_add_u32", T[2], T[2], W0R)
        k.S("s_cmp_eq_u32", self.sGrp, 0)
        k.S("s_cselect_b32", self.sMp[1], T[1], T[2])

    def x_reads(self, p):
        k = self.k
        off = XR + (p % 4) * 16384
        for t in range(2): k.ds_read("ds_read_b128", self.xt[4 * t:4 * t + 4], self.vXT[t], off)
        for sp in range(4): k.ds_read("ds_read_b128", a(16 * p + 4 * sp, 4), self.vXR[sp], off)
    def dots(self):
        k = self.k
        for i in range(8):
            k.V("v_dot2c_f32_bf16", self.sq, self.xt[i], self.xt[i])
            k.V("v_dot2c_f32_bf16", self.sum, self.sOnes, self.xt[i])
    def run_slots(self, slots, pre_read, pre_mfma, post_mfma, fill, dq, first_ring=0, tail_reads=None):
        k, LA = self.k, self.c['LA']
        NF = 6
        assert 2 <= LA <= 4
        dq.sort(key=lambda e: e[0])
        def frag(n): return a(112 + 4 * ((n + first_ring) % NF), 4)
        def read(n):
            if n in pre_read: pre_read[n]()
            sl = slots[n]
            k.ds_read("ds_read_b64_tr_b16", frag(n)[0:2], sl['addr'], sl['off'])
            k.ds_read("ds_read_b64_tr_b16", frag(n)[2:4], sl['addr'], sl['off'] + sl['second'])
        for n in range(min(LA, len(slots))): read(n)
        for n, sl in enumerate(slots):
            if n in pre_mfma: pre_mfma[n]()
            x = a(4 * sl['xi'], 4)
            C = 0 if sl['first'] else sl['acc']
            if n % 2 == 0 and n + 1 < len(slots): k.wait_regs(frag(n), frag(n + 1), x)
            if sl['wfirst']: k.mfma(True, sl['acc'], frag(n), x, C)
            else: k.mfma(True, sl['acc'], x, frag(n), C)
            if sl['cs'] is not None: k.mfma(False, sl['cs'], self.IND, frag(n), 0 if sl['csfirst'] else sl['cs'])
            if n + LA < len(slots): read(n + LA)
            if n in post_mfma: post_mfma[n]()
            while dq and dq[0][0] <= n: dq.pop(0)[1]()
            fill.run(sl.get('bud', self.c['bud']))
    def cnt_zero(self):
        k, tmp = self.k, self.tmp
        k.V("v_mov_b32", tmp[6], CNT); k.V("v_mov_b32", self.et[0], 0); k.V("v_mov_b32", self.et[1], 0); k.ds_write("ds_write_b64", tmp[6], self.et[0:2], 0)
    def cnt_add(self, which=0, wait=True):
        k, tmp = self.k, self.tmp
        if wait: k.wait_lg_all()
        k.V("v_mov_b32", tmp[4], CNT + 4 * which); k.V("v_mov_b32", tmp[5], 1)
        k.ds_write("ds_add_u32", tmp[4], tmp[5], 0)
    def cnt_wait(self, target, which=0):
        k, tmp, T = self.k, self.tmp, self.sT
        top = k.newlabel("Lcnt")
        k.wait_lg_all()
        k.V("v_mov_b32", tmp[4], CNT + 4 * which)
        k.S("s_mov_b32", T[1], self.c['spin'] * 8)
        k.label(top)
        k.raw(f"  ds_read_b32 {tmp[5]}, {tmp[4]}\n  s_waitcnt lgkmcnt(0)\n  v_readfirstlane_b32 {T[0]}, {tmp[5]}\n  s_sub_u32 {T[1]}, {T[1]}, 1\n  s_cbranch_scc1 {top}d\n  s_cmp_ge_u32 {T[0]}, {target}\n  s_cbranch_scc0 {top}")
        k.label(top + "d")
    def bar_wait(self, *toks, lg=False):
        def f():
            self.k.wait_tok(*toks)
            if lg: self.k.wait_lg_all()
            self.k.barrier()
        return f
    def stats_part1(self):
        k, T, tmp = self.k, self.sT, self.tmp
        it = []
        def a0():
            k.S("s_lshl_b32", T[3], self.sWv, 9); k.S("s_add_u32", T[3], T[3], STA)
            k.V("v_lshl_add_u32", tmp[4], self.lane, 3, T[3])
        it.append((12, a0))
        def a1():
            k.V("v_mov_b32", self.sp[0], self.sum); k.V("v_mov_b32", self.sp[1], self.sq)
        it.append((8, a1))
        it.append((4, lambda: k.ds_write("ds_write_b64", tmp[4], self.sp, 0, tok='st')))
        it.append((4, lambda: k.V("v_xor_b32", tmp[4], 2048, tmp[4])))
        return it
    def stats_part2(self):
        k, T, tmp = self.k, self.sT, self.tmp
        it = []
        it.append((4, lambda: k.ds_read("ds_read_b64", self.sp, tmp[4], 0)))
        it.append((4, lambda: k.V("v_add_f32", self.sum, self.sum, self.sp[0])))
        it.append((4, lambda: k.V("v_add_f32", self.sq, self.sq, self.sp[1])))
        it.append((8, lambda: (k.V("v_mov_b32", self.sp[0], self.sum), k.V("v_mov_b32", self.sp[1], self.sq))))
        it.append((8, lambda: (k.V("v_permlane32_swap_b32", self.sum, self.sp[0]), k.V("v_permlane32_swap_b32", self.sq, self.sp[1]))))
        it.append((8, lambda: (k.V("v_add_f32", self.sum, self.sum, self.sp[0]), k.V("v_add_f32", self.sq, self.sq, self.sp[1]))))
        mean, var = self.sum, self.sq
        it.append((8, lambda: (k.V("v_mul_f32", mean, -1.0 / 448, mean), k.V("v_mul_f32", var, 1.0 / 448, var))))
        it.append((4, lambda: k.Vneg("v_fma_f32", var, mean, mean, var, (True, False, False))))
        it.append((8, lambda: (k.V("v_max_f32", var, 0, var), k.V("v_add_f32", var, 1e-5, var))))
        it.append((8, lambda: k.V("v_sqrt_f32", self.irs, var)))
        it.append((4, lambda: k.V("v_cvt_pk_bf16_f32", self.sp[0], mean, mean)))
        it.append((8, lambda: k.V("v_rcp_f32", self.cc, self.irs)))
        it.append((4, lambda: k.V("v_and_b32", self.sp[1], 0xffff0000, self.sp[0])))
        it.append((4, lambda: k.V("v_sub_f32", self.sp[1], mean, self.sp[1])))
        it.append((4, lambda: k.V("v_mul_f32", self.cc, self.ccmul, self.cc)))
        it.append((4, lambda: k.V("v_cvt_pk_bf16_f32", self.sp[1], self.sp[1], self.sp[1])))
        for i in range(4):
            it.append((4, lambda i=i: k.V("v_cndmask_b32_e64", self.mneg[i], self.sp[0], self.sp[1], self.sHi)))
        return it
    def cs_pack(self, cs, idx, dst=None):
        k = self.k
        it = []
        it.append((4, lambda: k.V("v_cvt_pk_bf16_f32", cs[1], cs[0], cs[0])))
        it.append((4, lambda: k.V("v_and_b32", cs[1], 0xffff0000, cs[1])))
        it.append((4, lambda: k.V("v_sub_f32", cs[1], cs[0], cs[1])))
        if dst is None:
            it.append((4, lambda: k.V("v_cvt_pk_bf16_f32", cs[1], cs[0], cs[1])))
            it.append((4, lambda: k.ds_write("ds_write_b32", self.vCSW, cs[1], idx * 1024, tok='cs')))
        else:
            it.append((4, lambda: k.V("v_cvt_pk_bf16_f32", dst[0], cs[0], cs[1])))
            it.append((12, lambda: [k.V("v_mov_b32", dst[i], 0) for i in (1, 2, 3)]))
        return it
    def cs_apply(self, cs, idx, acc, wfirst, read=True):
        k = self.k
        it = []
        if read: it.append((4, lambda: k.ds_read("ds_read_b128", cs, self.vCSR, idx * 1024)))
        it.append((8, (lambda: k.mfma(True, acc, cs, self.mneg, acc)) if wfirst else (lambda: k.mfma(True, acc, self.mneg, cs, acc))))
        return it
    def epi_silu(self, acc, sbyte, tok):
        k, T = self.k, self.sT
        it = []; t = self.et; O = self.eo
        for g4 in range(4):
            A = [acc[4 * g4 + i] for i in range(4)]
            for i in range(4): it.append((4, lambda i=i, A=A: k.V("v_mul_f32", t[i], self.cc, A[i])))
            for i in range(4): it.append((8, lambda i=i: k.V("v_exp_f32", t[i], t[i])))
            for i in range(4): it.append((4, lambda i=i: k.V("v_fma_f32", t[i], t[i], self.irs, self.irs)))
            for i in range(4): it.append((8, lambda i=i: k.V("v_rcp_f32", t[i], t[i])))
            for i in range(4): it.append((4, lambda i=i, A=A: k.V("v_mul_f32", t[i], t[i], A[i])))
            for i in range(2): it.append((4, lambda i=i, g4=g4: k.V("v_cvt_pk_bf16_f32", O[2 * g4 + i], t[2 * i], t[2 * i + 1])))
            if g4 % 2 == 1:
                h = g4 // 2
                def st(h=h):
                    k.S("s_mov_b32", T[3], sbyte)
                    k.gstore(O[4 * h:4 * h + 4], self.vST, self.sWS, T[3], imm=1024 * h, mod=self.c.get('hmod', " sc1"), tok=tok)
                it.append((8, st))
        return it
    def phi4(self, A, sc, dst2):
        k, t = self.k, self.et
        it = []
        for i in range(4): it.append((4, lambda i=i: k.V("v_mul_f32", A[i], sc[i], A[i])))
        for i in range(4): it.append((8, lambda i=i: k.V("v_exp_f32_e64", t[i], A[i], mod="clamp")))
        for i in range(4): it.append((4, lambda i=i: k.V("v_max_f32", A[i], 1e-6 * LOG2E, A[i])))
        for i in range(4): it.append((4, lambda i=i: k.V("v_fmac_f32", t[i], self.sLn2, A[i])))
        for i in range(2): it.append((4, lambda i=i: k.V("v_cvt_pk_bf16_f32", dst2[i], t[2 * i], t[2 * i + 1])))
        return it

    QOFF = [49152, 57344, 0, 8192, 16384, 24576, 32768]
    def flag_addr(self, base, sline, shift, sidx):
        k, T, tmp = self.k, self.sT, self.tmp
        k.S("s_lshl_b32", T[1], sline, shift + 7); k.S("s_lshl_b32", T[2], sidx, 7); k.S("s_add_u32", T[1], T[1], T[2]); k.S("s_add_u32", T[1], T[1], base)
        k.V("v_mov_b32", tmp[4], OOB); k.V("v_mov_b32", tmp[5], T[1])
        k.V("v_cmp_eq_u32", VCC, 0, self.lane); k.V("v_cndmask_b32", self.vFA, tmp[4], tmp[5])

    def role_h(self):
        k, T, tmp, c = self.k, self.sT, self.tmp, self.c
        k.label("L_roleH")
        self.ccmul = -LOG2E
        col = self.sCol
        k.S("s_add_u32", col[1], col[0], 128); k.S("s_add_u32", col[2], col[0], 256)
        k.S("s_and_b32", T[1], self.sIdx, 1); k.S("s_mul_i32", T[2], self.sIdx, 448)
        k.S("s_xor_b32", T[1], T[1], 1); k.S("s_mul_i32", T[1], T[1], 384); k.S("s_add_u32", col[3], T[2], T[1])
        acc = self.blk[0:2]; cs = self.cs; vWH = self.vWH
        for f in (self.job_x(1), self.job_w('w0', 1, col[0], W0R + 8192)): f()
        for _, f in self.tr_addrs(self.vTX, 64, W0R): f()
        k.V("v_lshrrev_b32", tmp[4], 2, self.lane); k.S("s_lshl_b32", T[1], self.sRt, 4); k.V("v_add_u32", tmp[4], T[1], tmp[4])
        k.V("v_and_b32", tmp[5], 3, self.lane); k.V("v_lshlrev_b32", tmp[5], 4, tmp[5])
        k.S("s_movk_i32", T[1], 3584); k.V("v_mad_u32_u24", vWH, tmp[4], T[1], tmp[5])
        k.S("s_lshl_b32", T[1], self.sI, 2); k.S("s_add_u32", T[1], T[1], self.sRt)
        k.S("s_mul_i32", T[2], T[1], 112 * 1024); k.S("s_mul_i32", T[3], self.sIdx, 14 * 1024); k.S("s_add_u32", T[2], T[2], T[3])
        k.S("s_lshl_b32", T[3], self.sGrp, 11); k.S("s_add_u32", T[2], T[2], T[3]); k.S("s_add_u32", T[2], T[2], HB)
        k.V("v_lshl_add_u32", self.vST, self.lane, 4, T[2])
        k.S("s_mov_b32", T[0], T[1]); k.S("s_lshl_b32", T[3], self.sIdx, 1); k.S("s_add_u32", T[3], T[3], self.sGrp)
        self.flag_addr(FLH, T[0], 4, T[3])
        self.p2_bases()
        for _, f in self.tr_addrs(self.vTY, 64, WB): f()
        if c['deep']:
            for f in (self.job_x(2), self.job_w('w0', 2, col[0], W0R + 16384)): f()

        def job_h(m):
            def f():
                k.S("s_cmp_eq_u32", self.sGrp, 0)
                k.S("s_cselect_b32", T[0], self.sAs[2 * m], self.sAs[min(2 * m + 1, 6)])
                k.S("s_mul_i32", T[0], T[0], self.sRS64); k.S("s_add_u32", T[0], T[0], col[3])
                k.S("s_add_u32", M0, self.sMw, W0R + ((3 + m) % 4) * 8192) if m < 3 else (
                    k.S("s_lshl_b32", T[1], self.sRt, 10), k.S("s_add_u32", M0, T[1], W0R + 2 * 8192))
                k.dma(vWH, self.sW, T[0], 0, ('wh', m))
            return f
        slots = []
        for ps in range(3):
            for n in range(28):
                p, sp = divmod(n, 4)
                off = [(p % 4) * 8192, p * 8192, self.QOFF[p]][ps]
                slots.append(dict(acc=acc[ps % 2], wfirst=True, addr=(self.vTY if ps == 1 else self.vTX)[sp], off=off, second=512, xi=n,
                                  cs=cs[ps % 2] if sp == 0 else None, csfirst=p == 0, first=n == 0))
        fill = Fill(); dq = []
        pre_read, pre_mfma, post = {}, {}, {}
        for p in range(7):
            def br(p=p): self.bar_wait(('x', p), ('w0', p))(); self.stamp(f'B{p}'); self.x_reads(p)
            pre_read[4 * p] = br
            pre_mfma[4 * p] = self.dots
        if c['deep']:
            for p in range(4):
                nb = 4 * (p + 1) - c['LA']
                dq.append((nb, self.job_x(p + 3))); dq.append((nb + 1, self.job_w('w0', p + 3, col[0], W0R + ((p + 3) % 4) * 8192)))
            dq.insert(2, (3, self.warm_issue))
            for p, n in enumerate((17, 18, 19, 21, 22, 23, 25)): dq.append((n, self.job_w('w1', p, col[1], WB + p * 8192)))
            for p, n in enumerate((26, 27, 29, 31, 33, 35, 37)): dq.append((n, self.job_w('w2', p, col[2], XR + self.QOFF[p])))
            for m in range(4): dq.append((40 + 3 * m, job_h(m)))
        else:
            for p in range(5):
                dq.append((4 * p, self.job_x(p + 2))); dq.append((4 * p + 2, self.job_w('w0', p + 2, col[0], W0R + ((p + 2) % 4) * 8192)))
            dq.insert(2, (3, self.warm_issue))
            for p in range(7): dq.append((20 + p, self.job_w('w1', p, col[1], WB + p * 8192)))
            for p in range(7): dq.append((31 + 3 * p, self.job_w('w2', p, col[2], XR + self.QOFF[p])))
            for m in range(4): dq.append((50 + 2 * m, job_h(m)))
        for n in range(3): dq.append((62 + 4 * n, self.job_p2_shared(n)))
        if c['l2pf']:
            for q, n in enumerate(c['l2pf']): dq.append((n, self.l2pf_job(q)))
        def end1():
            self.stamp('p1end')
            fill.extend(self.stats_part1()); fill.extend(self.cs_pack(cs[0], 0))
        post[27] = end1
        pre_read[28] = self.bar_wait(('w1', 0), ('w1', 1))
        def b2():
            fill.drain(); self.bar_wait(('w1', 2), ('w1', 3), ('w1', 4), lg=True)()
            fill.extend(self.stats_part2()); fill.extend(self.cs_apply(cs[0], 0, acc[0], True))
            fill.extend(self.tr_addrs(self.vTX, 64, XR))
            fill.extend(self.epi_silu(acc[0], 0, ('h', 0)))
        pre_read[34] = b2
        pre_read[48] = self.bar_wait(('w1', 5), ('w1', 6))
        def end2():
            fill.drain(); self.stamp('p2end'); fill.extend(self.cs_pack(cs[1], 1))
        post[55] = end2
        pre_read[56] = self.bar_wait(*[('w2', p) for p in range(4)])
        def b3():
            fill.drain(); self.bar_wait(('w2', 4), ('w2', 5), ('w2', 6), lg=True)()
            fill.extend(self.cs_apply(cs[1], 1, acc[1], True)); fill.extend(self.epi_silu(acc[1], 4096, ('h', 1)))
        pre_read[62] = b3
        post[72] = lambda: self.flag_store(1, [('h', 0)])
        self.run_slots(slots, pre_read, pre_mfma, post, fill, dq)
        fill.drain(); self.stamp('p3end')
        for _, f in self.cs_pack(cs[0], 2): f()
        self.cnt_zero()
        self.bar_wait(*[('wh', m) for m in range(4)], lg=True)()
        k.S("s_cmp_eq_u32", self.sGrp, 1)
        k.branch("s_cbranch_scc1", "L_hB")
        st = self.save()
        if not c['J']: self.cnt_add()
        for _, f in self.cs_apply(cs[0], 2, acc[0], True): f()
        epi = self.epi_silu(acc[0], 8192, ('fin',))
        self.p2a_preamble(epi, mid=lambda: self.flag_store(2, [('h', 1)]), epi_first=c['hfirst'])
        k.S("s_add_u32", T[4], self.sTag[0], 3); k.V("v_mov_b32", self.vFV[0], T[4])
        self.stamp('tail')
        self.joinA.append(self.exit_state()); k.branch("s_branch", "L_p2a")
        self.restore(st)
        k.label("L_hB")
        if c['prio']: k.sraw(f"s_setprio {c['prio']}")
        vTH = self.vTY
        k.V("v_lshlrev_b32", tmp[6], 6, self.vRowp); k.V("v_and_b32", tmp[5], 63, self.vColb); k.V("v_add_u32", tmp[6], tmp[6], tmp[5])
        for sp in range(4):
            k.S("s_add_u32", T[3], self.sRt, sp); k.S("s_and_b32", T[3], T[3], 3); k.S("s_lshl_b32", T[3], T[3], 10)
            k.S("s_add_u32", T[3], T[3], W0R); k.V("v_add_u32", vTH[sp], T[3], tmp[6])
        hoff = [3 * 8192, 3 * 8192 + 4096, 0, 4096, 8192, 8192 + 4096, 2 * 8192]
        slots = [dict(acc=acc[1], wfirst=True, addr=vTH[n % 4], off=hoff[n // 4], second=256, xi=n, cs=cs[1], csfirst=n == 0, first=n == 0) for n in range(28)]
        fill = Fill()
        fill.extend(self.cs_apply(cs[0], 2, acc[0], True)); fill.extend(self.epi_silu(acc[0], 8192, ('h', 2)))
        self.stamp('X')
        self.run_slots(slots, {}, {}, {3: lambda: self.stamp('pi'), 5: lambda: self.stamp('j3'), 9: lambda: self.stamp('e1'), 10: lambda: self.flag_store(2, [('h', 1)]), 11: lambda: self.stamp('G0'), 16: lambda: self.stamp('al0'), 22: lambda: self.stamp('al1')}, fill, [(4, self.job_p2_b(3))])
        fill.drain(); self.stamp('p4end')
        if not c['J']: self.cnt_add()
        for _, f in self.cs_pack(cs[1], 0, dst=cs[0]): f()
        for _, f in self.cs_apply(cs[0], 0, acc[1], True, read=False): f()
        epi = self.epi_silu(acc[1], 10240, ('fin',))
        half = len(epi) // 2
        for _, f in epi[:half - 1]: f()
        self.flag_store(3, [('h', 2)])
        for _, f in epi[half - 1:]: f()
        k.S("s_add_u32", T[4], self.sTag[0], 4); k.V("v_mov_b32", self.vFV[0], T[4])
        self.stamp('tail')
        self.joinB.append(self.exit_state()); k.branch("s_branch", "L_p2b")

    def save(self):
        import copy
        k = self.k
        return (copy.deepcopy(k.vm), copy.deepcopy(k.lg), list(k.hist), k.pos)
    def restore(self, st):
        k = self.k
        k.vm, k.lg, k.hist, k.pos = [dict(e) for e in st[0]], [dict(e) for e in st[1]], list(st[2]), st[3]
    def exit_state(self):
        self.k.wait_lg_all()
        self.k.flush_hazards()
        return [dict(e) for e in self.k.vm]
    def merge(self, states):
        k = self.k
        young = {}
        for st in states:
            for i, e in enumerate(st):
                y = len(st) - 1 - i
                keys = [('t', e['tok'])] + [('r', r) for r in e['regs']]
                for key in keys: young[key] = min(young.get(key, 99), y)
        L = max(young.values()) + 1 if young else 0
        q = []
        for key, y in young.items(): q.append((L - 1 - y, key))
        k.vm = []
        for pos in range(L):
            es = [key for p_, key in q if p_ == pos]
            k.vm.append(dict(regs={x[1] for x in es if x[0] == 'r'}, tok=None, toks={x[1] for x in es if x[0] == 't'}))
        k.lg = []; k.hist = []

    def role_qkv(self):
        k, T, tmp, c = self.k, self.sT, self.tmp, self.c
        k.label("L_roleQ")
        self.vPFa = v(23)
        self.ccmul = LOG2E
        col = self.sCol
        def slab(p):
            for f in (self.job_x(p), self.job_w('k', p, col[0], KVR + p * 16384), self.job_w('v', p, col[1], KVR + p * 16384 + 8192)): f()
        accQ, accK, accV = self.blk
        csK, csV, csQ = self.cs
        R2 = [v(44), v(45), v(46), v(47), v(48), v(49), v(50), v(51), v(52), v(53), v(54), v(55), v(112), v(113), v(114), v(115)]
        R2q = [v(44, 4), v(48, 4), v(52, 4), v(112, 4)]
        slab(1)
        for _, f in self.tr_addrs(self.vTX, 56, KVR): f()
        for _, f in self.tr_addrs(self.vTY, 56, XR): f()
        head = col[3]
        k.S("s_lshl_b32", head, self.sIdx, 1); k.S("s_add_u32", head, head, self.sGrp)
        k.S("s_lshl_b32", T[1], head, 4); k.S("s_add_u32", T[1], T[1], self.sI); k.S("s_lshl_b32", T[1], T[1], 2); k.S("s_add_u32", T[1], T[1], self.sRt)
        k.S("s_lshl_b32", T[1], T[1], 10); k.S("s_add_u32", T[1], T[1], PB)
        k.V("v_lshl_add_u32", self.vST, self.lane, 4, T[1])
        k.S("s_lshl_b32", T[0], head, 1); k.S("s_lshr_b32", T[3], self.sRt, 1); k.S("s_add_u32", T[0], T[0], T[3])
        k.S("s_lshl_b32", T[3], self.sI, 1); k.S("s_and_b32", T[4], self.sRt, 1); k.S("s_add_u32", T[3], T[3], T[4])
        self.flag_addr(FLP, T[0], 5, T[3])
        self.p2_bases()
        slots = []
        for n in range(56):
            p, r = divmod(n, 8); sp, sub = divmod(r, 2)
            slots.append(dict(acc=(accK, accV)[sub], wfirst=False, addr=self.vTX[sp], off=(p % 4) * 16384 + 8192 * sub, second=512, xi=4 * p + sp,
                              cs=(csK, csV)[sub] if sp == 0 else None, csfirst=p == 0, first=n < 2))
        for n in range(28):
            p, sp = divmod(n, 4)
            slots.append(dict(acc=accQ, wfirst=True, addr=self.vTY[sp], off=self.QOFF[p], second=512, xi=n,
                              cs=csQ if sp == 0 else None, csfirst=p == 0, first=n == 0, bud=30))
        fill = Fill(); dq = []
        pre_read, pre_mfma, post = {}, {}, {}
        for p in range(7):
            def br(p=p): self.bar_wait(('x', p), ('k', p), ('v', p))(); self.stamp(f'B{p}'); self.x_reads(p)
            pre_read[8 * p] = br
            pre_mfma[8 * p] = self.dots
        if c['deep']:
            slab(2)
            for p in range(4):
                o = KVR + ((p + 3) % 4) * 16384
                nb = 8 * (p + 1) - c['LA']
                dq += [(nb, self.job_x(p + 3)), (nb + 1, self.job_w('k', p + 3, col[0], o)), (nb + 2, self.job_w('v', p + 3, col[1], o + 8192))]
            dq.insert(3, (9, self.warm_issue))
            for p, n in enumerate((33, 35, 38, 40, 46, 48, 57 if c['k1'] == 1 else 55)): dq.append((n, self.job_w('q', p, col[2], XR + self.QOFF[p])))
        else:
            for p in range(5):
                o = KVR + ((p + 2) % 4) * 16384
                dq += [(8 * p, self.job_x(p + 2)), (8 * p + 3, self.job_w('k', p + 2, col[0], o)), (8 * p + 5, self.job_w('v', p + 2, col[1], o + 8192))]
            dq.insert(3, (6, self.warm_issue))
            for p, n in enumerate((40, 42, 44, 46, 49, 52, 54)): dq.append((n, self.job_w('q', p, col[2], XR + self.QOFF[p])))
        for n in range(3): dq.append(((58 if c['k1'] == 1 else 64) + 4 * n, self.job_p2_shared(n)))
        pk = self.xt; pv = accV[0:8]
        def kv_epilogue():
            it = list(self.stats_part2())
            def r2w():
                k.S("s_lshl_b32", T[3], self.sWv, 7); k.S("s_add_u32", T[3], T[3], R2A)
                k.V("v_and_b32", tmp[4], 31, self.lane); k.V("v_lshl_add_u32", tmp[4], tmp[4], 2, T[3])
                k.ds_write("ds_write_b32", tmp[4], self.cc, 0)
                k.V("v_lshrrev_b32", tmp[4], 5, self.lane); k.V("v_lshl_add_u32", tmp[4], tmp[4], 4, T[3])
                for q in range(4): k.ds_read("ds_read_b128", R2q[q], tmp[4], 32 * q)
            it.append((40, r2w))
            ak, av = self.cs_apply(csK, 0, accK, False), self.cs_apply(csQ if c['k1'] == 1 else self.et, 1, accV, False)
            it = ([ak[0], av[0]] + it[:-1] + [ak[1], av[1]] + it[-1:]) if c['k1'] == 1 else (it + ak + av)
            vmul = [(4, lambda i=i: k.V("v_mul_f32", accV[i], R2[i], accV[i])) for i in range(16)]
            for g4 in range(4):
                it += self.phi4([accK[4 * g4 + i] for i in range(4)], [R2[4 * g4 + i] for i in range(4)], pk[2 * g4:2 * g4 + 2])
            it.append((4, lambda: k.V("v_mov_b32", self.et[0], ONES)))
            it += vmul
            for i in range(8): it.append((4, lambda i=i: k.V("v_cvt_pk_bf16_f32", pv[i], accV[2 * i], accV[2 * i + 1])))
            for i in range(8): it.append((4, lambda i=i: k.V("v_cndmask_b32_e64", pv[i], pv[i], self.et[0], self.sPad)))
            it.append((8, lambda: k.mfma(True, accK, pk[0:4], pv[0:4], 0)))
            it.append((8, lambda: k.mfma(True, accK, pk[4:8], pv[4:8], accK)))
            def addrs():
                k.S("s_lshl_b32", T[3], self.sGrp, 14); k.S("s_lshl_b32", T[4], self.sRt, 10); k.S("s_add_u32", T[4], T[4], T[3]); k.S("s_add_u32", T[4], T[4], EXA)
                k.V("v_lshl_add_u32", tmp[4], self.lane, 4, T[4])
                k.S("s_lshl_b32", T[4], self.sRt, 12); k.S("s_add_u32", T[4], T[4], T[3]); k.S("s_add_u32", T[4], T[4], EXA)
                k.V("v_lshl_add_u32", tmp[5], self.lane, 4, T[4])
            it.append((40, addrs))
            for d in range(4): it.append((4, lambda d=d: k.ds_write("ds_write_b128", tmp[4], accK[4 * d:4 * d + 4], d * 4096)))
            return it
        def kv_publish():
            it = [(4, lambda sw=sw: k.ds_read("ds_read_b128", accV[4 * sw:4 * sw + 4], tmp[5], sw * 1024)) for sw in range(4)]
            for i in range(4): it.append((8, lambda i=i: (k.V("v_add_f32", accV[i], accV[i], accV[4 + i]), k.V("v_add_f32", accV[8 + i], accV[8 + i], accV[12 + i]))))
            for i in range(4): it.append((4, lambda i=i: k.V("v_add_f32", accV[i], accV[i], accV[8 + i])))
            it.append((4, lambda: k.gstore(accV[0:4], self.vST, self.sWS, 0, mod=" sc1", tok=('pst',))))
            it.append((0, lambda: self.stamp('pst')))
            return it
        if c['k1'] == 2:
            def end1():
                self.stamp('p1end')
                fill.extend(self.cs_pack(csK, 0)); fill.extend(self.cs_pack(csV, 1)); fill.extend(self.stats_part1())
            post[55] = end1
            for n in range(56, 84): slots[n]['bud'] = c['budq']
            pre_read[56] = self.bar_wait(('q', 0), ('q', 1))
            def b2():
                fill.drain(); self.bar_wait(('q', 2), ('q', 3), lg=True)()
                fill.extend(kv_epilogue())
            pre_read[57 + c['LA']] = b2
            pre_read[72] = self.bar_wait(('q', 4), ('q', 5), ('q', 6))
            def b4():
                fill.drain(); self.bar_wait(lg=True)()
                fill.extend(kv_publish())
            pre_read[c['xbar']] = b4
            self.run_slots(slots, pre_read, pre_mfma, post, fill, dq)
            fill.drain(); self.stamp('p2end')
            for _, f in self.cs_pack(csQ, 2): f()
            self.cnt_zero()
            self.bar_wait(lg=True)()
            for _, f in self.cs_apply(csQ, 2, accQ, True): f()
        elif c['k1']:
            dq1 = [e for e in dq if e[0] < 56]; dq2 = [(e[0] - 56, e[1]) for e in dq if e[0] >= 56]
            self.run_slots(slots[:56], pre_read, pre_mfma, {}, fill, dq1)
            self.stamp('p1end')
            if c['qpf']:
                self.l2pf_job(0)(); self.l2pf_job(1)()
                dq2 += [(c['qpf'], self.l2pf_job(2)), (c['qpf'] + 2, self.l2pf_job(3))]
            for _, f in self.cs_pack(csK, 0) + self.cs_pack(csV, 1) + self.stats_part1(): f()
            self.bar_wait(lg=True)()
            for _, f in kv_epilogue(): f()
            self.bar_wait(('q', 0), ('q', 1), ('q', 2), ('q', 3), lg=True)()
            fill.extend(kv_publish())
            self.run_slots(slots[56:], {16: self.bar_wait(('q', 4), ('q', 5), ('q', 6))}, {}, {c['pflagn']: lambda: self.flag_store(1, [('pst',)], ' sc1')}, fill, dq2)
            fill.drain(); self.stamp('p2end')
            for _, f in self.cs_pack(csQ, 2): f()
            self.cnt_zero()
            self.bar_wait(lg=True)()
            for _, f in self.cs_apply(csQ, 2, accQ, True): f()
        else:
            def end1():
                self.stamp('p1end')
                fill.extend(self.stats_part1()); fill.extend(self.cs_pack(csK, 0)); fill.extend(self.cs_pack(csV, 1))
            post[55] = end1
            pre_read[56] = self.bar_wait(('q', 0), ('q', 1))
            def b2():
                fill.drain(); self.bar_wait(('q', 2), ('q', 3), lg=True)()
                fill.extend(kv_epilogue())
            pre_read[62] = b2
            pre_read[72] = self.bar_wait(('q', 4), ('q', 5), ('q', 6))
            self.run_slots(slots, pre_read, pre_mfma, post, fill, dq)
            fill.drain(); self.stamp('p2end')
            for _, f in self.cs_pack(csQ, 2): f()
            self.cnt_zero()
            self.bar_wait(lg=True)()
            pub = kv_publish()
            for _, f in pub[:4]: f()
            for _, f in self.cs_apply(csQ, 2, accQ, True): f()
            for _, f in pub[4:]: f()
        if not c['J']: self.cnt_add()
        self.stamp('p3end')
        k.S("s_lshl_b32", T[1], self.sI, 2); k.S("s_add_u32", T[1], T[1], self.sRt)
        k.S("s_lshl_b32", T[2], T[1], 4); k.S("s_add_u32", T[2], T[2], head); k.S("s_lshl_b32", T[2], T[2], 11); k.S("s_add_u32", T[2], T[2], QB)
        vSQ = self.vWH
        k.V("v_lshl_add_u32", vSQ, self.lane, 4, T[2])
        k.S("s_mov_b32", self.sCol[0], T[1])
        def qepi():
            it = []
            for g4 in range(4):
                it += self.phi4([accQ[4 * g4 + i] for i in range(4)], [self.cc] * 4, pk[2 * g4:2 * g4 + 2])
                if g4 % 2 == 1:
                    h = g4 // 2
                    it.append((4, lambda h=h: k.gstore(pk[4 * h:4 * h + 4], vSQ, self.sWS, 0, imm=1024 * h, mod=self.c.get('hmod', " sc1"), tok=('fin',))))
            return it
        def pflag_then_qaddr():
            if c['k1'] != 1: self.flag_store(1, [('pst',)], ' sc1')
            self.flag_addr(FLQ, self.sCol[0], 4, head)
            k.S("s_add_u32", T[4], self.sTag[0], 1); k.V("v_mov_b32", self.vFV[0], T[4])
        k.S("s_cmp_eq_u32", self.sIsRed, 1)
        k.branch("s_cbranch_scc1", "L_red")
        k.S("s_cmp_eq_u32", self.sGrp, 1)
        k.branch("s_cbranch_scc1", "L_qB")
        st = self.save()
        self.p2a_preamble(qepi(), mid=pflag_then_qaddr, epi_first=c['qfirst'])
        self.stamp('tail')
        self.joinA.append(self.exit_state()); k.branch("s_branch", "L_p2a")
        self.restore(st)
        k.label("L_qB")
        if c['prio']: k.sraw(f"s_setprio {c['prio']}")
        for _, f in qepi(): f()
        self.job_p2_b(3)()
        pflag_then_qaddr()
        self.stamp('tail')
        self.joinB.append(self.exit_state()); k.branch("s_branch", "L_p2b")
        self.restore(st)
        k.label("L_red")
        for _, f in qepi(): f()
        pflag_then_qaddr()
        self.stamp('tail')
        self.reducer()

    def reducer(self):
        k, T, tmp, lane, c = self.k, self.sT, self.tmp, self.lane, self.c
        vP, vPA, vD = v(44, 2), v(46), v(47)
        k.S("s_lshl_b32", T[1], self.sRho, 12); k.S("s_add_u32", T[1], T[1], FLP)
        k.V("v_lshl_add_u32", tmp[4], lane, 7, T[1]); k.V("v_mov_b32", tmp[5], OOB)
        k.V("v_cmp_gt_u32", VCC, 32, lane); k.V("v_cndmask_b32", vPA, tmp[5], tmp[4])
        self.poll_issue(vP, vPA)
        k.S("s_lshr_b32", T[1], self.sRho, 1); k.S("s_lshl_b32", T[1], T[1], 16); k.S("s_and_b32", T[2], self.sRho, 1); k.S("s_lshl_b32", T[2], T[2], 11)
        k.S("s_add_u32", T[1], T[1], T[2]); k.S("s_lshl_b32", T[2], self.sWv, 7); k.S("s_add_u32", T[1], T[1], T[2]); k.S("s_add_u32", T[1], T[1], PB)
        k.V("v_lshrrev_b32", tmp[4], 3, lane); k.V("v_and_b32", tmp[5], 7, lane)
        k.V("v_lshlrev_b32", tmp[4], 12, tmp[4]); k.V("v_lshl_add_u32", tmp[4], tmp[5], 4, tmp[4]); k.V("v_add_u32", tmp[4], T[1], tmp[4])
        self.poll_check(vP, vPA, vD, 1, (-1, 0))
        self.stamp('c1')
        A, B = v(76, 8), v(84, 8)
        k.S("s_mov_b32", T[2], 32768)
        for i2, dst in enumerate((A, B)):
            for qq in range(2): k.gload(dst[4 * qq:4 * qq + 4], tmp[4], self.sWS, T[2] if i2 else 0, imm=1024 * qq, mod=" sc1")
        self.flag_store(1, [('fin',)])
        k.S("s_and_b32", T[3], self.sWv, 3); k.S("s_cmp_eq_u32", T[3], 3); k.S("s_cselect_b32", T[3], 4, 8)
        k.V("v_cmp_gt_u32", VCC, T[3], tmp[5]); k.V("v_mov_b32", tmp[6], 1.0); k.V("v_mov_b32", tmp[7], self.sLn2)
        k.V("v_cndmask_b32", tmp[6], tmp[6], tmp[7])
        k.S("s_and_b32", T[3], self.sRho, self.sGrp); k.S("s_and_b32", T[3], T[3], 1); k.S("s_cmp_eq_u32", T[3], 1); k.S("s_cselect_b32", T[3], 0, 1.0)
        k.V("v_mul_f32", tmp[7], T[3], tmp[6])
        k.S("s_lshl_b32", T[1], self.sRho, 10); k.S("s_lshl_b32", T[2], self.sWv, 7); k.S("s_add_u32", T[1], T[1], T[2]); k.S("s_add_u32", T[1], T[1], KVB)
        k.V("v_lshl_add_u32", tmp[4], lane, 4, T[1]); k.V("v_mov_b32", tmp[5], OOB)
        k.V("v_cmp_gt_u32", VCC, 8, lane); k.V("v_cndmask_b32", tmp[4], tmp[5], tmp[4])
        for i in range(8): k.V("v_add_f32", A[i], A[i], B[i])
        for i in range(8): k.emit(f"v_add_f32_dpp {B[i]}, {A[i]}, {A[i]} row_ror:8 row_mask:0xf bank_mask:0xf", 'perm', rd=[A[i]], wr=[B[i]])
        for op in ("v_permlane16_swap_b32", "v_permlane32_swap_b32"):
            for i in range(8): k.V("v_mov_b32", A[i], B[i])
            for i in range(8): k.V(op, A[i], B[i])
            for i in range(8): k.V("v_add_f32", B[i], A[i], B[i])
        for i in range(8): k.V("v_mul_f32", B[i], tmp[6] if i < 4 else tmp[7], B[i])
        for i in range(4): k.V("v_cvt_pk_bf16_f32", A[i], B[2 * i], B[2 * i + 1])
        k.gstore(A[0:4], tmp[4], self.sWS, 0, mod=" sc1", tok=('kv',))
        k.wait_tok(('kv',)); k.barrier()
        k.S("s_cmp_eq_u32", self.sWv, 0)
        k.branch("s_cbranch_scc0", "L_fin")
        k.S("s_lshr_b32", T[0], self.sRho, 3); k.S("s_and_b32", T[3], self.sRho, 7)
        self.flag_addr(FLK, T[0], 3, T[3])
        self.flag_store(1, [], ' sc1')
        self.stamp('c2')
        k.S("s_cmp_eq_u32", self.sRho, 0)
        k.branch("s_cbranch_scc0", "L_fin")
        k.V("v_lshlrev_b32", tmp[4], 7, lane); k.V("v_add_u32", tmp[4], FLK, tmp[4]); k.V("v_mov_b32", tmp[5], OOB)
        k.V("v_cmp_gt_u32", VCC, 32, lane); k.V("v_cndmask_b32", vPA, tmp[5], tmp[4])
        self.poll_issue(vP, vPA); self.poll_check(vP, vPA, vD, 1, (-1, 0))
        k.V("v_lshrrev_b32", tmp[4], 2, lane); k.V("v_lshlrev_b32", tmp[4], 13, tmp[4]); k.V("v_and_b32", tmp[5], 3, lane)
        k.V("v_lshl_add_u32", tmp[4], tmp[5], 8, tmp[4])
        for h in range(0 if c.get('local') else 2):
            k.V("v_add_u32", vPA, FLH + 1024 * h, tmp[4])
            self.poll_issue(vP, vPA); self.poll_check(vP, vPA, vD, 1, (-1, -1))
        k.V("v_mov_b32", tmp[4], 0); k.V("v_mov_b32", tmp[5], OOB); k.V("v_cmp_eq_u32", VCC, 0, lane); k.V("v_cndmask_b32", tmp[4], tmp[5], tmp[4])
        k.V("v_mov_b32", self.vFV[0], self.sTag[0])
        k.gstore(self.vFV, tmp[4], self.sWS, 0, imm=EPOCH, mod=" sc1")
        k.branch("s_branch", "L_fin")

    def t2_base(self, dst0, dst1, base):
        k, tmp = self.k, self.tmp
        return [(4, lambda: k.V("v_bfe_u32", tmp[4], self.lane, 2, 2)),
                (4, lambda: k.V("v_lshrrev_b32", tmp[5], 5, self.lane)),
                (4, lambda: k.V("v_lshl_add_u32", tmp[4], tmp[5], 2, tmp[4])),
                (4, lambda: k.V("v_lshl_add_u32", tmp[4], tmp[4], 7, base)),
                (4, lambda: k.V("v_add_u32", dst0, tmp[4], self.vColb)),
                (4, lambda: k.V("v_xor_b32", tmp[5], 64, self.vColb)),
                (4, lambda: k.V("v_add_u32", dst1, tmp[4], tmp[5]))]
    def job_p2_a(self, n):
        k = self.k
        def f():
            if n % 2 == 0: self.unit_w(n // 2)
            src = self.sUW[2] if n == 1 else self.sUW[0]
            r, off = self.a_pos(n)
            k.S("s_add_u32", M0, self.sMp[r], off)
            b = 2 * (n % 2)
            if 'xW2' in self.c.get('exp', '') and n > 3: return
            k.dma(self.vP2d[b], self.sP2, src, 0, ('p2', n)); k.dma(self.vP2d[b + 1], self.sP2, src, 1024, ('p2', n))
        return f
    def job_p2_b(self, n):
        k, T = self.k, self.sT
        def f():
            k.S("s_mul_i32", T[1], self.sRt, 112 * 896); k.S("s_add_u32", T[1], T[1], (n // 2) * 28 * 896)
            k.S("s_add_u32", M0, self.sMp[0 if n < 4 else 1], (n % 4) * 2048)
            b = 2 * (n % 2)
            k.dma(self.vP2d[b], self.sP2, T[1], 0, ('p2', n)); k.dma(self.vP2d[b + 1], self.sP2, T[1], 1024, ('p2', n))
        return f
    def act(self, n, rt): return a(8 * (n % 14) + 4 * rt, 4)
    def act_load(self, n):
        k = self.k
        if n % 2 == 0: self.unit_a(n // 2)
        x = self.c.get('exp', '')
        if 'actx' in x:
            for rt in range(2): k.gload(self.act(n, rt), self.vP2d[0], self.sX, self.sUW[1], imm=1024 * (n % 2) + 2048 * rt, mod=" sc1")
            return
        if 'nosc' in x:
            for rt in range(2): k.gload(self.act(n, rt), self.vAct[rt], self.sWS, self.sUW[1], imm=1024 * (n % 2))
            return
        for rt in range(2): k.gload(self.act(n, rt), self.vAct[rt], self.sWS, self.sUW[1], imm=1024 * (n % 2), mod=" sc1")
    def act_touch(self, G):
        k, T = self.k, self.sT
        if G < 3:
            k.S("s_lshr_b32", T[1], self.sC, 1); k.S("s_and_b32", T[2], T[1], 1); k.S("s_mul_i32", T[2], T[2], 14)
            k.S("s_and_b32", T[1], T[1], 2); k.S("s_add_u32", T[2], T[2], T[1]); k.S("s_and_b32", T[1], self.sC, 1); k.S("s_add_u32", T[2], T[2], T[1])
            k.S("s_add_u32", T[2], T[2], 4 * G)
        else:
            k.S("s_lshr_b32", T[1], self.sC, 1); k.S("s_and_b32", T[2], T[1], 1); k.S("s_mul_i32", T[2], T[2], 14)
            k.S("s_and_b32", T[1], self.sC, 1); k.S("s_add_u32", T[2], T[2], T[1]); k.S("s_add_u32", T[2], T[2], 12)
        k.S("s_lshl_b32", T[2], T[2], 10)
        k.gload(self.vDummy, self.vTch, self.sWS, T[2], mod=" sc1")
    def p2a_regs(self):
        self.vTch = v(86)
        self.vAct = [v(76), v(77)]; self.aP, self.aPA, self.aD = v(78, 2), v(80), v(81)
        self.vT2 = [v(82), v(83), v(84), v(85)]
    def p2a_preamble(self, epi, mid, epi_first=False):
        k, T, tmp, lane = self.k, self.sT, self.tmp, self.lane
        self.p2a_regs()
        k.V("v_and_b32", tmp[4], 1, lane); k.V("v_lshlrev_b32", tmp[4], 11, tmp[4])
        k.V("v_bfe_u32", tmp[5], lane, 1, 1); k.V("v_lshl_add_u32", tmp[4], tmp[5], 8, tmp[4])
        k.V("v_bfe_u32", tmp[5], lane, 2, 1); k.V("v_lshl_add_u32", tmp[4], tmp[5], 7, tmp[4])
        k.S("s_lshl_b32", T[1], self.sI2, 12); k.S("s_lshl_b32", T[2], self.sRt, 9); k.S("s_add_u32", T[1], T[1], T[2]); k.S("s_add_u32", T[1], T[1], FLH)
        k.V("v_add_u32", tmp[4], T[1], tmp[4]); k.V("v_mov_b32", tmp[5], OOB)
        k.V("v_cmp_gt_u32", VCC, 8, lane); k.V("v_cndmask_b32", self.aPA, tmp[5], tmp[4])
        self.stamp('X')
        self.poll_issue(self.aP, self.aPA)
        self.stamp('pi')
        k.S("s_mul_i32", T[1], self.sI2, 224 * 1024); k.S("s_mul_i32", T[2], self.sRt, 28 * 1024); k.S("s_add_u32", T[1], T[1], T[2]); k.S("s_add_u32", T[1], T[1], HB)
        k.V("v_lshl_add_u32", self.vAct[0], lane, 4, T[1]); k.V("v_add_u32", self.vAct[1], 112 * 1024, self.vAct[0])
        if self.c['touch']:
            k.V("v_bfe_u32", tmp[4], lane, 3, 1); k.S("s_mov_b32", T[2], 112 * 1024); k.V("v_mul_lo_u32", tmp[4], tmp[4], T[2])
            k.V("v_and_b32", tmp[5], 7, lane); k.V("v_lshl_add_u32", tmp[4], tmp[5], 7, tmp[4]); k.V("v_add_u32", tmp[4], T[1], tmp[4])
            k.V("v_mov_b32", tmp[5], OOB); k.V("v_cmp_gt_u32", VCC, 16, lane); k.V("v_cndmask_b32", self.vTch, tmp[5], tmp[4])
        self.job_p2_a(3)()
        for _, f in self.t2_base(self.vT2[0], self.vT2[1], self.sMp[0]) + self.t2_base(self.vT2[2], self.vT2[3], self.sMp[1]): f()
        self.stamp('j3')
        n1 = len(epi) if epi_first else (len(epi) * 2) // 5
        for _, f in epi[:n1]: f()
        self.stamp('e1')
        if mid: mid()
        self.stamp('preG0')
        self.poll_check(self.aP, self.aPA, self.aD, 1, 0xff)
        self.stamp('G0')
        if self.c['touch'] & 1: self.act_touch(0)
        rest = epi[n1:]
        step = max(1, len(rest) // 5)
        for n in range(4):
            self.act_load(n)
            self.stamp(f'al{n}')
            for _, f in rest[n * step:(n + 1) * step]: f()
        for _, f in rest[4 * step:]: f()
        self.pre_acts = 4
    def final_write_addrs(self, regs, base):
        k, tmp = self.k, self.tmp
        k.V("v_and_b32", tmp[4], 31, self.lane); k.V("v_lshl_add_u32", tmp[4], tmp[4], 8, base)
        k.V("v_lshrrev_b32", tmp[5], 5, self.lane); k.V("v_and_b32", tmp[6], 7, self.lane); k.V("v_xor_b32", tmp[5], tmp[5], tmp[6])
        for q in range(4):
            k.V("v_xor_b32", tmp[6], 2 * q, tmp[5]); k.V("v_lshl_add_u32", regs[q], tmp[6], 4, tmp[4])
    def x_res_load(self):
        k, T, tmp = self.k, self.sT, self.tmp
        self.vXO, self.xres = v(4), v(8, 4)
        k.S("s_lshl_b32", T[1], self.sI2, 3); k.S("s_add_u32", T[1], T[1], self.sWv); k.S("s_mul_i32", T[1], T[1], 8 * 896)
        k.S("s_lshl_b32", T[2], self.sC, 7); k.S("s_add_u32", T[1], T[1], T[2])
        k.V("v_lshrrev_b32", tmp[4], 3, self.lane); k.V("v_and_b32", tmp[5], 7, self.lane); k.V("v_lshlrev_b32", tmp[5], 4, tmp[5])
        k.S("s_movk_i32", T[2], 896); k.V("v_mad_u32_u24", tmp[4], tmp[4], T[2], tmp[5]); k.V("v_add_u32", self.vXO, T[1], tmp[4])
        k.gload(self.xres, self.vXO, self.sX, 0)

    def phase2a(self):
        k, T, c = self.k, self.sT, self.c
        k.label("L_p2a")
        self.merge(self.joinA)
        if c.get('prio0'): k.sraw("s_setprio 0")
        self.p2a_regs()
        look, wl = c['look'], c['wl']
        accF = [[v(28, 16), v(44, 16)], [v(60, 16), v(92, 16)]]
        def wf(n, ct): return a(112 + 4 * ((2 * n + ct) % 6), 4)
        def wread(n):
            k.wait_tok(('p2', n))
            r, off = self.a_pos(n)
            for ct in range(2):
                k.ds_read("ds_read_b64_tr_b16", wf(n, ct)[0:2], self.vT2[2 * r + ct], off)
                k.ds_read("ds_read_b64_tr_b16", wf(n, ct)[2:4], self.vT2[2 * r + ct], off + 1024)
        wd = c['wd']
        for n in range(wd): wread(n)
        if c['hookn'] < 0: self.flag_hook(); self.stamp('hook')
        nw, na = 4, self.pre_acts
        checks = {8: (2, 0xff), 16: (3, 0xff), 24: (4, 0xf0)}; polled = set()
        W = [v(108), v(109), v(110), v(111)]
        NK = 24 if c['tilemajor'] else 28
        for n in range(NK):
            k.wait_regs(wf(n, 0), wf(n, 1), self.act(n, 0), self.act(n, 1))
            i = 0
            for rt in range(2):
                for ct in range(2):
                    k.mfma(True, accF[ct][rt], wf(n, ct), self.act(n, rt), 0 if n == 0 else accF[ct][rt])
                    if i == 0 and n + wd < NK: wread(n + wd)
                    if i == 1:
                        cnt = 0
                        while na < 28 and na <= n + look and cnt < (2 if (n % 2 == 0 or c['ramp'] == 2) else 1):
                            if na in checks:
                                self.stamp(f'b{na // 8}')
                                self.poll_check(self.aP, self.aPA, self.aD, *checks[na])
                                self.stamp(f'c{na // 8}')
                                if c['touch'] & (1 << (na // 8)): self.act_touch(na // 8)
                            self.act_load(na); na += 1; cnt += 1
                        if (na + 2 in checks or na + 1 in checks) and na not in polled and na - 1 not in polled: self.poll_issue(self.aP, self.aPA); polled.add(na)
                    if i == 3:
                        cnt = 0
                        while nw < 28 and nw <= n + wl and nw - (11 if nw < 13 else 10) <= n and cnt < (2 if (n % 2 == 1 or c['ramp'] == 2) else 1):
                            self.job_p2_a(nw)(); nw += 1; cnt += 1
                    i += 1
            if n == c['hookn']:
                self.flag_hook(); self.stamp('hook')
                if c['J']: k.barrier(); self.stamp('J')
            self.stamp(f'n{n}')
            if n == 3: self.cnt_add(1, wait=False)
            if n == 19: self.final_write_addrs(W, self.sMp[1])
            if n == 21: self.x_res_load()
            if n == 22: self.final_read_addrs()
        assert na == 28 and nw == 28
        def writes(ct, rt):
            return [(lambda q=q: k.ds_write("ds_write_b128", W[q], accF[ct][rt][4 * q:4 * q + 4], 8192 * rt + 128 * ct)) for q in range(4)]
        if c['tilemajor']:
            fr = lambda i: a(112 + 4 * (i % 6), 4)
            def rd(i):
                ct, n = divmod(i, 4); n += 24
                k.wait_tok(('p2', n))
                r, off = self.a_pos(n)
                k.ds_read("ds_read_b64_tr_b16", fr(i)[0:2], self.vT2[2 * r + ct], off)
                k.ds_read("ds_read_b64_tr_b16", fr(i)[2:4], self.vT2[2 * r + ct], off + 1024)
            for i in range(6): rd(i)
            pend = []
            for ct in range(2):
                for rt in range(2):
                    for j in range(4):
                        k.mfma(True, accF[ct][rt], fr(4 * ct + j), self.act(24 + j, rt), accF[ct][rt])
                        if ct == 0 and rt == 1 and j < 2: rd(6 + j)
                        if pend and j >= 1: pend.pop(0)()
                        if pend and j == 3: pend.pop(0)()
                    pend = writes(ct, rt)
            self.stamp('mainend')
            for f in pend: f()
        else:
            self.stamp('mainend')
            for rt in range(2):
                for ct in range(2):
                    for f in writes(ct, rt): f()
        f_ = self.vFin
        k.S("s_add_u32", T[1], self.sMp[0], 4096); k.V("v_lshl_add_u32", f_[2], self.lane, 4, T[1])
        k.wait_lg_all()
        k.barrier()
        self.stamp('Z')
        S = v(12 + 0, 1)
        S = v(92, 8)
        for h in range(2): k.ds_read("ds_read_b128", S[4 * h:4 * h + 4], f_[2], 1024 * h)
        self.final_tail(S)
        k.branch("s_branch", "L_fin")
    def flag_hook(self):
        k = self.k
        self.stamp('h0')
        k.wait_tok(('fin',))
        self.stamp('h1')
        k.gstore(self.vFV, self.vFA, self.sWS, 0, mod=self.c.get('fmod', " sc1"), tok=('flag',))

    def phase2b(self):
        k, T, tmp, lane, c = self.k, self.sT, self.tmp, self.lane, self.c
        k.label("L_p2b")
        self.merge(self.joinB)
        vPQ, vKV, vP, vPA, vD, vPK = [v(10), v(11)], v(15), v(16, 2), v(18), v(19), v(110)
        vT2 = [v(20), v(23), v(108), v(109)]
        rc, rc2, den = v(12), v(13), v(14)
        kv = lambda hh, s_: v(24 + 8 * hh + 4 * s_, 4)
        pq = lambda hh, rt, s_: a(64 + 16 * hh + 8 * rt + 4 * s_, 4)
        N = [v(56, 16), v(72, 16)]; O = [v(88, 8), v(96, 8)]
        accS = [[a(0, 16), a(16, 16)], [a(32, 16), a(48, 16)]]
        k.V("v_and_b32", tmp[4], 1, lane); k.V("v_lshlrev_b32", tmp[4], 11, tmp[4])
        k.V("v_bfe_u32", tmp[5], lane, 1, 2); k.V("v_lshl_add_u32", tmp[4], tmp[5], 7, tmp[4])
        k.S("s_lshl_b32", T[1], self.sI2, 12); k.S("s_lshl_b32", T[2], self.sRt, 9); k.S("s_add_u32", T[1], T[1], T[2]); k.S("s_add_u32", T[1], T[1], FLQ)
        k.V("v_add_u32", tmp[4], T[1], tmp[4])
        k.V("v_mov_b32", tmp[5], OOB); k.V("v_cmp_gt_u32", VCC, 8, lane); k.V("v_cndmask_b32", vPA, tmp[5], tmp[4])
        k.S("s_lshl_b32", T[1], self.sRt, 10); k.S("s_add_u32", T[1], T[1], FLK)
        k.V("v_lshl_add_u32", tmp[4], lane, 7, T[1]); k.V("v_cndmask_b32", vPK, tmp[5], tmp[4])
        k.S("s_lshl_b32", T[1], self.sI2, 16); k.S("s_lshl_b32", T[2], self.sRt, 13); k.S("s_add_u32", T[1], T[1], T[2]); k.S("s_add_u32", T[1], T[1], QB)
        k.V("v_lshl_add_u32", vPQ[0], lane, 4, T[1]); k.V("v_add_u32", vPQ[1], 32768, vPQ[0])
        k.S("s_add_u32", T[1], T[2], KVB); k.V("v_lshl_add_u32", vKV, lane, 4, T[1])
        if c['J']:
            self.flag_hook(); self.stamp('hook'); k.barrier(); self.stamp('J')
        else:
            if c['hookfirst']: self.flag_hook(); self.stamp('hook')
            self.cnt_wait(512); self.stamp('J')
        if c['hookfirst']: k.sraw(f"s_setprio {c['prioL']}")
        for n in range(4, 8):
            if 'xWo' not in c.get('exp', ''): self.job_p2_b(n)()
        if not c['J'] and not c['hookfirst']: self.flag_hook(); self.stamp('hook')
        k.sraw(f"s_setprio {c['prioL']}")
        vP2 = v(112, 2)
        def pq_loads():
            k.S("s_movk_i32", T[0], 4096)
            for hh in range(4):
                for rt in range(2):
                    for s_ in range(2):
                        if 'nopq' not in c.get('exp', ''): k.gload(pq(hh, rt, s_), vPQ[rt], self.sWS, T[0] if hh >= 2 else 0, imm=2048 * (hh % 2) + 1024 * s_, mod=" sc1")
        def kv_loads():
            k.S("s_movk_i32", T[0], 4096)
            for hh in range(4):
                for s_ in range(2):
                    k.gload(kv(hh, s_), vKV, self.sWS, T[0] if hh >= 2 else 0, imm=2048 * (hh % 2) + 1024 * s_, mod=" sc1")
        first, second = ((vPK, kv_loads), (vPA, pq_loads)) if c['kvfirst'] else ((vPA, pq_loads), (vPK, kv_loads))
        self.poll_issue(vP, first[0])
        for _, f in self.t2_base(vT2[0], vT2[1], self.sMp[0]) + self.t2_base(vT2[2], vT2[3], self.sMp[1]): f()
        self.poll_check(vP, first[0], vD, 1, 0xff)
        self.stamp('c1')
        self.poll_issue(vP2, second[0])
        first[1]()
        self.poll_check(vP2, second[0], vD, 1, 0xff)
        self.stamp('c2')
        second[1]()
        self.x_res_load()
        k.sraw(f"s_setprio {c['prioM']}")
        Wf = [v(104, 4), v(112, 4), v(116, 4), v(4 + 0, 4)]
        Wf = [v(104, 4), v(112, 4), v(116, 4), v(16, 4)]
        def wread(hh, f):
            s_, ct = divmod(f, 2); n = 2 * hh + s_
            k.wait_tok(('p2', n))
            r = 0 if n < 4 else 1
            k.ds_read("ds_read_b64_tr_b16", Wf[f][0:2], vT2[2 * r + ct], (n % 4) * 2048)
            k.ds_read("ds_read_b64_tr_b16", Wf[f][2:4], vT2[2 * r + ct], (n % 4) * 2048 + 1024)
        def num(u):
            hh, rt = divmod(u, 2)
            k.mfma(True, N[u % 2], kv(hh, 0), pq(hh, rt, 0), 0)
            k.mfma(True, N[u % 2], kv(hh, 1), pq(hh, rt, 1), N[u % 2])
        def val(u):
            n_, o_ = N[u % 2], O[u % 2]
            it = [(4, lambda: k.V("v_mov_b32", den, n_[12])),
                  (4, lambda: k.V("v_permlane32_swap_b32", n_[12], den)),
                  (4, lambda: k.V("v_add_f32", den, 1e-6, den)),
                  (8, lambda: k.V("v_rcp_f32", rc, den)),
                  (4, lambda: k.V("v_cndmask_b32_e64", rc2, rc, 0, self.sHi))]
            for i in range(8):
                it.append((8, lambda i=i: [k.V("v_mul_f32", n_[j], rc if j < 12 else rc2, n_[j]) for j in (2 * i, 2 * i + 1)]))
                it.append((4, lambda i=i: k.V("v_cvt_pk_bf16_f32", o_[i], n_[2 * i], n_[2 * i + 1])))
            return it
        for f in range(4): wread(0, f)
        num(0); num(1)
        self.stamp('c3')
        for _, f in val(0): f()
        for u in range(8):
            hh, rt = divmod(u, 2)
            fill = Fill()
            if u + 1 < 8: fill.extend(val(u + 1))
            for f in range(4):
                s_, ct = divmod(f, 2)
                k.mfma(True, accS[ct][rt], Wf[f], O[u % 2][4 * s_:4 * s_ + 4], 0 if (hh == 0 and s_ == 0) else accS[ct][rt])
                if rt == 1 and hh < 3: wread(hh + 1, f)
                if f == 0 and u + 2 < 8: num(u + 2)
                fill.run(30)
            fill.drain()
        self.stamp('mainend')
        W = [v(24), v(25), v(26), v(27)]
        self.final_write_addrs(W, self.sMp[0])
        k.S("s_sub_u32", T[1], self.sMp[1], self.sMp[0])
        for rt in range(2):
            if rt == 1:
                for q in range(4): k.V("v_add_u32", W[q], T[1], W[q])
            for ct in range(2):
                for q in range(4): k.ds_write("ds_write_b128", W[q], accS[ct][rt][4 * q:4 * q + 4], 128 * ct)
        self.final_read_addrs()
        f_ = self.vFin
        vS = [v(24), v(25), v(26), v(27)]
        k.S("s_lshl_b32", T[1], self.sWv, 11); k.S("s_lshl_b32", T[2], self.sRt, 11); k.S("s_sub_u32", T[2], T[2], T[1])
        for h in range(2):
            k.S("s_add_u32", T[3], T[2], WB); k.V("v_add_u32", vS[h], T[3], f_[h])
            k.S("s_add_u32", T[3], T[2], W0R); k.V("v_add_u32", vS[2 + h], T[3], f_[h])
        k.S("s_mul_i32", T[1], self.sRt, 6144); k.S("s_add_u32", T[1], T[1], WB + 32768 + 4096); k.V("v_lshl_add_u32", f_[2], lane, 4, T[1])
        self.cnt_add(1); self.cnt_wait(512, 1)
        X = [[v(28 + 32 * g + 8 * i, 8) for i in range(4)] for g in range(2)]
        for g in range(2):
            for src in range(4):
                for h in range(2): k.ds_read("ds_read_b128", X[g][src][4 * h:4 * h + 4], vS[2 * g + h], src * 8192)
        self.tree(X[0])
        for h in range(2): k.ds_write("ds_write_b128", f_[2], X[0][0][4 * h:4 * h + 4], 1024 * h)
        self.tree(X[1])
        k.wait_lg_all()
        k.barrier()
        self.stamp('Z')
        self.final_tail(X[1][0])

    def tree(self, X):
        k = self.k
        for i in range(8): k.V("v_add_f32", X[0][i], X[0][i], X[1][i])
        for i in range(8): k.V("v_add_f32", X[2][i], X[2][i], X[3][i])
        for i in range(8): k.V("v_add_f32", X[0][i], X[0][i], X[2][i])
    def final_read_addrs(self):
        k, T, tmp, lane = self.k, self.sT, self.tmp, self.lane
        self.vFin = [v(20), v(21), v(22)]
        k.V("v_lshrrev_b32", tmp[4], 3, lane); k.V("v_and_b32", tmp[5], 7, lane); k.V("v_lshlrev_b32", tmp[5], 1, tmp[5])
        k.V("v_xor_b32", tmp[5], tmp[5], tmp[4]); k.S("s_lshl_b32", T[1], self.sWv, 11); k.V("v_lshl_add_u32", tmp[4], tmp[4], 8, T[1])
        k.V("v_lshl_add_u32", self.vFin[0], tmp[5], 4, tmp[4]); k.V("v_xor_b32", tmp[5], 1, tmp[5]); k.V("v_lshl_add_u32", self.vFin[1], tmp[5], 4, tmp[4])
    def final_tail(self, S):
        k = self.k
        vF = self.vFin
        F = [v(28 + 8 * i, 8) for i in range(4)]
        for src in range(4):
            for h in range(2): k.ds_read("ds_read_b128", F[src][4 * h:4 * h + 4], vF[h], src * 16384)
        xu = v(100, 8)
        for i in range(4):
            k.V("v_lshlrev_b32", xu[2 * i], 16, self.xres[i]); k.V("v_and_b32", xu[2 * i + 1], 0xffff0000, self.xres[i])
        self.tree(F)
        t = F[1]
        for i in range(8): k.V("v_mul_f32", t[i], -LOG2E, F[0][i])
        for i in range(8): k.V("v_exp_f32", t[i], t[i])
        for i in range(8): k.V("v_mul_f32", F[0][i], S[i], F[0][i])
        for i in range(8): k.V("v_add_f32", t[i], 1.0, t[i])
        for i in range(8): k.V("v_rcp_f32", t[i], t[i])
        for i in range(8): k.V("v_fmac_f32", xu[i], F[0][i], t[i])
        for i in range(4): k.V("v_cvt_pk_bf16_f32", self.xres[i], xu[2 * i], xu[2 * i + 1])
        k.gstore(self.xres, self.vXO, self.sOUT, 0, mod=self.c.get('outmod', ''))

    def build(self):
        k = self.k
        self.joinF = []
        self.prologue()
        if self.c.get('p2only'):
            self.prologue2(); self.stamp('start')
            k.S("s_cmp_eq_u32", self.sIsRed, 1); k.branch("s_cbranch_scc1", "L_fin")
            self.p2_bases()
            for n in range(3): self.job_p2_shared(n)()
            k.barrier()
            k.S("s_cmp_eq_u32", self.sGrp, 1); k.branch("s_cbranch_scc1", "L_qB")
            st = self.save()
            k.V("v_mov_b32", self.vFA, OOB)
            self.p2a_preamble([], None)
            self.stamp('tail')
            self.joinA.append(self.exit_state()); k.branch("s_branch", "L_p2a")
            self.restore(st)
            k.label("L_qB")
            k.V("v_mov_b32", self.vFA, OOB)
            self.job_p2_b(3)()
            self.stamp('tail')
            self.joinB.append(self.exit_state()); k.branch("s_branch", "L_p2b")
        else:
            self.prologue2(); self.stamp('start')
            k.S("s_cmp_eq_u32", self.sIsH, 1)
            k.branch("s_cbranch_scc0", "L_roleQ")
            st = self.save()
            self.role_h()
            self.restore(st)
            self.role_qkv()
        self.phase2a()
        self.phase2b()
        k.label("L_fin")
        if not self.c.get('nofinalwait'): k.raw("  s_waitcnt vmcnt(0)")
        self.stamp_flush()
        k.label("L_end")
        k.raw("  s_endpgm")
        head = open(__file__.rsplit('/', 1)[0] + "/header.txt").read() if '/' in __file__ else open("header.txt").read()
        head = head.replace("@LDS@", str(LDS_BYTES))
        tail = f""".section .rodata,"a"
.p2align 6
.amdhsa_kernel {NAME}_kernel
  .amdhsa_next_free_vgpr {NV + NA}
  .amdhsa_next_free_sgpr 102
  .amdhsa_accum_offset {NV}
  .amdhsa_group_segment_fixed_size 0
  .amdhsa_kernarg_size 72
  .amdhsa_user_sgpr_count 2
  .amdhsa_user_sgpr_kernarg_segment_ptr 1
  .amdhsa_system_sgpr_workgroup_id_x 1
  .amdhsa_float_denorm_mode_32 3
.end_amdhsa_kernel
"""
        if self.c['stamps']: head += '; stamps: ' + ','.join(self.c['stamps']) + '\n'
        return head + k.text() + tail

if __name__ == "__main__":
    import json
    out = sys.argv[1]
    cfg = json.loads(sys.argv[2]) if len(sys.argv) > 2 else {}
    g = Gen(**cfg)
    txt = g.build()
    open(out, "w").write(txt)
    n = sum(1 for l in g.k.out if l.startswith("  ") and not l.startswith("  ;"))
    print(f"{out}: {n} instructions, {g.k.nops} nop states, {g.k.waits} auto waits", file=sys.stderr)
    if cfg.get('verbose'):
        for l in g.k.log: print(l, file=sys.stderr)
```

```python
class R:
    __slots__ = ("k", "n", "c")
    def __init__(self, k, n, c=1):
        self.k, self.n, self.c = k, n, c
    def __str__(self):
        if self.k == 'm': return "m0"
        if self.k == 'x': return "exec"
        if self.k == 'c': return "vcc"
        return f"{self.k}{self.n}" if self.c == 1 else f"{self.k}[{self.n}:{self.n + self.c - 1}]"
    def regs(self):
        if self.k == 'c': return {('c', 0), ('c', 1)}
        return {(self.k, self.n + i) for i in range(self.c)}
    def __getitem__(self, i):
        if isinstance(i, slice):
            a = i.start or 0
            b = self.c if i.stop is None else i.stop
            assert 0 <= a < b <= self.c
            return R(self.k, self.n + a, b - a)
        assert 0 <= i < self.c, (self, i)
        return R(self.k, self.n + i, 1)

def v(n, c=1): return R('v', n, c)
def a(n, c=1): return R('a', n, c)
def s(n, c=1): return R('s', n, c)
M0 = R('m', 0); EXEC = R('x', 0); VCC = R('c', 0)

def regs_of(ops):
    out = set()
    for o in ops:
        if isinstance(o, R): out |= o.regs()
    return out

def lit(x):
    if isinstance(x, R): return str(x)
    if isinstance(x, float):
        import struct
        if x in (0.5, 1.0, 2.0, 4.0, -0.5, -1.0, -2.0, -4.0): return repr(x)
        if x == 0.0: return "0"
        return hex(struct.unpack('<I', struct.pack('<f', x))[0])
    if isinstance(x, int):
        return str(x) if -16 <= x <= 64 else hex(x & 0xffffffff)
    return str(x)

TRANS = ("v_exp_f32", "v_rcp_f32", "v_rsq_f32", "v_sqrt_f32", "v_log_f32")

class Ins:
    __slots__ = ("text", "cls", "rd", "wr", "cin", "wide")
    def __init__(self, text, cls, rd, wr, cin=frozenset(), wide=False):
        self.text, self.cls, self.rd, self.wr, self.cin, self.wide = text, cls, rd, wr, cin, wide

class Alloc:
    def __init__(self, kind, lo, hi):
        self.kind, self.free, self.hi, self.top = kind, set(range(lo, hi)), hi, 0
        self.names = {}
    def get(self, c=1, align=None, name=None):
        align = align or (1 if c == 1 else 2)
        for n in sorted(self.free):
            if n % align == 0 and all((n + i) in self.free for i in range(c)):
                for i in range(c): self.free.discard(n + i)
                self.top = max(self.top, n + c)
                return R(self.kind, n, c)
        raise RuntimeError(f"out of {self.kind} registers for {name} x{c}")
    def put(self, *rs):
        for r in rs:
            for _, n in r.regs():
                assert n not in self.free
                self.free.add(n)
    def snapshot(self): return set(self.free)
    def restore(self, snap): self.free = set(snap)

class K:
    def __init__(self):
        self.out = []
        self.hist = []
        self.pos = 0
        self.vm = []
        self.lg = []
        self.nops = 0; self.waits = 0
        self.log = []
        self.nlabel = 0
    def raw(self, text): self.out.append(text)
    def comment(self, text): self.out.append("  ; " + text)
    def label(self, name): self.out.append(name + ":")
    def newlabel(self, p="L"):
        self.nlabel += 1
        return f"{p}_{self.nlabel}"
    def _need(self, I):
        need = 0
        for P, pos in reversed(self.hist):
            d = self.pos - pos - 1
            if d >= 20: break
            n = 0
            pv = P.cls in ('valu', 'trans', 'dot', 'perm')
            if I.cls in ('m32', 'm16'):
                if pv and (P.wr & I.rd): n = max(n, 3 if P.cls == 'dot' else 2)
                if P.cls in ('m32', 'm16'):
                    big = P.cls == 'm32'
                    if P.wr & (I.rd - I.cin): n = max(n, 12 if big else 8)
                    if P.wr & I.cin:
                        if not (P.wr == I.cin and P.cls == I.cls): n = max(n, 10 if big else 6)
                    if (P.wr & I.wr) and not (P.wr == I.cin and P.cls == I.cls): n = max(n, 12 if big else 8)
            elif P.cls in ('m32', 'm16') and I.cls in ('valu', 'trans', 'dot', 'perm', 'ds', 'vmem'):
                big = P.cls == 'm32'
                if P.wr & (I.rd | I.wr): n = max(n, 12 if big else 8)
                if I.cls in ('valu', 'trans', 'dot', 'perm') and (P.cin & I.wr): n = max(n, 7 if big else 3)
            if pv and I.cls in ('valu', 'trans', 'dot', 'perm'):
                sg = {r for r in P.wr if r[0] in 'sc'}
                if sg & I.rd: n = max(n, 2)
                if P.cls == 'trans' and I.cls != 'trans' and (P.wr & I.rd): n = max(n, 1)
                if I.cls == 'perm' and (P.wr & I.rd): n = max(n, 2)
                if P.cls == 'dot' and (P.wr & (I.rd | I.wr)):
                    if not (I.cls == 'dot' and not (P.wr & (I.rd - I.cin))): n = max(n, 3)
            if pv and I.cls == 'rdlane' and (P.wr & I.rd): n = max(n, 1)
            if P.cls in ('valu', 'rdlane') and I.cls in ('vmem', 'ds'):
                sg = {r for r in P.wr if r[0] in 'sc'}
                if sg & I.rd: n = max(n, 5)
            if P.cls == 'rdlane' and I.cls in ('valu', 'trans', 'dot', 'perm'):
                if P.wr & I.rd: n = max(n, 2)
            if P.cls in ('valu', 'rdlane') and I.cls == 'salu':
                sg = {r for r in P.wr if r[0] in 'sc'}
                if sg & I.rd: n = max(n, 1)
            if P.cls == 'trans' and I.cls in ('vmem', 'ds') and (P.wr & I.rd): n = max(n, 1)
            if P.cls == 'vmem' and P.wide and (P.cin & I.wr): n = max(n, 2)
            if P.cls == 'salu' and ('m', 0) in P.wr and ('m', 0) in I.rd and I.cls in ('vmem', 'ds'): n = max(n, 1)
            need = max(need, n - d)
        return need
    def _push(self, I, states=1):
        self.out.append("  " + I.text)
        self.hist.append((I, self.pos))
        self.pos += states
        if len(self.hist) > 40: self.hist.pop(0)
    def nop(self, n):
        while n > 0:
            k = min(n, 16)
            self.out.append(f"  s_nop {k - 1}")
            self.pos += k; n -= k
    def flush_hazards(self): self.nop(12); self.hist = []
    def _pending(self, q, regs=None, toks=None):
        last = -1
        for i, e in enumerate(q):
            if (regs and (e['regs'] & regs)) or (toks and (e['tok'] in toks or (e.get('toks') and e['toks'] & toks))): last = i
        return last
    def _wait(self, vm=None, lg=None):
        parts = []
        if vm is not None:
            n = len(self.vm) - 1 - vm
            assert n <= 63
            parts.append(f"vmcnt({n})"); self.vm = self.vm[vm + 1:]
        if lg is not None:
            n = len(self.lg) - 1 - lg
            if n > 15:
                n = 15; lg = len(self.lg) - 1 - n
            parts.append(f"lgkmcnt({n})"); self.lg = self.lg[lg + 1:]
        if parts:
            self.waits += 1
            self._push(Ins("s_waitcnt " + " ".join(parts), 'wait', set(), set()))
    def wait_regs(self, *rs):
        regs = regs_of(rs)
        i = self._pending(self.vm, regs=regs); j = self._pending(self.lg, regs=regs)
        self._wait(i if i >= 0 else None, j if j >= 0 else None)
    def wait_tok(self, *toks, lg_all=False):
        i = self._pending(self.vm, toks=set(toks))
        j = len(self.lg) - 1 if (lg_all and self.lg) else -1
        self._wait(i if i >= 0 else None, j if j >= 0 else None)
    def wait_lg_all(self):
        if self.lg: self._wait(None, len(self.lg) - 1)
    def wait_lg_tok(self, *toks):
        j = self._pending(self.lg, toks=set(toks))
        self._wait(None, j if j >= 0 else None)
    def wait_all(self):
        self._wait(len(self.vm) - 1 if self.vm else None, len(self.lg) - 1 if self.lg else None)
    def hard_wait(self, text):
        self._push(Ins(text, 'wait', set(), set()))
    def emit(self, text, cls, rd=(), wr=(), cin=(), wide=False):
        I = Ins(text, cls, regs_of(rd), regs_of(wr), regs_of(cin), wide)
        touch = I.rd | I.wr
        i = self._pending(self.vm, regs=touch); j = self._pending(self.lg, regs=touch)
        if i >= 0 or j >= 0:
            self._wait(i if i >= 0 else None, j if j >= 0 else None)
        n = self._need(I)
        if n > 0:
            self.nops += n; self.log.append(f"nop{n} before: {text}")
            self.nop(n)
        self._push(I)
        return I
    def S(self, op, dst, *src):
        if op == "s_cselect_b32" and all(isinstance(x, int) and not -16 <= x <= 64 for x in src):
            self.S("s_mov_b32", dst, src[1])
            src = (src[0], dst)
        wr = [dst] if isinstance(dst, R) else []
        txt = f"{op} " + ", ".join(lit(x) for x in (dst,) + src)
        rd = list(src)
        if op.startswith("s_cmp") or op.startswith("s_bitcmp"):
            rd = [dst] + rd; wr = []
        self.emit(txt, 'salu', rd=rd, wr=wr)
    def sraw(self, text, rd=(), wr=()): self.emit(text, 'salu', rd=rd, wr=wr)
    def branch(self, op, target): self.emit(f"{op} {target}", 'br')
    def barrier(self): self.emit("s_barrier", 'bar')
    def V(self, op, dst, *src, mod=""):
        base = op.replace("_e64", "").replace("_e32", "")
        cls = 'trans' if base in TRANS else 'valu'
        rd = list(src); cin = []
        if base.startswith("v_dot2"):
            cls = 'dot'; rd.append(dst); cin = [dst]
        if base in ("v_fmac_f32",): rd.append(dst)
        if base.startswith("v_readfirstlane"): cls = 'rdlane'
        wr = [dst]
        if base.startswith("v_permlane"):
            cls = 'perm'; rd = [dst] + rd; wr = [dst, src[0]]
        if base.startswith("v_cndmask") and len(src) == 2: rd.append(VCC)
        txt = f"{op} " + ", ".join(lit(x) for x in (dst,) + src)
        if base.startswith("v_cndmask") and len(src) == 2: txt += ", vcc"
        if mod: txt += " " + mod
        self.emit(txt, cls, rd=rd, wr=wr, cin=cin)
    def Vneg(self, op, dst, a0, a1, a2=None, neg=(False, False, False)):
        src = [x for x in (a0, a1, a2) if x is not None]
        t = ", ".join(("-" if n else "") + lit(x) for x, n in zip(src, neg))
        self.emit(f"{op} {dst}, {t}", 'valu', rd=src, wr=[dst])
    def mfma(self, big, D, A, B, C):
        op = "v_mfma_f32_32x32x16_bf16" if big else "v_mfma_f32_16x16x32_bf16"
        cin = [C] if isinstance(C, R) else []
        self.emit(f"{op} {D}, {A}, {B}, {lit(C)}", 'm32' if big else 'm16', rd=[A, B] + cin, wr=[D], cin=cin)
    def ds_read(self, op, dst, addr, off, tok=None):
        assert 0 <= off <= 65535, off
        self.emit(f"{op} {dst}, {addr} offset:{off}", 'ds', rd=[addr], wr=[dst])
        self.lg.append(dict(regs=dst.regs(), tok=tok))
    def ds_write(self, op, addr, src, off, tok=None):
        assert 0 <= off <= 65535, off
        self.emit(f"{op} {addr}, {src} offset:{off}", 'ds', rd=[addr, src])
        self.lg.append(dict(regs=set(), tok=tok))
    @staticmethod
    def _w(c): return {1: "dword", 2: "dwordx2", 4: "dwordx4"}[c]
    def dma(self, voff, srd, soff, imm, tok, mod=""):
        assert 0 <= imm <= 4095
        o = f" offset:{imm}" if imm else ""
        self.emit(f"buffer_load_dwordx4 {voff}, {srd}, {lit(soff)} offen{o}{mod} lds", 'vmem', rd=[voff, srd, soff, M0])
        self.vm.append(dict(regs=set(), tok=tok))
    def gload(self, dst, voff, srd, soff, imm=0, mod="", tok=None):
        assert 0 <= imm <= 4095
        o = f" offset:{imm}" if imm else ""
        self.emit(f"buffer_load_{self._w(dst.c)} {dst}, {voff}, {srd}, {lit(soff)} offen{o}{mod}", 'vmem', rd=[voff, srd, soff], wr=[dst])
        self.vm.append(dict(regs=dst.regs(), tok=tok))
    def gstore(self, src, voff, srd, soff, imm=0, mod="", tok=None):
        assert 0 <= imm <= 4095
        o = f" offset:{imm}" if imm else ""
        self.emit(f"buffer_store_{self._w(src.c)} {src}, {voff}, {srd}, {lit(soff)} offen{o}{mod}", 'vmem', rd=[src, voff, srd, soff], cin=[src], wide=src.c >= 3)
        self.vm.append(dict(regs=set(), tok=tok))
    def text(self): return "\n".join(self.out) + "\n"

class Fill:
    def __init__(self): self.q = []; self.credit = 0
    def add(self, cost, fn): self.q.append((cost, fn))
    def extend(self, items): self.q.extend(items)
    def cost(self): return sum(c for c, _ in self.q)
    def run(self, budget):
        self.credit += budget
        while self.q and self.credit >= self.q[0][0]:
            c, fn = self.q.pop(0)
            if isinstance(fn, int):
                if fn > 1: self.q.insert(0, (0, fn - 1))
                self.credit = 0
                break
            self.credit -= c; fn()
        if not self.q: self.credit = 0
    def drain(self):
        while self.q:
            fn = self.q.pop(0)[1]
            if not isinstance(fn, int): fn()
        self.credit = 0
```

```python
import sys, math
from asmlib import *

NAME = "recurrent_scan__linear_attn_block__dense_activation_silu__prompt"
NV, NA = 120, 136
EPOCH, FLH, FLQ, FLP, FLK = 0, 0x10000, 0x30000, 0x50000, 0x70000
KVB, PB, QB, HB, WSEND = 0x78000, 0x80000, 0x200000, 0x400000, 0xB00000
STAMPS = 0xC00000
XR, W0R, WB, MISC = 0, 65536, 98304, 155648
KVR, EXA = 90112, 65536
CSA, STA, R2A = MISC, MISC + 4096, MISC + 3072
CNT = MISC + 2048
LDS_BYTES = 163840
OOB = 0x40000000
LOG2E = 1.4426950408889634
LN2 = 0.6931471805599453
ONES = 0x3f803f80

DEF = dict(LA=3, bud=26, stamps=False, spin=200000, warm=True, codepf=True, look=5, stop=None, sleep=4, rot=2, prio=1, hookn=-1, wl=6, deep=1, l2pf=0, xmap=1, redoff=4, k1=1, pflagn=20, qpf=0, touch=0, wd=1, ramp=2, J=0, qfirst=1, hfirst=1, kvfirst=0, prioL=1, prioM=0, hookfirst=0, budq=56, xbar=79, tilemajor=1, f1n=15, xn=7, f2n=10, dly=3, fq=10, wo0=5, prew=2, ea=1, f1h=70, preh=2, nwo=4, qpfirst=1, shw=6, shw0=62, shwd=3, earlypoll=1, earlyact=1, wod=4, wolate=1)

class Gen:
    def __init__(self, **cfg):
        self.c = dict(DEF); self.c.update(cfg)
        self.k = K()
        self.sa = Alloc('s', 52, 100)
        self.joinA, self.joinB = [], []
        self.lane = v(0); self.vFA = v(1); self.vFV = v(2, 2); self.vP2d = [v(4 + i) for i in range(4)]
        self.vRowp, self.vColb, self.vST, self.vWD = v(8), v(9), v(10), v(11)
        self.cc, self.irs, self.sum, self.sq, self.vCSW, self.vCSR = v(15), v(16), v(17), v(18), v(19), v(20)
        self.vStampA, self.vStampD, self.vWH = v(21), v(22), v(23)
        self.IND, self.mneg, self.et, self.xt = v(24, 4), v(28, 4), v(32, 4), v(36, 8)
        self.sp = v(34, 2); self.eo = self.xt
        self.vTX = [v(44 + i) for i in range(4)]; self.vXR = [v(48 + i) for i in range(4)]
        self.vXT = [v(52), v(53)]; self.vXD = [v(54), v(55)]; self.vTY = [v(56 + i) for i in range(4)]
        self.blk = [v(60, 16), v(76, 16), v(92, 16)]
        self.cs = [v(108, 4), v(112, 4), v(116, 4)]
        self.tmp = [v(92), v(93), v(94), v(95), v(12), v(13), v(14), v(96)]
        self.vDummy, self.vDummy2, self.vWH2 = v(21), v(22), v(116)
        self.vPFa = v(116)

    STAMP_PAIRS = [4, 6, 8, 10, 12, 14, 16, 18, 44, 46, 20, 100]
    def stamp(self, name):
        if not self.c['stamps']: return
        names = self.c['stamps']
        if name not in names: return
        for idx in [i for i, x in enumerate(names) if x == name]: self._stamp(idx)
    def _stamp(self, idx):
        if idx == 0: self.k.raw(f"  s_memrealtime s[{self.STAMP_PAIRS[10]}:{self.STAMP_PAIRS[10] + 1}]")
        op = "s_memrealtime" if (self.c.get('rt') and idx % 2 == 0 and idx > 0) else "s_memtime"
        self.k.raw(f"  {op} s[{self.STAMP_PAIRS[idx]}:{self.STAMP_PAIRS[idx] + 1}]")
    def stamp_flush(self):
        if not self.c['stamps']: return
        k, T, P = self.k, self.sT, self.STAMP_PAIRS
        k.raw(f"  s_memtime s[{P[9]}:{P[9] + 1}]")
        k.raw(f"  s_memrealtime s[{P[11]}:{P[11] + 1}]")
        k.raw("  s_waitcnt lgkmcnt(0)")
        k.raw("  s_mov_b32 s38, 0xd00000")
        k.raw(f"  s_lshl_b32 {T[0]}, s2, 3\n  s_add_u32 {T[0]}, {T[0]}, {self.sWv}\n  s_lshl_b32 {T[0]}, {T[0]}, 7\n  s_add_u32 {T[0]}, {T[0]}, {STAMPS}")
        k.raw(f"  v_mov_b32 v12, 0x40000000\n  v_mov_b32 v13, 0\n  v_cmp_eq_u32 vcc, 0, v0\n  s_nop 1\n  v_cndmask_b32 v12, v12, v13, vcc")
        for i, p in enumerate(P):
            k.raw(f"  v_mov_b32 v14, s{p}\n  buffer_store_dword v14, v12, s[36:39], {T[0]} offen offset:{4 * i}\n  s_nop 1")
        if self.c.get('dbgwg') is not None:
            skip = k.newlabel("Ldbg")
            k.raw(f"  s_lshl_b32 {T[1]}, s2, 3\n  s_add_u32 {T[1]}, {T[1]}, {self.sWv}\n  s_cmp_eq_u32 {T[1]}, {self.c['dbgwg']}\n  s_cbranch_scc0 {skip}")
            k.raw("  s_load_dwordx2 s[40:41], s[0:1], 56\n  s_waitcnt lgkmcnt(0)\n  s_mov_b32 s42, 256\n  s_mov_b32 s43, 0x20000")
            k.raw(f"  s_sub_u32 {T[1]}, s{P[11]}, s{P[10]}\n  v_mov_b32 v14, {T[1]}\n  buffer_store_dword v14, v12, s[40:43], 0 offen\n  s_nop 1")
            for i in range(1, 10):
                k.raw(f"  s_sub_u32 {T[1]}, s{P[i]}, s{P[0]}\n  s_cmp_eq_u32 s{P[i]}, 0\n  s_cselect_b32 {T[1]}, 0, {T[1]}\n  v_mov_b32 v14, {T[1]}\n  buffer_store_dword v14, v12, s[40:43], 0 offen offset:{4 * i}\n  s_nop 1")
            k.label(skip)

    def flag_store(self, val, toks, mod=None):
        k = self.k
        self.stamp(f'f{val}a')
        k.wait_tok(*toks)
        self.stamp(f'f{val}b')
        k.S("s_add_u32", self.sT[4], self.sTag[0], val)
        k.V("v_mov_b32", self.vFV[0], self.sT[4])
        k.gstore(self.vFV, self.vFA, self.sWS, 0, mod=mod or self.c.get('fmod', " sc1"), tok=('flag',))

    def poll_issue(self, vP, vPA):
        self.k.gload(vP, vPA, self.sWS, 0, mod=" sc1")

    def poll_check(self, vP, vPA, vD, need, mask):
        k = self.k
        top, done = k.newlabel("Lspin"), k.newlabel("Lok")
        k.wait_regs(vP)
        k.label(top)
        k.V("v_subrev_u32", vD, self.sTag[0], vP[0])
        k.V("v_cmp_eq_u32", VCC, self.sTag[1], vP[1])
        k.V("v_subrev_u32", vD, need, vD)
        k.V("v_cmp_ge_u32_e64", self.sM0, 15 - need, vD)
        k.S("s_and_b64", self.sM0, self.sM0, VCC)
        k.S("s_mov_b64", self.sM1, mask) if not isinstance(mask, tuple) else (k.S("s_mov_b32", self.sM1[0], mask[0]), k.S("s_mov_b32", self.sM1[1], mask[1]))
        k.S("s_and_b64", self.sM0, self.sM0, self.sM1)
        k.S("s_cmp_eq_u64", self.sM0, self.sM1)
        k.branch("s_cbranch_scc1", done)
        k.S("s_sub_u32", self.sSpin, self.sSpin, 1)
        k.branch("s_cbranch_scc1", done + "x")
        if self.c['sleep']: k.raw(f"  s_sleep {self.c['sleep']}")
        k.raw(f"  buffer_load_dwordx2 {vP}, {vPA}, {self.sWS}, 0 offen sc1")
        k.raw("  s_waitcnt vmcnt(0)")
        k.raw(f"  s_branch {top}")
        k.label(done + "x")
        k.raw(f"  s_mov_b32 {self.sSpin}, 0")
        k.label(done)

    def prologue(self):
        k, sa, c = self.k, self.sa, self.c
        self.sX, self.sW, self.sP2, self.sWS, self.sOUT, self.sDBG, self.sTMP = (s(n, 4) for n in (24, 28, 32, 36, 40, 44, 48))
        k.S("s_cmp_ge_u32", s(2), 256)
        k.branch("s_cbranch_scc1", "L_end")
        if c['stamps'] and 'early' in c['stamps']: k.raw("  s_memtime s[100:101]")
        k.raw("  s_load_dwordx4 s[4:7], s[0:1], 0")
        k.raw("  s_load_dwordx2 s[8:9], s[0:1], 16")
        k.raw("  s_load_dwordx4 s[12:15], s[0:1], 32")
        k.raw("  s_load_dwordx4 s[16:19], s[0:1], 48")
        k.raw("  s_load_dwordx2 s[20:21], s[0:1], 64")
        g = sa.get
        self.sTag = g(2); self.sM0 = g(2); self.sM1 = g(2); self.sPad = g(2); self.sHi = g(2)
        self.sT = [g() for _ in range(6)]
        (self.sWv, self.sRt, self.sGrp, self.sI, self.sIdx, self.sIsH, self.sIsRed, self.sRho, self.sI2, self.sC,
         self.sRot2, self.sSpin, self.sXb, self.sMx, self.sMw, self.sRS) = [g() for _ in range(16)]
        self.sAs = [g() for _ in range(7)]
        self.sCol = [g() for _ in range(4)]
        self.sMp = [g() for _ in range(2)]
        self.sUW = [g() for _ in range(3)]
        T = self.sT
        lane, tmp = self.lane, self.tmp
        if c['codepf']:
            k.comment("pull this kernel's code into L2: 1/32 of its lines per workgroup")
            k.raw("  s_getpc_b64 s[48:49]")
            k.label("L_pc")
            k.S("s_and_b32", s(49), s(49), 0xffff)
            k.raw("  s_mov_b32 s50, L_end-L_pc")
            k.S("s_mov_b32", s(51), 0x20000)
            k.S("s_lshr_b32", T[0], s(2), 3)
            k.S("s_lshl_b32", T[0], T[0], 7)
            k.V("v_lshlrev_b32", tmp[0], 12, v(0))
            k.V("v_cmp_gt_u32", VCC, 16, v(0))
            k.V("v_mov_b32", tmp[1], OOB)
            k.V("v_cndmask_b32", tmp[0], tmp[1], tmp[0])
            k.gload(self.vDummy, tmp[0], self.sTMP, T[0])
        k.V("v_lshrrev_b32", tmp[0], 6, v(0))
        k.V("v_and_b32", lane, 63, v(0))
        k.V("v_readfirstlane_b32", self.sWv, tmp[0])
        xcd, n, q, sub = T[0], T[1], T[2], T[3]
        k.S("s_and_b32", xcd, s(2), 7)
        k.S("s_lshr_b32", n, s(2), 3)
        k.S("s_lshr_b32", q, xcd, 1)
        k.S("s_lshr_b32", sub, n, 3)
        k.S("s_and_b32", T[4], xcd, 1)
        k.S("s_lshl_b32", T[4], T[4], 3)
        k.S("s_and_b32", T[5], n, 7)
        k.S("s_add_u32", self.sI, T[4], T[5])
        k.S("s_lshr_b32", self.sIsH, sub, 1)
        k.S("s_and_b32", T[4], sub, 1)
        k.S("s_lshl_b32", self.sIdx, q, 1)
        k.S("s_add_u32", self.sIdx, self.sIdx, T[4])
        if c.get('local'):
            k.S("s_lshl_b32", self.sI, xcd, 1); k.S("s_and_b32", T[4], n, 1); k.S("s_add_u32", self.sI, self.sI, T[4])
            k.S("s_lshr_b32", self.sIdx, n, 1); k.S("s_and_b32", self.sIdx, self.sIdx, 7)
            k.S("s_lshr_b32", self.sIsH, n, 4)
            k.S("s_lshr_b32", T[5], n, 1); k.S("s_xor_b32", T[5], T[5], n)
        k.S("s_and_b32", self.sRt, self.sWv, 3)
        k.S("s_lshr_b32", self.sGrp, self.sWv, 2)
        if c['rot'] == 7:
            k.S("s_lshl_b32", T[4], sub, 1)
            k.S("s_add_u32", T[4], T[4], T[5])
            k.S("s_cmp_ge_u32", T[4], 7); k.S("s_cselect_b32", T[5], 7, 0); k.S("s_sub_u32", T[4], T[4], T[5])
            k.S("s_cmp_ge_u32", T[4], 7); k.S("s_cselect_b32", T[5], 7, 0); k.S("s_sub_u32", self.sAs[0], T[4], T[5])
        elif c['rot'] == 1:
            k.S("s_mov_b32", self.sAs[0], 0)
        else:
            k.S("s_add_u32", T[4], sub, T[5]); k.S("s_and_b32", T[4], T[4], c['rot'] - 1); k.S("s_mul_i32", self.sAs[0], T[4], 7 // c['rot'] + (c['rot'] == 4))
        k.S("s_cmp_eq_u32", self.sIsH, 1); k.S("s_cselect_b32", self.sRS, 3584, 2688)
        k.S("s_lshl_b32", T[4], self.sI, 2); k.S("s_add_u32", T[4], T[4], self.sRt)
        k.S("s_mul_i32", self.sXb, T[4], 32 * 896)
        k.S("s_lshl_b32", self.sMx, self.sRt, 12); k.S("s_lshl_b32", T[4], self.sGrp, 11); k.S("s_add_u32", self.sMx, self.sMx, T[4])
        k.S("s_lshl_b32", self.sMw, self.sWv, 10)
        l3, c7, l4, cs = tmp[0], tmp[1], tmp[2], tmp[3]
        k.V("v_lshrrev_b32", l3, 3, lane)
        k.V("v_and_b32", c7, 7, lane)
        k.V("v_lshrrev_b32", l4, 4, lane)
        k.V("v_xor_b32", tmp[4], c7, l4)
        k.V("v_lshlrev_b32", tmp[4], 4, tmp[4])
        k.S("s_movk_i32", T[4], 896)
        k.V("v_mad_u32_u24", tmp[5], l3, T[4], tmp[4])
        k.S("s_mul_i32", T[5], self.sGrp, 14336)
        k.V("v_add_u32", self.vXD[0], T[5], tmp[5])
        k.V("v_xor_b32", tmp[4], 64, tmp[4])
        k.V("v_mad_u32_u24", tmp[5], l3, T[4], tmp[4])
        k.S("s_add_u32", T[5], T[5], 6144)
        k.V("v_add_u32", self.vXD[1], T[5], tmp[5])
        k.V("v_and_b32", tmp[4], 1, l4)
        k.V("v_lshlrev_b32", tmp[4], 2, tmp[4])
        k.V("v_xor_b32", cs, c7, tmp[4])
        k.S("s_cmp_eq_u32", self.sIsH, 1); k.S("s_cselect_b32", T[5], 7, 6)
        k.V("v_min_u32", tmp[4], T[5], cs)
        k.V("v_lshlrev_b32", tmp[4], 4, tmp[4])
        k.S("s_lshl_b32", T[5], self.sWv, 3)
        k.V("v_add_u32", tmp[5], T[5], l3)
        k.V("v_mad_u32_u24", self.vWD, tmp[5], self.sRS, tmp[4])
        col = self.sCol
        k.S("s_mul_i32", col[2], self.sIdx, 112); k.S("s_add_u32", col[1], col[2], 1792); k.S("s_add_u32", T[4], col[2], 896)
        k.S("s_and_b32", T[5], self.sIdx, 1); k.S("s_lshl_b32", T[5], T[5], 6); k.S("s_lshl_b32", col[0], col[2], 2); k.S("s_add_u32", col[0], col[0], T[5])
        k.S("s_cmp_eq_u32", self.sIsH, 1); k.S("s_cselect_b32", col[0], col[0], T[4])
        k.S("s_cselect_b32", col[3], W0R, KVR); k.S("s_cselect_b32", self.sMp[0], OOB, col[1]); k.S("s_cselect_b32", self.sMp[1], WB, KVR + 8192)
        k.S("s_add_u32", col[3], col[3], self.sMw); k.S("s_add_u32", self.sMp[1], self.sMp[1], self.sMw)
        k.hard_wait("s_waitcnt lgkmcnt(0)")
        if c['stamps'] and 'karg' in c['stamps']: k.raw("  s_memtime s[98:99]")
        def srd(d, lo, hi, size):
            k.S("s_mov_b32", d[0], lo); k.S("s_and_b32", d[1], hi, 0xffff)
            k.S("s_mov_b32", d[2], size); k.S("s_mov_b32", d[3], 0x20000)
        srd(self.sX, s(4), s(5), 2048 * 896)
        k.S("s_cmp_eq_u32", self.sIsH, 1)
        k.S("s_cselect_b32", self.sW[0], s(12), s(6)); k.S("s_cselect_b32", self.sW[1], s(13), s(7))
        k.S("s_cselect_b32", self.sW[2], 448 * 3584, 448 * 2688)
        k.S("s_and_b32", self.sW[1], self.sW[1], 0xffff); k.S("s_mov_b32", self.sW[3], 0x20000)
        self.sRS64 = self.sRS
        k.S("s_lshl_b32", self.sRS64, self.sRS, 6)
        self.job_x(0)()
        k.S("s_mov_b32", M0, col[3]); k.S("s_mul_i32", self.sUW[0], self.sAs[0], self.sRS64); k.S("s_add_u32", T[4], self.sUW[0], col[0])
        k.dma(self.vWD, self.sW, T[4], 0, ('w0', 0)); k.vm[-1]['toks'] = {('k', 0)}
        k.S("s_mov_b32", M0, self.sMp[1]); k.S("s_add_u32", T[4], self.sUW[0], self.sMp[0])
        k.dma(self.vWD, self.sW, T[4], 0, ('v', 0))
        k.raw("  s_load_dwordx2 %s, s[20:21], %d" % (self.sTag, EPOCH))
        k.S("s_mov_b32", self.sSpin, c['spin'])
        xcd, n, q = T[0], T[1], T[2]
        k.S("s_and_b32", xcd, s(2), 7); k.S("s_lshr_b32", n, s(2), 3); k.S("s_lshr_b32", q, xcd, 1)
        for p in range(1, 7):
            k.S("s_add_u32", self.sAs[p], self.sAs[p - 1], 1)
            k.S("s_cmp_eq_u32", self.sAs[p], 7)
            k.S("s_cselect_b32", self.sAs[p], 0, self.sAs[p])
        if c.get('local'): k.S("s_mov_b32", T[4], 4)
        else: k.S("s_cmp_eq_u32", q, 3); k.S("s_cselect_b32", T[4], 0, 8)
        k.S("s_sub_u32", T[5], n, T[4])
        k.S("s_cmp_lt_u32", T[5], 4); k.S("s_cselect_b32", self.sIsRed, 1, 0)
        k.S("s_add_u32", self.sRho, xcd, c['redoff']); k.S("s_and_b32", self.sRho, self.sRho, 7)
        k.S("s_lshl_b32", self.sRho, self.sRho, 2); k.S("s_and_b32", T[5], n, 3); k.S("s_add_u32", self.sRho, self.sRho, T[5])
        k.S("s_add_u32", T[4], T[4], 4)
        k.S("s_cmp_ge_u32", n, T[4]); k.S("s_cselect_b32", T[4], 4, 0); k.S("s_sub_u32", T[4], n, T[4])
        k.S("s_lshr_b32", self.sC, T[4], 2)
        k.S("s_and_b32", T[4], T[4], 3)
        if c['xmap'] and not c.get('local'):
            k.S("s_and_b32", self.sI2, xcd, 6); k.S("s_lshl_b32", self.sI2, self.sI2, 1); k.S("s_add_u32", self.sI2, self.sI2, T[4])
            k.S("s_bitcmp1_b32", xcd, 0); k.S("s_cselect_b32", T[5], 0, 16); k.S("s_add_u32", self.sI2, self.sI2, T[5])
        else:
            k.S("s_lshl_b32", self.sI2, xcd, 2); k.S("s_add_u32", self.sI2, self.sI2, T[4])
        k.S("s_add_u32", self.sRot2, T[4], self.sC); k.S("s_and_b32", self.sRot2, self.sRot2, 0 if 'rot0' in c.get('exp', '') else 3)
        k.S("s_movk_i32", T[4], 896)
        k.V("v_lshlrev_b32", tmp[4], 4, cs)
        k.V("v_mad_u32_u24", tmp[4], l3, T[4], tmp[4])
        k.S("s_lshl_b32", T[5], self.sC, 7)
        k.V("v_add_u32", self.vP2d[0], T[5], tmp[4])
        k.V("v_add_u32", self.vP2d[1], 6144, self.vP2d[0])
        k.V("v_add_u32", self.vP2d[2], 14336, self.vP2d[0])
        k.V("v_add_u32", self.vP2d[3], 14336 + 6144, self.vP2d[0])
        self.sOnes, self.sLn2 = s(22), s(23)
        k.S("s_mov_b32", self.sOnes, ONES); k.S("s_mov_b32", self.sLn2, LN2)

    def prologue2(self):
        k, c, T, tmp, lane = self.k, self.c, self.sT, self.tmp, self.lane
        def srd(d, lo, hi, size):
            k.S("s_mov_b32", d[0], lo); k.S("s_and_b32", d[1], hi, 0xffff)
            k.S("s_mov_b32", d[2], size); k.S("s_mov_b32", d[3], 0x20000)
        self.warm_setup()
        k.S("s_cmp_eq_u32", self.sGrp, 0)
        k.S("s_cselect_b32", self.sP2[0], s(14), s(8)); k.S("s_cselect_b32", self.sP2[1], s(15), s(9))
        k.S("s_cselect_b32", self.sP2[2], 1792 * 896, 448 * 896)
        k.S("s_and_b32", self.sP2[1], self.sP2[1], 0xffff); k.S("s_mov_b32", self.sP2[3], 0x20000)
        k.S("s_xor_b32", T[0], self.sIsH, 1); k.S("s_and_b32", self.sIsRed, self.sIsRed, T[0])
        if not c['qpf']: k.S("s_cmp_eq_u32", self.sIsRed, 1); k.S("s_cselect_b32", self.sP2[2], 0, self.sP2[2])
        srd(self.sWS, s(20), s(21), WSEND)
        srd(self.sOUT, s(16), s(17), 2048 * 896)
        if c.get('prio0'):
            lab = k.newlabel("Lpr")
            k.S("s_cmp_eq_u32", self.sGrp, c['prio0'] - 1); k.branch("s_cbranch_scc0", lab); k.sraw("s_setprio 1"); k.label(lab)
        k.S("s_mov_b32", self.sPad[0], 0xf0000000); k.S("s_mov_b32", self.sPad[1], 0xf0000000)
        k.S("s_mov_b32", self.sHi[0], 0); k.S("s_mov_b32", self.sHi[1], -1)
        if c['stamps']:
            for p in self.STAMP_PAIRS[:11]: k.S("s_mov_b32", s(p), 0)
            if 'early' in c['stamps']: k.S("s_mov_b32", s(self.STAMP_PAIRS[c['stamps'].index('early')]), s(100))
            if 'karg' in c['stamps']: k.S("s_mov_b32", s(self.STAMP_PAIRS[c['stamps'].index('karg')]), s(98))
        row, hf, gx, base = tmp[0], tmp[1], tmp[2], tmp[3]
        k.V("v_and_b32", row, 31, lane)
        k.V("v_lshrrev_b32", hf, 5, lane)
        k.V("v_bfe_u32", gx, lane, 1, 3)
        k.S("s_lshl_b32", T[0], self.sRt, 12)
        k.V("v_lshl_add_u32", base, row, 7, T[0])
        def xaddr(dst, sp_reg_or_int):
            k.S("s_add_u32", T[1], self.sRt, sp_reg_or_int); k.S("s_and_b32", T[1], T[1], 3); k.S("s_lshl_b32", T[1], T[1], 1)
            k.V("v_add_u32", tmp[4], T[1], hf); k.V("v_xor_b32", tmp[4], tmp[4], gx)
            k.V("v_lshl_add_u32", dst, tmp[4], 4, base)
        for sp in range(4): xaddr(self.vXR[sp], sp)
        k.S("s_lshl_b32", T[2], self.sGrp, 1); xaddr(self.vXT[0], T[2])
        k.S("s_add_u32", T[2], T[2], 1); xaddr(self.vXT[1], T[2])
        k.S("s_lshl_b32", T[0], self.sGrp, 9); k.S("s_add_u32", T[0], T[0], CSA)
        k.V("v_lshl_add_u32", self.vCSR, row, 4, T[0])
        k.S("s_lshl_b32", T[0], self.sRt, 2)
        k.V("v_add_u32", self.vCSW, T[0], self.vCSR)
        k.V("v_lshrrev_b32", tmp[4], 4, lane); k.V("v_lshrrev_b32", tmp[5], 2, lane)
        k.V("v_xor_b32", tmp[4], tmp[4], tmp[5]); k.V("v_and_b32", tmp[4], 1, tmp[4])
        k.V("v_cmp_eq_u32", VCC, 0, tmp[4]); k.V("v_mov_b32", tmp[5], ONES)
        k.V("v_cndmask_b32", self.IND[0], 0, tmp[5])
        for i in range(1, 4): k.V("v_mov_b32", self.IND[i], self.IND[0])
        k.V("v_bfe_u32", tmp[4], lane, 2, 2)
        k.V("v_lshl_add_u32", self.vRowp, hf, 3, tmp[4])
        k.V("v_bfe_u32", tmp[4], lane, 4, 1); k.V("v_lshlrev_b32", tmp[4], 5, tmp[4])
        k.V("v_and_b32", tmp[5], 3, lane); k.V("v_lshl_add_u32", tmp[4], tmp[5], 3, tmp[4])
        k.V("v_bfe_u32", tmp[5], lane, 3, 1); k.V("v_lshl_add_u32", self.vColb, tmp[5], 6, tmp[4])
        k.V("v_mov_b32", self.sum, 0); k.V("v_mov_b32", self.sq, 0)
        self.cnt_init = True
        k.hard_wait("s_waitcnt lgkmcnt(0)")
        self.cnt_zero()
        k.S("s_and_b32", self.sTag[0], self.sTag[0], -16); k.S("s_add_u32", self.sTag[0], self.sTag[0], 16)
        k.V("v_mov_b32", self.vFV[1], self.sTag[1])

    def warm_setup(self):
        k, c, T, tmp, lane = self.k, self.c, self.sT, self.tmp, self.lane
        if c['warm']:
            k.comment("touch the weights once, spread over all workgroups, so later misses are served on-die")
            k.S("s_and_b32", T[0], self.sWv, 3)
            k.S("s_cmp_eq_u32", T[0], 0); k.S("s_cselect_b32", s(48), s(14), s(12)); k.S("s_cselect_b32", s(49), s(15), s(13))
            k.S("s_cmp_eq_u32", T[0], 2); k.S("s_cselect_b32", s(48), s(8), s(48)); k.S("s_cselect_b32", s(49), s(9), s(49))
            k.S("s_cselect_b32", T[1], 13, 49); k.S("s_cselect_b32", s(50), 448 * 896, 1792 * 896)
            k.S("s_cmp_eq_u32", T[0], 3); k.S("s_cselect_b32", s(48), s(6), s(48)); k.S("s_cselect_b32", s(49), s(7), s(49))
            k.S("s_cselect_b32", T[1], 37, T[1]); k.S("s_cselect_b32", s(50), 448 * 2688, s(50))
            k.S("s_and_b32", s(49), s(49), 0xffff); k.S("s_mov_b32", s(51), 0x20000)
            k.S("s_cmp_eq_u32", self.sGrp, 0); k.S("s_cselect_b32", T[2], T[1], 0)
            k.S("s_mul_i32", T[1], T[1], s(2)); k.S("s_lshl_b32", T[1], T[1], 7)
            k.V("v_lshlrev_b32", tmp[4], 7, lane)
            k.V("v_cmp_gt_u32", VCC, T[2], lane)
            k.V("v_mov_b32", tmp[5], OOB)
            k.V("v_cndmask_b32", tmp[4], tmp[5], tmp[4])
            k.V("v_add_u32", self.vWH2, T[1], tmp[4])
    def warm_issue(self):
        if self.c['warm']: self.k.gload(self.vDummy2, self.vWH2, self.sTMP, 0)
        if self.c.get('pagetouch'):
            k, T, tmp, lane = self.k, self.sT, self.tmp, self.lane
            st = self.c['pagetouch']
            k.S("s_cmp_eq_u32", self.sGrp, 0); k.S("s_cselect_b32", T[0], 0, OOB)
            k.S("s_cmp_eq_u32", self.sRt, 0); k.S("s_cselect_b32", T[1], T[0], OOB)
            k.S("s_mov_b32", T[2], st); k.V("v_mul_lo_u32", tmp[5], lane, T[2]); k.V("v_add_u32", tmp[5], 0x180000 % st + 64, tmp[5])
            k.gload(self.vDummy, tmp[5], self.sWS, T[1])
            k.S("s_cmp_eq_u32", self.sRt, 1); k.S("s_cselect_b32", T[1], T[0], OOB)
            k.V("v_lshlrev_b32", tmp[5], 15, lane)
            k.gload(self.vDummy, tmp[5], self.sOUT, T[1])

    def l2pf_job(self, q):
        k, T, tmp, lane = self.k, self.sT, self.tmp, self.lane
        def f():
            if q == 0:
                k.S("s_lshr_b32", T[0], s(2), 3); k.S("s_and_b32", T[0], T[0], 15); k.S("s_lshl_b32", T[0], T[0], 2); k.S("s_add_u32", T[0], T[0], self.sRt)
                k.S("s_cmp_eq_u32", self.sGrp, 0); k.S("s_cselect_b32", T[1], 196 * 128, 49 * 128); k.S("s_mul_i32", T[0], T[0], T[1])
                k.V("v_lshl_add_u32", self.vPFa, lane, 7, T[0]); k.V("v_mov_b32", tmp[5], OOB)
                k.V("v_cmp_gt_u32", VCC, 49, lane); k.V("v_cndmask_b32", self.vPFa, tmp[5], self.vPFa)
                k.gload(self.vDummy2, self.vPFa, self.sP2, 0)
            else:
                k.S("s_cmp_eq_u32", self.sGrp, 0); k.S("s_cselect_b32", T[0], q * 49 * 128, OOB)
                k.gload(self.vDummy2, self.vPFa, self.sP2, T[0])
        return f

    def tr_addrs(self, dst, omul, base, extra=0):
        k, T, tmp = self.k, self.sT, self.tmp
        items = []
        if omul: items.append((8, lambda: (k.S("s_mul_i32", T[3], self.sGrp, omul), k.V("v_add_u32", tmp[6], T[3], self.vColb))))
        else: items.append((4, lambda: k.V("v_add_u32", tmp[6], extra, self.vColb)))
        items.append((4, lambda: k.V("v_and_b32", tmp[6], 127, tmp[6])))
        items.append((4, lambda: k.V("v_lshl_add_u32", tmp[6], self.vRowp, 7, tmp[6])))
        for sp in range(4):
            def f(sp=sp):
                k.S("s_add_u32", T[3], self.sRt, sp); k.S("s_and_b32", T[3], T[3], 3); k.S("s_lshl_b32", T[3], T[3], 11)
                k.S("s_add_u32", T[3], T[3], base)
                k.V("v_add_u32", dst[sp], T[3], tmp[6])
            items.append((20, f))
        return items

    def job_x(self, p):
        k, T = self.k, self.sT
        def f():
            k.S("s_add_u32", M0, self.sMx, XR + (p % 4) * 16384)
            k.S("s_lshl_b32", T[5], self.sAs[p], 7); k.S("s_add_u32", T[5], T[5], self.sXb)
            k.dma(self.vXD[0], self.sX, T[5], 0, ('x', p)); k.dma(self.vXD[1], self.sX, T[5], 1024, ('x', p))
        return f
    def job_w(self, name, p, col, lds):
        k, T = self.k, self.sT
        def f():
            k.S("s_add_u32", M0, self.sMw, lds)
            k.S("s_mul_i32", T[0], self.sAs[p], self.sRS64); k.S("s_add_u32", T[0], T[0], col)
            k.dma(self.vWD, self.sW, T[0], 0, (name, p))
        return f
    def unit_ra(self, pos):
        k, T = self.k, self.sT
        G, q = pos // 4, pos % 4
        k.S("s_add_u32", T[1], self.sRot2, q); k.S("s_and_b32", T[1], T[1], 3 if G < 3 else 1)
        k.S("s_lshr_b32", T[2], T[1], 1); k.S("s_add_u32", T[2], T[2], 2 * G)
        k.S("s_and_b32", T[1], T[1], 1)
    def unit_w(self, pos):
        k, T, U = self.k, self.sT, self.sUW
        self.unit_ra(pos)
        k.S("s_add_u32", T[2], T[2], T[1])
        k.S("s_cmp_eq_u32", T[2], 7); k.S("s_cselect_b32", T[2], 0, T[2])
        k.S("s_mul_i32", T[1], T[1], 7); k.S("s_add_u32", T[2], T[2], T[1])
        k.S("s_mul_i32", T[1], self.sRt, 14); k.S("s_add_u32", T[2], T[2], T[1])
        if 'w2x' in self.c.get('exp', ''): k.S("s_and_b32", T[2], T[2], 1)
        k.S("s_mul_i32", U[0], T[2], 32 * 896)
    def unit_a(self, pos):
        k, T, U = self.k, self.sT, self.sUW
        self.unit_ra(pos)
        k.S("s_mul_i32", T[1], T[1], 7); k.S("s_add_u32", T[2], T[2], T[1]); k.S("s_lshl_b32", U[1], T[2], 11)
    def a_pos(self, n): return (n % 6) * 2048
    def p2_bases(self):
        k, T = self.k, self.sT
        k.S("s_mul_i32", T[1], self.sRt, 14336); k.S("s_add_u32", T[1], T[1], WB)
        k.S("s_lshl_b32", T[2], self.sRt, 14)
        k.S("s_cmp_eq_u32", self.sGrp, 0)
        k.S("s_cselect_b32", self.sMp[0], T[1], T[2])
        k.S("s_lshl_b32", T[2], self.sRt, 13); k.S("s_add_u32", self.sMp[1], T[2], W0R)

    def x_reads(self, p):
        k = self.k
        off = XR + (p % 4) * 16384
        for t in range(2): k.ds_read("ds_read_b128", self.xt[4 * t:4 * t + 4], self.vXT[t], off)
        for sp in range(4): k.ds_read("ds_read_b128", a(16 * p + 4 * sp, 4), self.vXR[sp], off)
    def dots(self):
        k = self.k
        for i in range(8):
            k.V("v_dot2c_f32_bf16", self.sq, self.xt[i], self.xt[i])
            k.V("v_dot2c_f32_bf16", self.sum, self.sOnes, self.xt[i])
    def run_slots(self, slots, pre_read, pre_mfma, post_mfma, fill, dq, first_ring=0, tail_reads=None):
        k, LA = self.k, self.c['LA']
        NF = 6
        assert 2 <= LA <= 4
        dq.sort(key=lambda e: e[0])
        def frag(n): return a(112 + 4 * ((n + first_ring) % NF), 4)
        def read(n):
            if n in pre_read: pre_read[n]()
            sl = slots[n]
            k.ds_read("ds_read_b64_tr_b16", frag(n)[0:2], sl['addr'], sl['off'])
            k.ds_read("ds_read_b64_tr_b16", frag(n)[2:4], sl['addr'], sl['off'] + sl['second'])
        for n in range(min(LA, len(slots))): read(n)
        for n, sl in enumerate(slots):
            if n in pre_mfma: pre_mfma[n]()
            x = a(4 * sl['xi'], 4)
            C = 0 if sl['first'] else sl['acc']
            if n % 2 == 0 and n + 1 < len(slots): k.wait_regs(frag(n), frag(n + 1), x)
            if sl['wfirst']: k.mfma(True, sl['acc'], frag(n), x, C)
            else: k.mfma(True, sl['acc'], x, frag(n), C)
            if sl['cs'] is not None: k.mfma(False, sl['cs'], self.IND, frag(n), 0 if sl['csfirst'] else sl['cs'])
            if n + LA < len(slots): read(n + LA)
            if n in post_mfma: post_mfma[n]()
            while dq and dq[0][0] <= n: dq.pop(0)[1]()
            fill.run(sl.get('bud', self.c['bud']))
    def cnt_zero(self):
        k, tmp = self.k, self.tmp
        z = v(96, 4)
        for i in range(4): k.V("v_mov_b32", z[i], 0)
        k.V("v_mov_b32", tmp[4], CNT); k.ds_write("ds_write_b128", tmp[4], z, 0); k.wait_lg_all()
    def cnt_add(self, which=0, wait=True):
        k, tmp = self.k, self.tmp
        if wait: k.wait_lg_all()
        k.V("v_mov_b32", tmp[4], CNT + 4 * which); k.V("v_mov_b32", tmp[5], 64)
        k.S("s_mov_b64", EXEC, 1)
        k.ds_write("ds_add_u32", tmp[4], tmp[5], 0)
        k.S("s_mov_b64", EXEC, -1)
    def cnt_wait(self, target, which=0):
        k, tmp, T = self.k, self.tmp, self.sT
        top = k.newlabel("Lcnt")
        k.wait_lg_all()
        k.V("v_mov_b32", tmp[4], CNT + 4 * which)
        k.S("s_mov_b32", T[1], self.c['spin'] * 8)
        k.label(top)
        k.raw(f"  ds_read_b32 {tmp[5]}, {tmp[4]}\n  s_waitcnt lgkmcnt(0)\n  v_readfirstlane_b32 {T[0]}, {tmp[5]}\n  s_sub_u32 {T[1]}, {T[1]}, 1\n  s_cbranch_scc1 {top}d\n  s_cmp_ge_u32 {T[0]}, {target}\n  s_cbranch_scc0 {top}")
        k.label(top + "d")
    def bar_wait(self, *toks, lg=False):
        def f():
            self.k.wait_tok(*toks)
            if lg: self.k.wait_lg_all()
            self.k.barrier()
        return f
    def stats_part1(self):
        k, T, tmp = self.k, self.sT, self.tmp
        it = []
        def a0():
            k.S("s_lshl_b32", T[3], self.sWv, 9); k.S("s_add_u32", T[3], T[3], STA)
            k.V("v_lshl_add_u32", tmp[4], self.lane, 3, T[3])
        it.append((12, a0))
        def a1():
            k.V("v_mov_b32", self.sp[0], self.sum); k.V("v_mov_b32", self.sp[1], self.sq)
        it.append((8, a1))
        it.append((4, lambda: k.ds_write("ds_write_b64", tmp[4], self.sp, 0, tok='st')))
        it.append((4, lambda: k.V("v_xor_b32", tmp[4], 2048, tmp[4])))
        return it
    def stats_part2(self):
        k, T, tmp = self.k, self.sT, self.tmp
        it = []
        it.append((4, lambda: k.ds_read("ds_read_b64", self.sp, tmp[4], 0)))
        it.append((0, self.c['dly']))
        it.append((4, lambda: k.V("v_add_f32", self.sum, self.sum, self.sp[0])))
        it.append((4, lambda: k.V("v_add_f32", self.sq, self.sq, self.sp[1])))
        it.append((8, lambda: (k.V("v_mov_b32", self.sp[0], self.sum), k.V("v_mov_b32", self.sp[1], self.sq))))
        it.append((8, lambda: (k.V("v_permlane32_swap_b32", self.sum, self.sp[0]), k.V("v_permlane32_swap_b32", self.sq, self.sp[1]))))
        it.append((8, lambda: (k.V("v_add_f32", self.sum, self.sum, self.sp[0]), k.V("v_add_f32", self.sq, self.sq, self.sp[1]))))
        mean, var = self.sum, self.sq
        it.append((8, lambda: (k.V("v_mul_f32", mean, -1.0 / 448, mean), k.V("v_mul_f32", var, 1.0 / 448, var))))
        it.append((4, lambda: k.Vneg("v_fma_f32", var, mean, mean, var, (True, False, False))))
        it.append((8, lambda: (k.V("v_max_f32", var, 0, var), k.V("v_add_f32", var, 1e-5, var))))
        it.append((8, lambda: k.V("v_sqrt_f32", self.irs, var)))
        it.append((4, lambda: k.V("v_cvt_pk_bf16_f32", self.sp[0], mean, mean)))
        it.append((8, lambda: k.V("v_rcp_f32", self.cc, self.irs)))
        it.append((4, lambda: k.V("v_and_b32", self.sp[1], 0xffff0000, self.sp[0])))
        it.append((4, lambda: k.V("v_sub_f32", self.sp[1], mean, self.sp[1])))
        it.append((4, lambda: k.V("v_mul_f32", self.cc, self.ccmul, self.cc)))
        it.append((4, lambda: k.V("v_cvt_pk_bf16_f32", self.sp[1], self.sp[1], self.sp[1])))
        for i in range(4):
            it.append((4, lambda i=i: k.V("v_cndmask_b32_e64", self.mneg[i], self.sp[0], self.sp[1], self.sHi)))
        return it
    def cs_pack(self, cs, idx, dst=None):
        k = self.k
        it = []
        it.append((4, lambda: k.V("v_cvt_pk_bf16_f32", cs[1], cs[0], cs[0])))
        it.append((4, lambda: k.V("v_and_b32", cs[1], 0xffff0000, cs[1])))
        it.append((4, lambda: k.V("v_sub_f32", cs[1], cs[0], cs[1])))
        if dst is None:
            it.append((4, lambda: k.V("v_cvt_pk_bf16_f32", cs[1], cs[0], cs[1])))
            it.append((4, lambda: k.ds_write("ds_write_b32", self.vCSW, cs[1], idx * 1024, tok='cs')))
        else:
            it.append((4, lambda: k.V("v_cvt_pk_bf16_f32", dst[0], cs[0], cs[1])))
            it.append((12, lambda: [k.V("v_mov_b32", dst[i], 0) for i in (1, 2, 3)]))
        return it
    def cs_apply(self, cs, idx, acc, wfirst, read=True):
        k = self.k
        it = []
        if read: it.append((4, lambda: k.ds_read("ds_read_b128", cs, self.vCSR, idx * 1024)))
        it.append((8, (lambda: k.mfma(True, acc, cs, self.mneg, acc)) if wfirst else (lambda: k.mfma(True, acc, self.mneg, cs, acc))))
        return it
    def epi_silu(self, acc, sbyte, tok):
        k, T = self.k, self.sT
        it = []; t = self.et; O = self.eo
        for g4 in range(4):
            A = [acc[4 * g4 + i] for i in range(4)]
            for i in range(4): it.append((4, lambda i=i, A=A: k.V("v_mul_f32", t[i], self.cc, A[i])))
            for i in range(4): it.append((8, lambda i=i: k.V("v_exp_f32", t[i], t[i])))
            for i in range(4): it.append((4, lambda i=i: k.V("v_fma_f32", t[i], t[i], self.irs, self.irs)))
            for i in range(4): it.append((8, lambda i=i: k.V("v_rcp_f32", t[i], t[i])))
            for i in range(4): it.append((4, lambda i=i, A=A: k.V("v_mul_f32", t[i], t[i], A[i])))
            for i in range(2): it.append((4, lambda i=i, g4=g4: k.V("v_cvt_pk_bf16_f32", O[2 * g4 + i], t[2 * i], t[2 * i + 1])))
            if g4 % 2 == 1:
                h = g4 // 2
                def st(h=h):
                    k.S("s_mov_b32", T[3], sbyte)
                    k.gstore(O[4 * h:4 * h + 4], self.vST, self.sWS, T[3], imm=1024 * h, mod=self.c.get('hmod', " sc1"), tok=tok)
                it.append((8, st))
        return it
    def phi4(self, A, sc, dst2):
        k, t = self.k, self.et
        it = []
        for i in range(4): it.append((4, lambda i=i: k.V("v_mul_f32", A[i], sc[i], A[i])))
        for i in range(4): it.append((8, lambda i=i: k.V("v_exp_f32_e64", t[i], A[i], mod="clamp")))
        for i in range(4): it.append((4, lambda i=i: k.V("v_max_f32", A[i], 1e-6 * LOG2E, A[i])))
        for i in range(4): it.append((4, lambda i=i: k.V("v_fmac_f32", t[i], self.sLn2, A[i])))
        for i in range(2): it.append((4, lambda i=i: k.V("v_cvt_pk_bf16_f32", dst2[i], t[2 * i], t[2 * i + 1])))
        return it

    QOFF = [49152, 57344, 0, 8192, 16384, 24576, 32768]
    def flag_addr(self, base, sline, shift, sidx):
        k, T, tmp = self.k, self.sT, self.tmp
        k.S("s_lshl_b32", T[1], sline, shift + 7); k.S("s_lshl_b32", T[2], sidx, 7); k.S("s_add_u32", T[1], T[1], T[2]); k.S("s_add_u32", T[1], T[1], base)
        k.V("v_mov_b32", tmp[4], OOB); k.V("v_mov_b32", tmp[5], T[1])
        k.V("v_cmp_eq_u32", VCC, 0, self.lane); k.V("v_cndmask_b32", self.vFA, tmp[4], tmp[5])

    def role_h(self):
        k, T, tmp, c = self.k, self.sT, self.tmp, self.c
        k.label("L_roleH")
        self.ccmul = -LOG2E
        col = self.sCol
        k.S("s_add_u32", col[1], col[0], 128); k.S("s_add_u32", col[2], col[0], 256)
        k.S("s_and_b32", T[1], self.sIdx, 1); k.S("s_mul_i32", T[2], self.sIdx, 448)
        k.S("s_xor_b32", T[1], T[1], 1); k.S("s_mul_i32", T[1], T[1], 384); k.S("s_add_u32", col[3], T[2], T[1])
        acc = self.blk[0:2]; cs = self.cs; vWH = self.vWH
        for f in (self.job_x(1), self.job_w('w0', 1, col[0], W0R + 8192)): f()
        for _, f in self.tr_addrs(self.vTX, 64, W0R): f()
        k.V("v_lshrrev_b32", tmp[4], 2, self.lane); k.S("s_lshl_b32", T[1], self.sRt, 4); k.V("v_add_u32", tmp[4], T[1], tmp[4])
        k.V("v_and_b32", tmp[5], 3, self.lane); k.V("v_lshlrev_b32", tmp[5], 4, tmp[5])
        k.S("s_movk_i32", T[1], 3584); k.V("v_mad_u32_u24", vWH, tmp[4], T[1], tmp[5])
        k.S("s_lshl_b32", T[1], self.sI, 2); k.S("s_add_u32", T[1], T[1], self.sRt)
        k.S("s_mul_i32", T[2], T[1], 112 * 1024); k.S("s_mul_i32", T[3], self.sIdx, 14 * 1024); k.S("s_add_u32", T[2], T[2], T[3])
        k.S("s_lshl_b32", T[3], self.sGrp, 11); k.S("s_add_u32", T[2], T[2], T[3]); k.S("s_add_u32", T[2], T[2], HB)
        k.V("v_lshl_add_u32", self.vST, self.lane, 4, T[2])
        k.S("s_mov_b32", T[0], T[1]); k.S("s_lshl_b32", T[3], self.sIdx, 1); k.S("s_add_u32", T[3], T[3], self.sGrp)
        self.flag_addr(FLH, T[0], 4, T[3])
        self.p2_bases()
        for _, f in self.tr_addrs(self.vTY, 64, WB): f()
        for f in (self.job_x(2), self.job_w('w0', 2, col[0], W0R + 16384)): f()

        def job_h(m):
            def f():
                k.S("s_cmp_eq_u32", self.sGrp, 0)
                k.S("s_cselect_b32", T[0], self.sAs[2 * m], self.sAs[min(2 * m + 1, 6)])
                k.S("s_mul_i32", T[0], T[0], self.sRS64); k.S("s_add_u32", T[0], T[0], col[3])
                k.S("s_add_u32", M0, self.sMw, W0R + ((3 + m) % 4) * 8192) if m < 3 else (
                    k.S("s_lshl_b32", T[1], self.sRt, 10), k.S("s_add_u32", M0, T[1], W0R + 2 * 8192))
                k.dma(vWH, self.sW, T[0], 0, ('wh', m))
            return f
        if c['ea'] == 1: return self.role_h3(acc, cs, col, job_h)
        slots = []
        for ps in range(2):
            for n in range(28):
                p, sp = divmod(n, 4)
                slots.append(dict(acc=acc[ps], wfirst=True, addr=(self.vTX, self.vTY)[ps][sp], off=[(p % 4) * 8192, p * 8192][ps], second=512, xi=n,
                                  cs=cs[ps] if sp == 0 else None, csfirst=p == 0, first=n == 0))
        fill = Fill(); dq = []
        pre_read, pre_mfma, post = {}, {}, {}
        assert c['LA'] == 3
        for p in range(7):
            def br(p=p): self.bar_wait(('x', p), ('w0', p))(); self.stamp(f'B{p}'); self.x_reads(p)
            pre_read[4 * p] = br
            pre_mfma[4 * p] = self.dots
        for p in range(4):
            nb = 4 * (p + 1) - c['LA']
            dq.append((nb, self.job_x(p + 3))); dq.append((nb + 1, self.job_w('w0', p + 3, col[0], W0R + ((p + 3) % 4) * 8192)))
        dq.insert(2, (3, self.warm_issue))
        for p, n in enumerate((17, 18, 19, 21, 22, 23, 25)): dq.append((n, self.job_w('w1', p, col[1], WB + p * 8192)))
        for p, n in enumerate((26, 27, 29, 31, 33, 35, 37)): dq.append((n, self.job_w('w2', p, col[2], XR + self.QOFF[p])))
        for m in range(4): dq.append((39 + 2 * m, job_h(m)))
        now, dly = self.now, c['dly']
        def lgbar(*toks):
            k.wait_tok(*toks); k.wait_lg_tok('st', 'cs'); k.barrier()
        post[24] = lambda: now(self.stats_part1() + self.cs_pack(cs[0], 0))
        ap0, ap1 = self.cs_apply(cs[0], 0, acc[0], True), self.cs_apply(cs[1], 1, acc[1], True)
        def a2():
            lgbar(('w1', 0), ('w1', 1))
            fill.extend(ap0[:1]); fill.extend(self.stats_part2())
        pre_read[28] = a2
        def end1():
            self.stamp('p1end')
            e0 = self.epi_silu(acc[0], 0, ('h', 0))
            fill.extend(ap0[1:]); fill.add(0, dly); fill.extend(e0); fill.extend(self.tr_addrs(self.vTX, 0, XR))
        post[27] = end1
        pre_read[36] = self.bar_wait(('w1', 2), ('w1', 3), ('w1', 4))
        pre_read[48] = self.bar_wait(('w1', 5), ('w1', 6))
        post[52] = lambda: now(self.cs_pack(cs[1], 1))
        def y():
            lgbar(*[('w2', p) for p in range(4)])
            now(ap1[:1])
        post[53] = y
        self.run_slots(slots, pre_read, pre_mfma, post, fill, dq)
        fill.drain(); self.stamp('p2end')
        rest = [('w2', 4), ('w2', 5), ('w2', 6)] + [('wh', m) for m in range(4)]
        k.S("s_cmp_eq_u32", self.sGrp, 1)
        k.branch("s_cbranch_scc1", "L_hB")
        st = self.save()
        self.cnt_add(2)
        now(ap1[1:])
        def xa():
            k.wait_tok(*rest); k.barrier()
        self.p2a_preamble(self.epi_silu(acc[1], 4096, ('fin',)), xa, lambda: self.flag_store(1, [('h', 0)]))
        k.S("s_add_u32", T[4], self.sTag[0], 2); k.V("v_mov_b32", self.vFV[0], T[4])
        self.stamp('tail')
        self.joinA.append(self.exit_state()); k.branch("s_branch", "L_p2a")
        self.restore(st)
        k.label("L_hB")
        if c['prio']: k.sraw(f"s_setprio {c['prio']}")
        hoff = [3 * 8192, 3 * 8192 + 4096, 0, 4096, 8192, 8192 + 4096, 2 * 8192]
        slots = []
        for ps in range(3):
            for n in range(28):
                p, sp = divmod(n, 4)
                slots.append(dict(acc=acc[ps % 2], wfirst=True, addr=(self.vTX, self.vTY, self.vTX)[ps][sp], off=self.QOFF[p] if ps < 2 else hoff[p],
                                  second=512 if ps < 2 else 256, xi=n, cs=cs[ps % 2], csfirst=n == 0, first=n == 0))
        fill = Fill()
        fill.extend(ap1[1:]); fill.extend(self.tr_addrs(self.vTY, 64, XR)); fill.extend(self.epi_silu(acc[1], 4096, ('h', 1)))
        def vth():
            it = [(12, lambda: (k.V("v_lshlrev_b32", tmp[6], 6, self.vRowp), k.V("v_and_b32", tmp[5], 63, self.vColb), k.V("v_add_u32", tmp[6], tmp[6], tmp[5])))]
            for sp in range(4):
                def f(sp=sp):
                    k.S("s_add_u32", T[3], self.sRt, sp); k.S("s_and_b32", T[3], T[3], 3); k.S("s_lshl_b32", T[3], T[3], 10)
                    k.S("s_add_u32", T[3], T[3], W0R); k.V("v_add_u32", self.vTX[sp], T[3], tmp[6])
                it.append((20, f))
            return it
        def nextepi(ps, sbyte, tok, extra=()):
            def f():
                fill.drain()
                fill.add(0, 2); fill.extend(self.cs_pack(cs[ps % 2], 0, dst=cs[2])); fill.extend(list(extra))
                fill.extend(self.cs_apply(cs[2], 0, acc[ps % 2], True, read=False)); fill.add(0, 2)
                fill.extend(self.epi_silu(acc[ps % 2], sbyte, tok))
            return f
        def xb():
            k.wait_tok(*rest); k.barrier()
        def e4():
            self.stamp('p3end'); nextepi(0, 6144, ('h', 2), vth())()
        def e5():
            self.stamp('p4end'); nextepi(1, 8192, ('h', 3))(); self.cnt_add(0, wait=False)
        post = {27: e4, 55: e5, c['f1n']: lambda: self.flag_store(1, [('h', 0)]), 28 + c['f2n']: lambda: self.flag_store(2, [('h', 1)]),
                56 + c['f2n']: lambda: self.flag_store(3, [('h', 2)]), 56 + c['wo0'] - 1: lambda: self.cnt_wait(256, 0)}
        dq = [(56 + c['wo0'] + 2 * n, self.job_p2_b(n)) for n in range(8)]
        self.run_slots(slots, {16: xb}, {}, post, fill, dq)
        fill.drain(); self.stamp('p5end')
        self.cnt_add(2)
        now(self.cs_pack(cs[0], 0, dst=cs[2])); now(self.cs_apply(cs[2], 0, acc[0], True, read=False))
        epi = self.epi_silu(acc[0], 10240, ('fin',))
        half = len(epi) // 2
        now(epi[:half - 1])
        self.flag_store(4, [('h', 3)])
        now(epi[half - 1:])
        k.S("s_add_u32", T[4], self.sTag[0], 5); k.V("v_mov_b32", self.vFV[0], T[4])
        self.stamp('tail')
        self.joinB.append(self.exit_state()); k.branch("s_branch", "L_p2b")

    def role_h3(self, acc, cs, col, job_h):
        k, T, tmp, c = self.k, self.sT, self.tmp, self.c
        slots = []
        for ps in range(3):
            for n in range(28):
                p, sp = divmod(n, 4)
                off = [(p % 4) * 8192, p * 8192, self.QOFF[p]][ps]
                slots.append(dict(acc=acc[ps % 2], wfirst=True, addr=(self.vTY if ps == 1 else self.vTX)[sp], off=off, second=512, xi=n,
                                  cs=cs[ps % 2] if sp == 0 else None, csfirst=p == 0, first=n == 0))
        fill = Fill(); dq = []
        pre_read, pre_mfma, post = {}, {}, {}
        assert c['LA'] == 3
        for p in range(7):
            def br(p=p): self.bar_wait(('x', p), ('w0', p))(); self.stamp(f'B{p}'); self.x_reads(p)
            pre_read[4 * p] = br
            pre_mfma[4 * p] = self.dots
        for p in range(4):
            nb = 4 * (p + 1) - c['LA']
            dq.append((nb, self.job_x(p + 3))); dq.append((nb + 1, self.job_w('w0', p + 3, col[0], W0R + ((p + 3) % 4) * 8192)))
        dq.insert(2, (3, self.warm_issue))
        for p, n in enumerate((17, 18, 19, 21, 22, 23, 25)): dq.append((n, self.job_w('w1', p, col[1], WB + p * 8192)))
        for p, n in enumerate((26, 27, 29, 31, 33, 35, 37)): dq.append((n, self.job_w('w2', p, col[2], XR + self.QOFF[p])))
        for m in range(4): dq.append((40 + 3 * m, job_h(m)))
        def job_a_only(n):
            def f():
                if n % 2 == 0:
                    self.unit_w(n // 2)
                    k.S("s_cmp_eq_u32", self.sGrp, 0); k.S("s_cselect_b32", self.sUW[0], self.sUW[0], OOB)
                k.S("s_cmp_eq_u32", self.sGrp, 0); k.S("s_cselect_b32", T[2], self.a_pos(n), 12288)
                k.S("s_mul_i32", T[1], self.sRt, 14336); k.S("s_add_u32", T[1], T[1], T[2]); k.S("s_add_u32", M0, T[1], WB)
                b = 2 * (n % 2)
                k.dma(self.vP2d[b], self.sP2, self.sUW[0], 0, ('p2', n)); k.dma(self.vP2d[b + 1], self.sP2, self.sUW[0], 1024, ('p2', n))
            return f
        for n in range(c['shw']): dq.append((c['shw0'] + c['shwd'] * n, job_a_only(n)))
        now, dly = self.now, c['dly']
        def lgbar(*toks):
            k.wait_tok(*toks); k.wait_lg_tok('st', 'cs'); k.barrier()
        post[24] = lambda: now(self.stats_part1() + self.cs_pack(cs[0], 0))
        ap0, ap1, ap2 = self.cs_apply(cs[0], 0, acc[0], True), self.cs_apply(cs[1], 1, acc[1], True), self.cs_apply(cs[0], 3, acc[0], True)
        def a2():
            lgbar(('w1', 0), ('w1', 1))
            fill.extend(ap0[:1]); fill.extend(self.stats_part2())
        pre_read[28] = a2
        def end1():
            self.stamp('p1end')
            e0 = self.epi_silu(acc[0], 0, ('h', 0))
            fill.extend(ap0[1:]); fill.add(0, dly); fill.extend(e0[:44]); fill.extend(self.tr_addrs(self.vTX, 64, XR)); fill.extend(e0[44:])
        post[27] = end1
        pre_read[36] = self.bar_wait(('w1', 2), ('w1', 3), ('w1', 4))
        pre_read[48] = self.bar_wait(('w1', 5), ('w1', 6))
        post[52] = lambda: now(self.cs_pack(cs[1], 1))
        def a3():
            lgbar(*[('w2', p) for p in range(4)])
            now(ap1[:1])
        pre_read[56] = a3
        def end2():
            fill.drain(); self.stamp('p2end')
            fill.extend(ap1[1:]); fill.add(0, dly); fill.extend(self.epi_silu(acc[1], 4096, ('h', 1)))
        post[55] = end2
        pre_read[64] = self.bar_wait(('w2', 4), ('w2', 5), ('w2', 6))
        post[c['f1h']] = lambda: self.flag_store(1, [('h', 0)])
        post[80] = lambda: now(self.cs_pack(cs[0], 3))
        def p81():
            k.wait_tok(*[('wh', m) for m in range(4)]); k.wait_lg_all(); k.barrier()
            now(ap2[:1])
        post[81] = p81
        self.run_slots(slots, pre_read, pre_mfma, post, fill, dq)
        fill.drain(); self.stamp('p3end')
        k.S("s_cmp_eq_u32", self.sGrp, 1)
        k.branch("s_cbranch_scc1", "L_hB")
        st = self.save()
        self.cnt_add(2); self.cnt_add(0, wait=False)
        for n in range(c['shw'], c['preh']): self.job_p2_a(n)()
        now(ap2[1:])
        self.p2a_preamble(self.epi_silu(acc[0], 8192, ('fin',)), None, lambda: self.flag_store(2, [('h', 1)]), first=max(c['preh'], c['shw']))
        k.S("s_add_u32", T[4], self.sTag[0], 3); k.V("v_mov_b32", self.vFV[0], T[4])
        self.stamp('tail')
        self.joinA.append(self.exit_state()); k.branch("s_branch", "L_p2a")
        self.restore(st)
        k.label("L_hB")
        if c['prio']: k.sraw(f"s_setprio {c['prio']}")
        vTH = self.vTY
        k.V("v_lshlrev_b32", tmp[6], 6, self.vRowp); k.V("v_and_b32", tmp[5], 63, self.vColb); k.V("v_add_u32", tmp[6], tmp[6], tmp[5])
        for sp in range(4):
            k.S("s_add_u32", T[3], self.sRt, sp); k.S("s_and_b32", T[3], T[3], 3); k.S("s_lshl_b32", T[3], T[3], 10)
            k.S("s_add_u32", T[3], T[3], W0R); k.V("v_add_u32", vTH[sp], T[3], tmp[6])
        hoff = [3 * 8192, 3 * 8192 + 4096, 0, 4096, 8192, 8192 + 4096, 2 * 8192]
        slots = [dict(acc=acc[1], wfirst=True, addr=vTH[n % 4], off=hoff[n // 4], second=256, xi=n, cs=cs[1], csfirst=n == 0, first=n == 0) for n in range(28)]
        fill = Fill()
        fill.extend(ap2[1:]); fill.add(0, dly); fill.extend(self.epi_silu(acc[0], 8192, ('h', 2)))
        nwo = c['nwo']
        self.cnt_add(0, wait=False)
        post = {c['f2n']: lambda: self.flag_store(2, [('h', 1)])}
        if nwo: post[c['xn']] = lambda: self.cnt_wait(512, 0)
        self.run_slots(slots, {}, {}, post, fill, [(c['xn'] + 1 + c['wod'] * n, self.job_p2_b(n)) for n in range(nwo)])
        fill.drain(); self.stamp('p4end')
        self.cnt_add(2)
        now(self.cs_pack(cs[1], 0, dst=cs[0])); now(self.cs_apply(cs[0], 0, acc[1], True, read=False))
        epi = self.epi_silu(acc[1], 10240, ('fin',))
        half = len(epi) // 2
        now(epi[:half - 1])
        self.flag_store(3, [('h', 2)])
        now(epi[half - 1:])
        k.S("s_add_u32", T[4], self.sTag[0], 4); k.V("v_mov_b32", self.vFV[0], T[4])
        self.stamp('tail')
        self.joinB.append(self.exit_state()); k.branch("s_branch", "L_p2b")

    def now(self, items):
        for _, f in items:
            if not isinstance(f, int): f()
    def save(self):
        import copy
        k = self.k
        return (copy.deepcopy(k.vm), copy.deepcopy(k.lg), list(k.hist), k.pos)
    def restore(self, st):
        k = self.k
        k.vm, k.lg, k.hist, k.pos = [dict(e) for e in st[0]], [dict(e) for e in st[1]], list(st[2]), st[3]
    def exit_state(self):
        self.k.wait_lg_all()
        self.k.flush_hazards()
        return [dict(e) for e in self.k.vm]
    def merge(self, states):
        k = self.k
        young = {}
        for st in states:
            for i, e in enumerate(st):
                y = len(st) - 1 - i
                keys = [('t', e['tok'])] + [('r', r) for r in e['regs']]
                for key in keys: young[key] = min(young.get(key, 99), y)
        L = max(young.values()) + 1 if young else 0
        q = []
        for key, y in young.items(): q.append((L - 1 - y, key))
        k.vm = []
        for pos in range(L):
            es = [key for p_, key in q if p_ == pos]
            k.vm.append(dict(regs={x[1] for x in es if x[0] == 'r'}, tok=None, toks={x[1] for x in es if x[0] == 't'}))
        k.lg = []; k.hist = []

    def role_qkv(self):
        k, T, tmp, c = self.k, self.sT, self.tmp, self.c
        k.label("L_roleQ")
        self.vPFa = v(23)
        self.ccmul = LOG2E
        col = self.sCol
        def slab(p):
            for f in (self.job_x(p), self.job_w('k', p, col[0], KVR + p * 16384), self.job_w('v', p, col[1], KVR + p * 16384 + 8192)): f()
        accQ, accK, accV = self.blk
        csK, csV, csQ = self.cs
        R2 = [v(44), v(45), v(46), v(47), v(48), v(49), v(50), v(51), v(52), v(53), v(54), v(55), v(112), v(113), v(114), v(115)]
        R2q = [v(44, 4), v(48, 4), v(52, 4), v(112, 4)]
        slab(1)
        for _, f in self.tr_addrs(self.vTX, 56, KVR): f()
        for _, f in self.tr_addrs(self.vTY, 0, XR): f()
        head = col[3]
        k.S("s_lshl_b32", head, self.sIdx, 1); k.S("s_add_u32", head, head, self.sGrp)
        k.S("s_lshl_b32", T[1], head, 4); k.S("s_add_u32", T[1], T[1], self.sI); k.S("s_lshl_b32", T[1], T[1], 2); k.S("s_add_u32", T[1], T[1], self.sRt)
        k.S("s_lshl_b32", T[1], T[1], 10); k.S("s_add_u32", T[1], T[1], PB)
        k.V("v_lshl_add_u32", self.vST, self.lane, 4, T[1])
        k.S("s_lshl_b32", T[0], head, 1); k.S("s_lshr_b32", T[3], self.sRt, 1); k.S("s_add_u32", T[0], T[0], T[3])
        k.S("s_lshl_b32", T[3], self.sI, 1); k.S("s_and_b32", T[4], self.sRt, 1); k.S("s_add_u32", T[3], T[3], T[4])
        self.flag_addr(FLP, T[0], 5, T[3])
        self.p2_bases()
        slots = []
        for n in range(56):
            p, r = divmod(n, 8); sp, sub = divmod(r, 2)
            slots.append(dict(acc=(accK, accV)[sub], wfirst=False, addr=self.vTX[sp], off=(p % 4) * 16384 + 8192 * sub, second=512, xi=4 * p + sp,
                              cs=(csK, csV)[sub] if sp == 0 else None, csfirst=p == 0, first=n < 2))
        fill = Fill(); dq = []
        pre_read, pre_mfma, post = {}, {}, {}
        for p in range(7):
            def br(p=p): self.bar_wait(('x', p), ('k', p), ('v', p))(); self.stamp(f'B{p}'); self.x_reads(p)
            pre_read[8 * p] = br
            pre_mfma[8 * p] = self.dots
        assert c['LA'] == 3
        slab(2)
        for p in range(4):
            o = KVR + ((p + 3) % 4) * 16384
            nb = 8 * (p + 1) - c['LA']
            dq += [(nb, self.job_x(p + 3)), (nb + 1, self.job_w('k', p + 3, col[0], o)), (nb + 2, self.job_w('v', p + 3, col[1], o + 8192))]
        dq.insert(3, (9, self.warm_issue))
        for p, n in enumerate((33, 35, 38, 40, 46, 48, 52)): dq.append((n, self.job_w('q', p, col[2], XR + self.QOFF[p])))
        pk = self.xt; pv = accV[0:8]
        def kv_epilogue():
            it = list(self.stats_part2())
            def r2w():
                k.S("s_lshl_b32", T[3], self.sWv, 7); k.S("s_add_u32", T[3], T[3], R2A)
                k.V("v_and_b32", tmp[4], 31, self.lane); k.V("v_lshl_add_u32", tmp[4], tmp[4], 2, T[3])
                k.ds_write("ds_write_b32", tmp[4], self.cc, 0)
                k.V("v_lshrrev_b32", tmp[4], 5, self.lane); k.V("v_lshl_add_u32", tmp[4], tmp[4], 4, T[3])
                for q in range(4): k.ds_read("ds_read_b128", R2q[q], tmp[4], 32 * q)
            it.append((40, r2w))
            ak, av = self.cs_apply(csK, 0, accK, False), self.cs_apply(csQ, 1, accV, False)
            it = [ak[0], av[0]] + it[:-1] + [ak[1], av[1]] + it[-1:]
            vmul = [(4, lambda i=i: k.V("v_mul_f32", accV[i], R2[i], accV[i])) for i in range(16)]
            for g4 in range(4):
                it += self.phi4([accK[4 * g4 + i] for i in range(4)], [R2[4 * g4 + i] for i in range(4)], pk[2 * g4:2 * g4 + 2])
            it.append((4, lambda: k.V("v_mov_b32", self.et[0], ONES)))
            it += vmul
            for i in range(8): it.append((4, lambda i=i: k.V("v_cvt_pk_bf16_f32", pv[i], accV[2 * i], accV[2 * i + 1])))
            for i in range(8): it.append((4, lambda i=i: k.V("v_cndmask_b32_e64", pv[i], pv[i], self.et[0], self.sPad)))
            it.append((8, lambda: k.mfma(True, accK, pk[0:4], pv[0:4], 0)))
            it.append((8, lambda: k.mfma(True, accK, pk[4:8], pv[4:8], accK)))
            def addrs():
                k.S("s_lshl_b32", T[3], self.sGrp, 14); k.S("s_lshl_b32", T[4], self.sRt, 10); k.S("s_add_u32", T[4], T[4], T[3]); k.S("s_add_u32", T[4], T[4], EXA)
                k.V("v_lshl_add_u32", tmp[4], self.lane, 4, T[4])
                k.S("s_lshl_b32", T[4], self.sRt, 12); k.S("s_add_u32", T[4], T[4], T[3]); k.S("s_add_u32", T[4], T[4], EXA)
                k.V("v_lshl_add_u32", tmp[5], self.lane, 4, T[4])
            it.append((40, addrs))
            for d in range(4): it.append((4, lambda d=d: k.ds_write("ds_write_b128", tmp[4], accK[4 * d:4 * d + 4], d * 4096)))
            return it
        def kv_publish():
            it = [(4, lambda sw=sw: k.ds_read("ds_read_b128", accV[4 * sw:4 * sw + 4], tmp[5], sw * 1024)) for sw in range(4)]
            for i in range(4): it.append((8, lambda i=i: (k.V("v_add_f32", accV[i], accV[i], accV[4 + i]), k.V("v_add_f32", accV[8 + i], accV[8 + i], accV[12 + i]))))
            for i in range(4): it.append((4, lambda i=i: k.V("v_add_f32", accV[i], accV[i], accV[8 + i])))
            it.append((4, lambda: k.gstore(accV[0:4], self.vST, self.sWS, 0, mod=" sc1", tok=('pst',))))
            it.append((0, lambda: self.stamp('pst')))
            return it
        now = self.now
        epi = kv_epilogue()
        nst = len(self.stats_part2())
        for n in range(50, 56): slots[n]['bud'] = 70
        def p49(): now(self.cs_pack(csK, 0) + self.stats_part1() + self.cs_pack(csV, 1))
        def p50():
            k.wait_lg_tok('st', 'cs'); k.barrier()
            fill.extend(epi[:2 + nst])
        self.run_slots(slots, pre_read, pre_mfma, {49: p49, 50: p50, 52: lambda: fill.extend(epi[4 + nst:5 + nst])}, fill, dq)
        fill.drain()
        self.stamp('p1end')
        now(epi[2 + nst:4 + nst] + epi[5 + nst:])
        self.bar_wait(*[('q', p) for p in range(7)], lg=True)()
        pub = kv_publish()
        now(pub[:4])
        k.S("s_cmp_eq_u32", self.sGrp, 1)
        k.branch("s_cbranch_scc1", "L_qB")
        st = self.save()
        now(pub[4:])
        k.vm[-1]['toks'] = {('fin',)}
        self.cnt_add(2)
        if c['ea'] == 1: self.cnt_add(0, wait=False)
        k.S("s_add_u32", T[4], self.sTag[0], 1); k.V("v_mov_b32", self.vFV[0], T[4])
        k.S("s_cmp_eq_u32", self.sIsRed, 1)
        k.branch("s_cbranch_scc1", "L_red")
        st2 = self.save()
        def pf():
            self.flag_hook(); k.V("v_mov_b32", self.vFA, OOB)
        self.p2a_preamble([], None, pf if c['qpfirst'] else None)
        self.stamp('tail')
        self.joinA.append(self.exit_state()); k.branch("s_branch", "L_p2a")
        self.restore(st2)
        k.label("L_red")
        self.reducer()
        self.restore(st)
        k.label("L_qB")
        if c['prio']: k.sraw(f"s_setprio {c['prio']}")
        accQ1 = accK
        slots = []
        for ps in range(2):
            for n in range(28):
                p, sp = divmod(n, 4)
                slots.append(dict(acc=(accQ, accQ1)[ps], wfirst=True, addr=(self.vTY, self.vTX)[ps][sp], off=self.QOFF[p], second=512, xi=n,
                                  cs=(csK, csQ)[ps], csfirst=n == 0, first=n == 0))
        vSQ = self.vWH
        def qaddr():
            k.S("s_lshl_b32", T[1], self.sI, 2); k.S("s_add_u32", col[0], T[1], self.sRt); k.S("s_sub_u32", col[1], head, 1)
            k.S("s_lshl_b32", T[2], col[0], 4); k.S("s_add_u32", T[2], T[2], col[1]); k.S("s_lshl_b32", T[2], T[2], 11); k.S("s_add_u32", T[2], T[2], QB)
            k.V("v_lshl_add_u32", vSQ, self.lane, 4, T[2])
        def qepi(acc, hh, tok):
            it = []
            for g4 in range(4):
                it += self.phi4([acc[4 * g4 + i] for i in range(4)], [self.cc] * 4, pk[2 * g4:2 * g4 + 2])
                if g4 % 2 == 1:
                    h = g4 // 2
                    it.append((4, lambda h=h: k.gstore(pk[4 * h:4 * h + 4], vSQ, self.sWS, 0, imm=2048 * hh + 1024 * h, mod=" sc1", tok=tok)))
            return it
        fill = Fill()
        fill.add(0, 1); fill.extend(pub[4:]); fill.add(4, lambda: self.cnt_add(2, wait=False)); fill.extend(self.tr_addrs(self.vTX, 0, XR, extra=56)); fill.add(40, qaddr)
        def pflag():
            self.flag_store(1, [('pst',)], ' sc1')
            self.flag_addr(FLQ, col[0], 4, col[1])
        def e0():
            self.stamp('p2end')
            fill.drain()
            fill.add(0, 2); fill.extend(self.cs_pack(csK, 0, dst=csV)); fill.extend(self.cs_apply(csV, 0, accQ, True, read=False)); fill.add(0, 2)
            fill.extend(qepi(accQ, 0, ('q0',)))
        self.run_slots(slots, {}, {}, {c['pflagn']: pflag, 27: e0}, fill, [])
        fill.drain(); self.stamp('p3end')
        self.cnt_add(0)
        now(self.cs_pack(csQ, 0, dst=csV)); now(self.cs_apply(csV, 0, accQ1, True, read=False))
        epi = qepi(accQ1, 1, ('fin',))
        now(epi[:len(epi) // 2 - 1])
        self.flag_store(1, [('q0',)])
        k.V("v_add_u32", self.vFA, 128, self.vFA)
        now(epi[len(epi) // 2 - 1:])
        k.S("s_cmp_eq_u32", self.sIsRed, 1)
        k.branch("s_cbranch_scc0", "L_qB2")
        st3 = self.save()
        self.flag_hook()
        k.branch("s_branch", "L_fin")
        self.restore(st3)
        k.label("L_qB2")
        if c['ea'] == 2 or c['nwo']: self.cnt_wait(256 if c['ea'] == 2 else 512, 0)
        for n in range(c['nwo'] if c['ea'] == 1 else 8): self.job_p2_b(n)()
        self.stamp('tail')
        self.joinB.append(self.exit_state()); k.branch("s_branch", "L_p2b")

    def reducer(self):
        k, T, tmp, lane, c = self.k, self.sT, self.tmp, self.lane, self.c
        vP, vPA, vD = v(44, 2), v(46), v(47)
        k.S("s_lshl_b32", T[1], self.sRho, 12); k.S("s_add_u32", T[1], T[1], FLP)
        k.V("v_lshl_add_u32", tmp[4], lane, 7, T[1]); k.V("v_mov_b32", tmp[5], OOB)
        k.V("v_cmp_gt_u32", VCC, 32, lane); k.V("v_cndmask_b32", vPA, tmp[5], tmp[4])
        k.S("s_lshr_b32", T[1], self.sRho, 1); k.S("s_lshl_b32", T[1], T[1], 16); k.S("s_and_b32", T[2], self.sRho, 1); k.S("s_lshl_b32", T[2], T[2], 11)
        k.S("s_add_u32", T[1], T[1], T[2]); k.S("s_lshl_b32", T[2], self.sRt, 8); k.S("s_add_u32", T[1], T[1], T[2]); k.S("s_add_u32", T[1], T[1], PB)
        vDA, vOA, f0, f1 = v(48), v(49), v(50), v(51)
        k.V("v_lshrrev_b32", tmp[4], 4, lane); k.V("v_and_b32", tmp[5], 15, lane)
        k.V("v_lshlrev_b32", tmp[4], 12, tmp[4]); k.V("v_lshl_add_u32", tmp[4], tmp[5], 4, tmp[4]); k.V("v_add_u32", vDA, T[1], tmp[4])
        k.S("s_bitcmp1_b32", self.sRt, 0); k.S("s_cselect_b32", T[3], 12, 16)
        k.V("v_cmp_gt_u32", VCC, T[3], tmp[5]); k.V("v_mov_b32", f0, 1.0); k.V("v_mov_b32", f1, self.sLn2)
        k.V("v_cndmask_b32", f0, f0, f1)
        k.S("s_lshr_b32", T[3], self.sRt, 1); k.S("s_and_b32", T[3], T[3], self.sRho); k.S("s_and_b32", T[3], T[3], 1); k.S("s_cmp_eq_u32", T[3], 1); k.S("s_cselect_b32", T[3], 0, 1.0)
        k.V("v_mul_f32", f1, T[3], f0)
        k.S("s_lshl_b32", T[1], self.sRho, 10); k.S("s_lshl_b32", T[2], self.sRt, 8); k.S("s_add_u32", T[1], T[1], T[2]); k.S("s_add_u32", T[1], T[1], KVB)
        k.V("v_lshl_add_u32", tmp[4], lane, 4, T[1]); k.V("v_mov_b32", tmp[5], OOB)
        k.V("v_cmp_gt_u32", VCC, 16, lane); k.V("v_cndmask_b32", vOA, tmp[5], tmp[4])
        self.flag_hook()
        self.poll_issue(vP, vPA)
        self.flag_addr(FLK, self.sRho, 2, self.sRt)
        self.poll_check(vP, vPA, vD, 1, (-1, 0))
        self.stamp('c1')
        X = [v(60 + 8 * m, 8) for m in range(4)]
        for m in range(4):
            k.S("s_mov_b32", T[2], 16384 * m)
            for qq in range(2): k.gload(X[m][4 * qq:4 * qq + 4], vDA, self.sWS, T[2], imm=1024 * qq, mod=" sc1")
        self.tree(X)
        A, B = X[1], X[0]
        for op in ("v_permlane16_swap_b32", "v_permlane32_swap_b32"):
            for i in range(8): k.V("v_mov_b32", A[i], B[i])
            for i in range(8): k.V(op, A[i], B[i])
            for i in range(8): k.V("v_add_f32", B[i], A[i], B[i])
        for i in range(8): k.V("v_mul_f32", B[i], f0 if i < 4 else f1, B[i])
        for i in range(4): k.V("v_cvt_pk_bf16_f32", A[i], B[2 * i], B[2 * i + 1])
        k.gstore(A[0:4], vOA, self.sWS, 0, mod=" sc1", tok=('kv',))
        self.flag_store(1, [('kv',)], ' sc1')
        self.stamp('c2')
        k.S("s_add_u32", T[0], self.sRho, self.sRt); k.S("s_cmp_eq_u32", T[0], 0)
        k.branch("s_cbranch_scc0", "L_fin")
        k.V("v_lshlrev_b32", tmp[4], 7, lane)
        for h in range(2):
            k.V("v_add_u32", vPA, FLK + 8192 * h, tmp[4])
            self.poll_issue(vP, vPA); self.poll_check(vP, vPA, vD, 1, (-1, -1))
        k.V("v_lshrrev_b32", tmp[4], 2, lane); k.V("v_lshlrev_b32", tmp[4], 13, tmp[4]); k.V("v_and_b32", tmp[5], 3, lane)
        k.V("v_lshl_add_u32", tmp[4], tmp[5], 8, tmp[4])
        for h in range(0 if c.get('local') else 2):
            k.V("v_add_u32", vPA, FLH + 128 + 1024 * h, tmp[4])
            self.poll_issue(vP, vPA); self.poll_check(vP, vPA, vD, 1, (-1, -1))
        k.V("v_mov_b32", tmp[4], 0); k.V("v_mov_b32", tmp[5], OOB); k.V("v_cmp_eq_u32", VCC, 0, lane); k.V("v_cndmask_b32", tmp[4], tmp[5], tmp[4])
        k.V("v_mov_b32", self.vFV[0], self.sTag[0])
        k.gstore(self.vFV, tmp[4], self.sWS, 0, imm=EPOCH, mod=" sc1")
        k.branch("s_branch", "L_fin")

    def t2_base(self, dst0, dst1, base):
        k, tmp = self.k, self.tmp
        return [(4, lambda: k.V("v_bfe_u32", tmp[4], self.lane, 2, 2)),
                (4, lambda: k.V("v_lshrrev_b32", tmp[5], 5, self.lane)),
                (4, lambda: k.V("v_lshl_add_u32", tmp[4], tmp[5], 2, tmp[4])),
                (4, lambda: k.V("v_lshl_add_u32", tmp[4], tmp[4], 7, base)),
                (4, lambda: k.V("v_add_u32", dst0, tmp[4], self.vColb)),
                (4, lambda: k.V("v_xor_b32", tmp[5], 64, self.vColb)),
                (4, lambda: k.V("v_add_u32", dst1, tmp[4], tmp[5]))]
    def job_p2_a(self, n):
        k = self.k
        def f():
            if n % 2 == 0: self.unit_w(n // 2)
            k.S("s_add_u32", M0, self.sMp[0], self.a_pos(n))
            b = 2 * (n % 2)
            if 'xW2' in self.c.get('exp', '') and n > 5: return
            k.dma(self.vP2d[b], self.sP2, self.sUW[0], 0, ('p2', n)); k.dma(self.vP2d[b + 1], self.sP2, self.sUW[0], 1024, ('p2', n))
        return f
    def job_p2_b(self, n):
        k, T = self.k, self.sT
        def f():
            k.S("s_mul_i32", T[1], self.sRt, 112 * 896); k.S("s_add_u32", T[1], T[1], (n // 2) * 28 * 896)
            k.S("s_add_u32", M0, self.sMp[0], n * 2048)
            b = 2 * (n % 2)
            k.dma(self.vP2d[b], self.sP2, T[1], 0, ('p2', n)); k.dma(self.vP2d[b + 1], self.sP2, T[1], 1024, ('p2', n))
        return f
    def act(self, n, rt): return a(8 * (n % 14) + 4 * rt, 4)
    def act_load(self, n):
        k = self.k
        if n % 2 == 0: self.unit_a(n // 2)
        x = self.c.get('exp', '')
        if 'actx' in x:
            for rt in range(2): k.gload(self.act(n, rt), self.vP2d[0], self.sX, self.sUW[1], imm=1024 * (n % 2) + 2048 * rt, mod=" sc1")
            return
        if 'nosc' in x:
            for rt in range(2): k.gload(self.act(n, rt), self.vAct[rt], self.sWS, self.sUW[1], imm=1024 * (n % 2))
            return
        for rt in range(2): k.gload(self.act(n, rt), self.vAct[rt], self.sWS, self.sUW[1], imm=1024 * (n % 2), mod=" sc1")
    def act_touch(self, G):
        k, T = self.k, self.sT
        if G < 3:
            k.S("s_lshr_b32", T[1], self.sC, 1); k.S("s_and_b32", T[2], T[1], 1); k.S("s_mul_i32", T[2], T[2], 14)
            k.S("s_and_b32", T[1], T[1], 2); k.S("s_add_u32", T[2], T[2], T[1]); k.S("s_and_b32", T[1], self.sC, 1); k.S("s_add_u32", T[2], T[2], T[1])
            k.S("s_add_u32", T[2], T[2], 4 * G)
        else:
            k.S("s_lshr_b32", T[1], self.sC, 1); k.S("s_and_b32", T[2], T[1], 1); k.S("s_mul_i32", T[2], T[2], 14)
            k.S("s_and_b32", T[1], self.sC, 1); k.S("s_add_u32", T[2], T[2], T[1]); k.S("s_add_u32", T[2], T[2], 12)
        k.S("s_lshl_b32", T[2], T[2], 10)
        k.gload(self.vDummy, self.vTch, self.sWS, T[2], mod=" sc1")
    def p2a_regs(self):
        self.vTch = v(100)
        self.vAct = [v(92), v(93)]; self.aP, self.aPA, self.aD = v(94, 2), v(96), v(97)
        self.vT2 = [v(98), v(99)]
    def p2a_preamble(self, epi, xbar, mid, first=0):
        k, T, tmp, lane, c = self.k, self.sT, self.tmp, self.lane, self.c
        self.p2a_regs()
        def addrs():
            k.V("v_and_b32", tmp[4], 1, lane); k.V("v_lshlrev_b32", tmp[4], 11, tmp[4])
            k.V("v_bfe_u32", tmp[5], lane, 1, 1); k.V("v_lshl_add_u32", tmp[4], tmp[5], 8, tmp[4])
            k.V("v_bfe_u32", tmp[5], lane, 2, 1); k.V("v_lshl_add_u32", tmp[4], tmp[5], 7, tmp[4])
            k.S("s_lshl_b32", T[1], self.sI2, 12); k.S("s_lshl_b32", T[2], self.sRt, 9); k.S("s_add_u32", T[1], T[1], T[2]); k.S("s_add_u32", T[1], T[1], FLH)
            k.V("v_add_u32", tmp[4], T[1], tmp[4]); k.V("v_mov_b32", tmp[5], OOB)
            k.V("v_cmp_gt_u32", VCC, 8, lane); k.V("v_cndmask_b32", self.aPA, tmp[5], tmp[4])
            k.S("s_mul_i32", T[1], self.sI2, 224 * 1024); k.S("s_mul_i32", T[2], self.sRt, 28 * 1024); k.S("s_add_u32", T[1], T[1], T[2]); k.S("s_add_u32", T[1], T[1], HB)
            k.V("v_lshl_add_u32", self.vAct[0], lane, 4, T[1]); k.V("v_add_u32", self.vAct[1], 112 * 1024, self.vAct[0])
            self.now(self.t2_base(self.vT2[0], self.vT2[1], self.sMp[0]))
        early = bool(epi) and c['earlypoll']
        if epi:
            addrs()
            if early: self.poll_issue(self.aP, self.aPA)
            if early and c['earlyact']:
                h = max(i for i, (_, f) in enumerate(epi[:60]) if True) if False else 43
                self.now(epi[:h]); self.poll_check(self.aP, self.aPA, self.aD, 1, 0xff); self.stamp('G0')
                for n in range(4): self.act_load(n)
                self.now(epi[h:])
            else: self.now(epi)
        if xbar: xbar()
        self.stamp('X')
        for n in range(first, max(first, c['prew'])): self.job_p2_a(n)()
        if not epi: addrs()
        if mid: mid()
        if not early: self.poll_issue(self.aP, self.aPA)
        for n in range(max(first, c['prew']), 6): self.job_p2_a(n)()
        if not (early and c['earlyact']):
            self.poll_check(self.aP, self.aPA, self.aD, 1, 0xff)
            self.stamp('G0')
            for n in range(4): self.act_load(n)
        self.pre_acts = 4
    def final_write_addrs(self, regs, base):
        k, tmp = self.k, self.tmp
        k.V("v_and_b32", tmp[4], 31, self.lane); k.V("v_lshl_add_u32", tmp[4], tmp[4], 8, base)
        k.V("v_lshrrev_b32", tmp[5], 5, self.lane); k.V("v_and_b32", tmp[6], 7, self.lane); k.V("v_xor_b32", tmp[5], tmp[5], tmp[6])
        for q in range(4):
            k.V("v_xor_b32", tmp[6], 2 * q, tmp[5]); k.V("v_lshl_add_u32", regs[q], tmp[6], 4, tmp[4])
    def x_res_load(self):
        k, T, tmp = self.k, self.sT, self.tmp
        self.vXO, self.xres = v(4), v(8, 4)
        k.S("s_lshl_b32", T[1], self.sI2, 3); k.S("s_add_u32", T[1], T[1], self.sWv); k.S("s_mul_i32", T[1], T[1], 8 * 896)
        k.S("s_lshl_b32", T[2], self.sC, 7); k.S("s_add_u32", T[1], T[1], T[2])
        k.V("v_lshrrev_b32", tmp[4], 3, self.lane); k.V("v_and_b32", tmp[5], 7, self.lane); k.V("v_lshlrev_b32", tmp[5], 4, tmp[5])
        k.S("s_movk_i32", T[2], 896); k.V("v_mad_u32_u24", tmp[4], tmp[4], T[2], tmp[5]); k.V("v_add_u32", self.vXO, T[1], tmp[4])
        k.gload(self.xres, self.vXO, self.sX, 0)

    def phase2a(self):
        k, T, c = self.k, self.sT, self.c
        k.label("L_p2a")
        self.merge(self.joinA)
        if c.get('prio0'): k.sraw("s_setprio 0")
        self.p2a_regs()
        look, wl = c['look'], c['wl']
        accF = [[v(28, 16), v(44, 16)], [v(60, 16), v(76, 16)]]
        def wf(n, ct): return a(112 + 4 * ((2 * n + ct) % 6), 4)
        def wread(n):
            k.wait_tok(('p2', n))
            off = self.a_pos(n)
            for ct in range(2):
                k.ds_read("ds_read_b64_tr_b16", wf(n, ct)[0:2], self.vT2[ct], off)
                k.ds_read("ds_read_b64_tr_b16", wf(n, ct)[2:4], self.vT2[ct], off + 1024)
        wd = c['wd']
        for n in range(wd): wread(n)
        if c['hookn'] < 0: self.flag_hook(); self.stamp('hook')
        nw, na = 6, self.pre_acts
        checks = {8: (2, 0xff), 16: (4, 0xf0), 24: (5, 0xf0)} if c['ea'] == 2 else {8: (2, 0xff), 16: (3, 0xff), 24: (4, 0xf0)}; polled = set()
        W = [[v(108 + i) for i in range(4)], [v(112 + i) for i in range(4)]]
        NK = 24 if c['tilemajor'] else 28
        for n in range(NK):
            k.wait_regs(wf(n, 0), wf(n, 1), self.act(n, 0), self.act(n, 1))
            i = 0
            for rt in range(2):
                for ct in range(2):
                    k.mfma(True, accF[ct][rt], wf(n, ct), self.act(n, rt), 0 if n == 0 else accF[ct][rt])
                    if i == 0 and n + wd < NK: wread(n + wd)
                    if i == 1:
                        cnt = 0
                        while na < 28 and na <= n + look and cnt < (2 if (n % 2 == 0 or c['ramp'] == 2) else 1):
                            if na in checks:
                                self.stamp(f'b{na // 8}')
                                self.poll_check(self.aP, self.aPA, self.aD, *checks[na])
                                self.stamp(f'c{na // 8}')
                                if c['touch'] & (1 << (na // 8)): self.act_touch(na // 8)
                            self.act_load(na); na += 1; cnt += 1
                        if (na + 2 in checks or na + 1 in checks) and na not in polled and na - 1 not in polled: self.poll_issue(self.aP, self.aPA); polled.add(na)
                    if i == 3:
                        cnt = 0
                        while nw < 28 and nw <= n + wl and nw - 6 <= n and cnt < (2 if (n % 2 == 1 or c['ramp'] == 2) else 1):
                            self.job_p2_a(nw)(); nw += 1; cnt += 1
                    i += 1
            if n == c['hookn']:
                self.flag_hook(); self.stamp('hook')
                if c['J']: k.barrier(); self.stamp('J')
            self.stamp(f'n{n}')
            if n == 18:
                self.final_write_addrs(W[0], self.sMp[0]); k.S("s_sub_u32", T[1], self.sMp[1], self.sMp[0])
                for q in range(4): k.V("v_add_u32", W[1][q], T[1], W[0][q])
            if n == 20: self.final_read_addrs(WB)
            if n == 22: self.x_res_load(); self.cnt_wait(512, 2)
        assert na == 28 and nw == 28
        def writes(ct, rt):
            return [(lambda q=q: k.ds_write("ds_write_b128", W[rt][q], accF[ct][rt][4 * q:4 * q + 4], 128 * ct)) for q in range(4)]
        if c['tilemajor']:
            fr = lambda i: a(112 + 4 * (i % 6), 4)
            def rd(i):
                ct, n = divmod(i, 4); n += 24
                k.wait_tok(('p2', n))
                off = self.a_pos(n)
                k.ds_read("ds_read_b64_tr_b16", fr(i)[0:2], self.vT2[ct], off)
                k.ds_read("ds_read_b64_tr_b16", fr(i)[2:4], self.vT2[ct], off + 1024)
            for i in range(6): rd(i)
            pend = []
            for ct in range(2):
                for rt in range(2):
                    for j in range(4):
                        k.mfma(True, accF[ct][rt], fr(4 * ct + j), self.act(24 + j, rt), accF[ct][rt])
                        if ct == 0 and rt == 1 and j < 2: rd(6 + j)
                        if pend and j >= 1: pend.pop(0)()
                        if pend and j == 3: pend.pop(0)()
                    pend = writes(ct, rt)
            self.stamp('mainend')
            for f in pend: f()
        else:
            self.stamp('mainend')
            for rt in range(2):
                for ct in range(2):
                    for f in writes(ct, rt): f()
        f_ = self.vFin
        k.S("s_add_u32", T[1], self.sMp[0], 12288); k.V("v_lshl_add_u32", f_[2], self.lane, 4, T[1])
        k.wait_lg_all()
        k.barrier()
        self.stamp('Z')
        S = v(92, 8)
        for h in range(2): k.ds_read("ds_read_b128", S[4 * h:4 * h + 4], f_[2], 1024 * h)
        self.final_tail(S, 14336)
        k.branch("s_branch", "L_fin")
    def flag_hook(self):
        k = self.k
        self.stamp('h0')
        k.wait_tok(('fin',))
        self.stamp('h1')
        k.gstore(self.vFV, self.vFA, self.sWS, 0, mod=self.c.get('fmod', " sc1"), tok=('flag',))

    def phase2b(self):
        k, T, tmp, lane, c = self.k, self.sT, self.tmp, self.lane, self.c
        k.label("L_p2b")
        self.merge(self.joinB)
        vPQ, vKV, vP, vPA, vD, vPK = [v(10), v(11)], v(15), v(16, 2), v(18), v(19), v(110)
        vT2 = [v(20), v(23)]
        rc, rc2, den = v(12), v(13), v(14)
        kv = lambda hh, s_: v(24 + 8 * hh + 4 * s_, 4)
        pq = lambda hh, rt, s_: a(64 + 16 * hh + 8 * rt + 4 * s_, 4)
        N = [v(56, 16), v(72, 16)]; O = [v(88, 8), v(96, 8)]
        accS = [[a(0, 16), a(16, 16)], [a(32, 16), a(48, 16)]]
        k.V("v_and_b32", tmp[4], 1, lane); k.V("v_lshlrev_b32", tmp[4], 11, tmp[4])
        k.V("v_bfe_u32", tmp[5], lane, 1, 2); k.V("v_lshl_add_u32", tmp[4], tmp[5], 7, tmp[4])
        k.S("s_lshl_b32", T[1], self.sI2, 12); k.S("s_lshl_b32", T[2], self.sRt, 9); k.S("s_add_u32", T[1], T[1], T[2]); k.S("s_add_u32", T[1], T[1], FLQ)
        k.V("v_add_u32", tmp[4], T[1], tmp[4])
        k.V("v_mov_b32", tmp[5], OOB); k.V("v_cmp_gt_u32", VCC, 8, lane); k.V("v_cndmask_b32", vPA, tmp[5], tmp[4])
        k.S("s_lshl_b32", T[1], self.sRt, 12); k.S("s_add_u32", T[1], T[1], FLK)
        k.V("v_lshl_add_u32", tmp[4], lane, 7, T[1]); k.V("v_cmp_gt_u32", VCC, 32, lane); k.V("v_cndmask_b32", vPK, tmp[5], tmp[4])
        k.S("s_lshl_b32", T[1], self.sI2, 16); k.S("s_lshl_b32", T[2], self.sRt, 13); k.S("s_add_u32", T[1], T[1], T[2]); k.S("s_add_u32", T[1], T[1], QB)
        k.V("v_lshl_add_u32", vPQ[0], lane, 4, T[1]); k.V("v_add_u32", vPQ[1], 32768, vPQ[0])
        k.S("s_add_u32", T[1], T[2], KVB); k.V("v_lshl_add_u32", vKV, lane, 4, T[1])
        self.flag_hook(); self.stamp('hook')
        k.sraw(f"s_setprio {c['prioL']}")
        def wo_rest():
            if c['ea'] != 1: return
            if not c['nwo']: self.cnt_wait(512, 0)
            for n in range(c['nwo'], 8): self.job_p2_b(n)()
        if not c['wolate']: wo_rest()
        vP2 = v(112, 2)
        def pq_loads():
            k.S("s_movk_i32", T[0], 4096)
            for hh in range(4):
                for rt in range(2):
                    for s_ in range(2):
                        if 'nopq' not in c.get('exp', ''): k.gload(pq(hh, rt, s_), vPQ[rt], self.sWS, T[0] if hh >= 2 else 0, imm=2048 * (hh % 2) + 1024 * s_, mod=" sc1")
        def kv_loads():
            k.S("s_movk_i32", T[0], 4096)
            for hh in range(4):
                for s_ in range(2):
                    k.gload(kv(hh, s_), vKV, self.sWS, T[0] if hh >= 2 else 0, imm=2048 * (hh % 2) + 1024 * s_, mod=" sc1")
        first, second = ((vPK, kv_loads, (-1, 0)), (vPA, pq_loads, 0xff)) if c['kvfirst'] else ((vPA, pq_loads, 0xff), (vPK, kv_loads, (-1, 0)))
        self.poll_issue(vP, first[0])
        if c['wolate'] == 1: wo_rest()
        self.now(self.t2_base(vT2[0], vT2[1], self.sMp[0]))
        self.poll_check(vP, first[0], vD, 1, first[2])
        self.stamp('c1')
        self.poll_issue(vP2, second[0])
        first[1]()
        self.poll_check(vP2, second[0], vD, 1, second[2])
        self.stamp('c2')
        second[1]()
        if c['wolate'] == 2: wo_rest()
        self.x_res_load()
        k.sraw(f"s_setprio {c['prioM']}")
        Wf = [v(104, 4), v(112, 4), v(116, 4), v(4 + 0, 4)]
        Wf = [v(104, 4), v(112, 4), v(116, 4), v(16, 4)]
        def wread(hh, f):
            s_, ct = divmod(f, 2); n = 2 * hh + s_
            k.wait_tok(('p2', n))
            k.ds_read("ds_read_b64_tr_b16", Wf[f][0:2], vT2[ct], n * 2048)
            k.ds_read("ds_read_b64_tr_b16", Wf[f][2:4], vT2[ct], n * 2048 + 1024)
        def num(u):
            hh, rt = divmod(u, 2)
            k.mfma(True, N[u % 2], kv(hh, 0), pq(hh, rt, 0), 0)
            k.mfma(True, N[u % 2], kv(hh, 1), pq(hh, rt, 1), N[u % 2])
        def val(u):
            n_, o_ = N[u % 2], O[u % 2]
            it = [(4, lambda: k.V("v_mov_b32", den, n_[12])),
                  (4, lambda: k.V("v_permlane32_swap_b32", n_[12], den)),
                  (4, lambda: k.V("v_add_f32", den, 1e-6, den)),
                  (8, lambda: k.V("v_rcp_f32", rc, den)),
                  (4, lambda: k.V("v_cndmask_b32_e64", rc2, rc, 0, self.sHi))]
            for i in range(8):
                it.append((8, lambda i=i: [k.V("v_mul_f32", n_[j], rc if j < 12 else rc2, n_[j]) for j in (2 * i, 2 * i + 1)]))
                it.append((4, lambda i=i: k.V("v_cvt_pk_bf16_f32", o_[i], n_[2 * i], n_[2 * i + 1])))
            return it
        for f in range(4): wread(0, f)
        num(0); num(1)
        self.stamp('c3')
        for _, f in val(0): f()
        for u in range(8):
            hh, rt = divmod(u, 2)
            fill = Fill()
            if u + 1 < 8: fill.extend(val(u + 1))
            for f in range(4):
                s_, ct = divmod(f, 2)
                k.mfma(True, accS[ct][rt], Wf[f], O[u % 2][4 * s_:4 * s_ + 4], 0 if (hh == 0 and s_ == 0) else accS[ct][rt])
                if rt == 1 and hh < 3: wread(hh + 1, f)
                if f == 0 and u + 2 < 8: num(u + 2)
                fill.run(30)
            fill.drain()
        self.stamp('mainend')
        W = [v(24), v(25), v(26), v(27)]
        self.final_write_addrs(W, self.sMp[0])
        for rt in range(2):
            for ct in range(2):
                for q in range(4): k.ds_write("ds_write_b128", W[q], accS[ct][rt][4 * q:4 * q + 4], 8192 * rt + 128 * ct)
        self.final_read_addrs(XR)
        f_ = self.vFin
        vS = [v(24), v(25)]
        for h in range(2):
            k.V("v_mov_b32", vS[h], f_[h]); k.V("v_add_u32", f_[h], W0R, f_[h])
        k.S("s_mul_i32", T[1], self.sRt, 14336); k.S("s_add_u32", T[1], T[1], WB + 12288); k.V("v_lshl_add_u32", f_[2], lane, 4, T[1])
        self.cnt_add(1); self.cnt_wait(256, 1)
        X = [[v(28 + 32 * g + 8 * i, 8) for i in range(4)] for g in range(2)]
        for g in range(2):
            for src in range(4):
                for h in range(2): k.ds_read("ds_read_b128", X[g][src][4 * h:4 * h + 4], vS[h], src * 16384 + 8192 * g)
        self.tree(X[0])
        for h in range(2): k.ds_write("ds_write_b128", f_[2], X[0][0][4 * h:4 * h + 4], 1024 * h)
        self.tree(X[1])
        k.wait_lg_all()
        k.barrier()
        self.stamp('Z')
        self.final_tail(X[1][0], 8192)

    def tree(self, X):
        k = self.k
        for i in range(8): k.V("v_add_f32", X[0][i], X[0][i], X[1][i])
        for i in range(8): k.V("v_add_f32", X[2][i], X[2][i], X[3][i])
        for i in range(8): k.V("v_add_f32", X[0][i], X[0][i], X[2][i])
    def final_read_addrs(self, base):
        k, T, tmp, lane = self.k, self.sT, self.tmp, self.lane
        self.vFin = [v(20), v(21), v(22)]
        k.V("v_lshrrev_b32", tmp[4], 3, lane); k.V("v_and_b32", tmp[5], 7, lane); k.V("v_lshlrev_b32", tmp[5], 1, tmp[5])
        k.V("v_xor_b32", tmp[5], tmp[5], tmp[4]); k.S("s_lshl_b32", T[1], self.sRt, 11); k.S("s_add_u32", T[1], T[1], base); k.V("v_lshl_add_u32", tmp[4], tmp[4], 8, T[1])
        k.V("v_lshl_add_u32", self.vFin[0], tmp[5], 4, tmp[4]); k.V("v_xor_b32", tmp[5], 1, tmp[5]); k.V("v_lshl_add_u32", self.vFin[1], tmp[5], 4, tmp[4])
    def final_tail(self, S, stride):
        k = self.k
        vF = self.vFin
        F = [v(28 + 8 * i, 8) for i in range(4)]
        for src in range(4):
            for h in range(2): k.ds_read("ds_read_b128", F[src][4 * h:4 * h + 4], vF[h], src * stride)
        xu = v(100, 8)
        for i in range(4):
            k.V("v_lshlrev_b32", xu[2 * i], 16, self.xres[i]); k.V("v_and_b32", xu[2 * i + 1], 0xffff0000, self.xres[i])
        self.tree(F)
        t = F[1]
        for i in range(8): k.V("v_mul_f32", t[i], -LOG2E, F[0][i])
        for i in range(8): k.V("v_exp_f32", t[i], t[i])
        for i in range(8): k.V("v_mul_f32", F[0][i], S[i], F[0][i])
        for i in range(8): k.V("v_add_f32", t[i], 1.0, t[i])
        for i in range(8): k.V("v_rcp_f32", t[i], t[i])
        for i in range(8): k.V("v_fmac_f32", xu[i], F[0][i], t[i])
        for i in range(4): k.V("v_cvt_pk_bf16_f32", self.xres[i], xu[2 * i], xu[2 * i + 1])
        k.gstore(self.xres, self.vXO, self.sOUT, 0, mod=self.c.get('outmod', ''))

    def build(self):
        k = self.k
        self.joinF = []
        self.prologue()
        if self.c.get('p2only'):
            self.prologue2(); self.stamp('start')
            k.S("s_cmp_eq_u32", self.sIsRed, 1); k.branch("s_cbranch_scc1", "L_fin")
            self.p2_bases()
            k.barrier()
            k.S("s_cmp_eq_u32", self.sGrp, 1); k.branch("s_cbranch_scc1", "L_qB")
            st = self.save()
            k.V("v_mov_b32", self.vFA, OOB)
            self.p2a_preamble([], None)
            self.stamp('tail')
            self.joinA.append(self.exit_state()); k.branch("s_branch", "L_p2a")
            self.restore(st)
            k.label("L_qB")
            k.V("v_mov_b32", self.vFA, OOB)
            self.job_p2_b(3)()
            self.stamp('tail')
            self.joinB.append(self.exit_state()); k.branch("s_branch", "L_p2b")
        else:
            self.prologue2(); self.stamp('start')
            k.S("s_cmp_eq_u32", self.sIsH, 1)
            k.branch("s_cbranch_scc0", "L_roleQ")
            st = self.save()
            self.role_h()
            self.restore(st)
            self.role_qkv()
        self.phase2a()
        self.phase2b()
        k.label("L_fin")
        if not self.c.get('nofinalwait'): k.raw("  s_waitcnt vmcnt(0)")
        self.stamp_flush()
        k.label("L_end")
        k.raw("  s_endpgm")
        head = open(__file__.rsplit('/', 1)[0] + "/header.txt").read() if '/' in __file__ else open("header.txt").read()
        head = head.replace("@LDS@", str(LDS_BYTES))
        tail = f""".section .rodata,"a"
.p2align 6
.amdhsa_kernel {NAME}_kernel
  .amdhsa_next_free_vgpr {NV + NA}
  .amdhsa_next_free_sgpr 102
  .amdhsa_accum_offset {NV}
  .amdhsa_group_segment_fixed_size 0
  .amdhsa_kernarg_size 72
  .amdhsa_user_sgpr_count 2
  .amdhsa_user_sgpr_kernarg_segment_ptr 1
  .amdhsa_system_sgpr_workgroup_id_x 1
  .amdhsa_float_denorm_mode_32 3
.end_amdhsa_kernel
"""
        if self.c['stamps']: head += '; stamps: ' + ','.join(self.c['stamps']) + '\n'
        return head + k.text() + tail

if __name__ == "__main__":
    import json
    out = sys.argv[1]
    cfg = json.loads(sys.argv[2]) if len(sys.argv) > 2 else {}
    g = Gen(**cfg)
    txt = g.build()
    open(out, "w").write(txt)
    n = sum(1 for l in g.k.out if l.startswith("  ") and not l.startswith("  ;"))
    print(f"{out}: {n} instructions, {g.k.nops} nop states, {g.k.waits} auto waits", file=sys.stderr)
    if cfg.get('verbose'):
        for l in g.k.log: print(l, file=sys.stderr)
```

```python
import sys, math
from asmlib import *

NAME = "recurrent_scan__linear_attn_block__dense_activation_silu__prompt"
NV, NA = 120, 136
EPOCH, FLH, FLQ, FLP, FLK = 0, 0x10000, 0x30000, 0x50000, 0x70000
KVB, PB, QB, HB, WSEND = 0x78000, 0x80000, 0x200000, 0x400000, 0xB00000
STATS = 0x180000
STAMPS = 0xC00000
XR, W0R, WB, MISC = 0, 65536, 98304, 155648
KVR, EXA = 90112, 65536
CSA, STA, R2A = MISC, MISC + 4096, MISC + 3072
CNT = MISC + 2048
LDS_BYTES = 163840
OOB = 0x40000000
LOG2E = 1.4426950408889634
LN2 = 0.6931471805599453
ONES = 0x3f803f80

DEF = dict(LA=3, bud=26, stamps=False, spin=200000, warm=True, codepf=True, look=4, stop=None, sleep=4, rot=2, prio=1, hookn=-1, wl=6, deep=1, l2pf=0, xmap=1, redoff=4, k1=1, pflagn=20, qpf=0, touch=0, wd=1, ramp=2, J=0, qfirst=1, hfirst=1, kvfirst=0, prioL=1, prioM=0, hookfirst=0, budq=56, xbar=79, tilemajor=1, f1n=15, xn=7, f2n=3, dly=3, fq=10, wo0=5, prew=2, ea=1, f1h=70, preh=2, nwo=4, qpfirst=1, shw=6, shw0=62, shwd=3, earlypoll=1, earlyact=1, wod=4, wolate=1, wo28=1, budE=26, f2s=0, midearly=1, s1=1, s1f=17, s1c=22, ring=6, rpf=0, qsched=(33, 35, 38, 40, 46, 48, 52), w1sched=(17, 18, 19, 21, 22, 23, 25), w2sched=(26, 27, 29, 31, 33, 35, 37), wh0=40)

class Gen:
    def __init__(self, **cfg):
        self.c = dict(DEF); self.c.update(cfg)
        self.k = K()
        self.sa = Alloc('s', 52, 100)
        self.joinA, self.joinB = [], []
        self.lane = v(0); self.vFA = v(1); self.vFV = v(2, 2); self.vP2d = [v(4 + i) for i in range(4)]
        self.vRowp, self.vColb, self.vST, self.vWD = v(8), v(9), v(10), v(11)
        self.cc, self.irs, self.sum, self.sq, self.vCSW, self.vCSR = v(15), v(16), v(17), v(18), v(19), v(20)
        self.vStampA, self.vStampD, self.vWH = v(21), v(22), v(23)
        self.IND, self.mneg, self.et, self.xt = v(24, 4), v(28, 4), v(32, 4), v(36, 8)
        self.sp = v(34, 2); self.eo = self.xt
        self.vTX = [v(44 + i) for i in range(4)]; self.vXR = [v(48 + i) for i in range(4)]
        self.vXT = [v(52), v(53)]; self.vXD = [v(54), v(55)]; self.vTY = [v(56 + i) for i in range(4)]
        self.blk = [v(60, 16), v(76, 16), v(92, 16)]
        self.cs = [v(108, 4), v(112, 4), v(116, 4)]
        self.tmp = [v(92), v(93), v(94), v(95), v(12), v(13), v(14), v(96)]
        self.vDummy, self.vDummy2, self.vWH2 = v(21), v(22), v(116)
        self.vPFa = v(116)

    STAMP_PAIRS = [4, 6, 8, 10, 12, 14, 16, 18, 44, 46, 20, 100]
    def stamp(self, name):
        jit = self.c.get('jitter')
        if jit and name in jit[1:]:
            k = self.k; lab = k.newlabel("Ljit"); self.njit = getattr(self, 'njit', 0) + 1
            k.raw(f"  s_lshl_b32 s44, s2, 3\n  s_add_u32 s44, s44, {self.sWv}\n  s_add_u32 s44, s44, {jit[0] * 7919 + self.njit * 104729}\n  s_mul_i32 s44, s44, 0x9e3779b1\n  s_lshr_b32 s44, s44, 27")
            k.raw(f"{lab}:\n  s_cmp_eq_u32 s44, 0\n  s_cbranch_scc1 {lab}d\n  s_sleep 4\n  s_sub_u32 s44, s44, 1\n  s_branch {lab}\n{lab}d:")
        pr = self.c.get('probe')
        if pr and name == pr[0]: self.k.raw("  s_memrealtime s[44:45]")
        if not self.c['stamps']: return
        names = self.c['stamps']
        if name not in names: return
        for idx in [i for i, x in enumerate(names) if x == name]: self._stamp(idx)
    def _stamp(self, idx):
        if idx == 0: self.k.raw(f"  s_memrealtime s[{self.STAMP_PAIRS[10]}:{self.STAMP_PAIRS[10] + 1}]")
        op = "s_memrealtime" if (self.c.get('rt') and idx % 2 == 0 and idx > 0) else "s_memtime"
        self.k.raw(f"  {op} s[{self.STAMP_PAIRS[idx]}:{self.STAMP_PAIRS[idx] + 1}]")
    def stamp_flush(self):
        if not self.c['stamps']: return
        k, T, P = self.k, self.sT, self.STAMP_PAIRS
        k.raw(f"  s_memtime s[{P[9]}:{P[9] + 1}]")
        k.raw(f"  s_memrealtime s[{P[11]}:{P[11] + 1}]")
        k.raw("  s_waitcnt lgkmcnt(0)")
        k.raw("  s_mov_b32 s38, 0xd00000")
        k.raw(f"  s_lshl_b32 {T[0]}, s2, 3\n  s_add_u32 {T[0]}, {T[0]}, {self.sWv}\n  s_lshl_b32 {T[0]}, {T[0]}, 7\n  s_add_u32 {T[0]}, {T[0]}, {STAMPS}")
        k.raw(f"  v_mov_b32 v12, 0x40000000\n  v_mov_b32 v13, 0\n  v_cmp_eq_u32 vcc, 0, v0\n  s_nop 1\n  v_cndmask_b32 v12, v12, v13, vcc")
        for i, p in enumerate(P):
            k.raw(f"  v_mov_b32 v14, s{p}\n  buffer_store_dword v14, v12, s[36:39], {T[0]} offen offset:{4 * i}\n  s_nop 1")
        if self.c.get('dbgwg') is not None:
            skip = k.newlabel("Ldbg")
            k.raw(f"  s_lshl_b32 {T[1]}, s2, 3\n  s_add_u32 {T[1]}, {T[1]}, {self.sWv}\n  s_cmp_eq_u32 {T[1]}, {self.c['dbgwg']}\n  s_cbranch_scc0 {skip}")
            k.raw("  s_load_dwordx2 s[40:41], s[0:1], 56\n  s_waitcnt lgkmcnt(0)\n  s_mov_b32 s42, 256\n  s_mov_b32 s43, 0x20000")
            k.raw(f"  s_sub_u32 {T[1]}, s{P[11]}, s{P[10]}\n  v_mov_b32 v14, {T[1]}\n  buffer_store_dword v14, v12, s[40:43], 0 offen\n  s_nop 1")
            for i in range(1, 10):
                k.raw(f"  s_sub_u32 {T[1]}, s{P[i]}, s{P[0]}\n  s_cmp_eq_u32 s{P[i]}, 0\n  s_cselect_b32 {T[1]}, 0, {T[1]}\n  v_mov_b32 v14, {T[1]}\n  buffer_store_dword v14, v12, s[40:43], 0 offen offset:{4 * i}\n  s_nop 1")
            k.label(skip)

    def flag_store(self, val, toks, mod=None):
        k = self.k
        self.stamp(f'f{val}a')
        k.wait_tok(*toks)
        self.stamp(f'f{val}b')
        k.S("s_add_u32", self.sT[4], self.sTag[0], val)
        k.V("v_mov_b32", self.vFV[0], self.sT[4])
        k.gstore(self.vFV, self.vFA, self.sWS, 0, mod=mod or self.c.get('fmod', " sc1"), tok=('flag',))

    def poll_issue(self, vP, vPA):
        self.k.gload(vP, vPA, self.sWS, 0, mod=" sc1")

    def poll_check(self, vP, vPA, vD, need, mask):
        k = self.k
        top, done = k.newlabel("Lspin"), k.newlabel("Lok")
        k.wait_regs(vP)
        k.label(top)
        k.V("v_subrev_u32", vD, self.sTag[0], vP[0])
        k.V("v_cmp_eq_u32", VCC, self.sTag[1], vP[1])
        k.V("v_subrev_u32", vD, need, vD)
        k.V("v_cmp_ge_u32_e64", self.sM0, 15 - need, vD)
        k.S("s_and_b64", self.sM0, self.sM0, VCC)
        k.S("s_mov_b64", self.sM1, mask) if not isinstance(mask, tuple) else (k.S("s_mov_b32", self.sM1[0], mask[0]), k.S("s_mov_b32", self.sM1[1], mask[1]))
        k.S("s_and_b64", self.sM0, self.sM0, self.sM1)
        k.S("s_cmp_eq_u64", self.sM0, self.sM1)
        k.branch("s_cbranch_scc1", done)
        k.S("s_sub_u32", self.sSpin, self.sSpin, 1)
        k.branch("s_cbranch_scc1", done + "x")
        if self.c['sleep']: k.raw(f"  s_sleep {self.c['sleep']}")
        k.raw(f"  buffer_load_dwordx2 {vP}, {vPA}, {self.sWS}, 0 offen sc1")
        k.raw("  s_waitcnt vmcnt(0)")
        k.raw(f"  s_branch {top}")
        k.label(done + "x")
        k.raw(f"  s_mov_b32 {self.sSpin}, 0")
        k.label(done)

    def prologue(self):
        k, sa, c = self.k, self.sa, self.c
        self.sX, self.sW, self.sP2, self.sWS, self.sOUT, self.sDBG, self.sTMP = (s(n, 4) for n in (24, 28, 32, 36, 40, 44, 48))
        k.S("s_cmp_ge_u32", s(2), 256)
        k.branch("s_cbranch_scc1", "L_end")
        if c['stamps'] and 'early' in c['stamps']: k.raw("  s_memtime s[100:101]")
        if c.get('probe'): k.raw("  s_memrealtime s[100:101]")
        k.raw("  s_load_dwordx4 s[4:7], s[0:1], 0")
        k.raw("  s_load_dwordx2 s[8:9], s[0:1], 16")
        k.raw("  s_load_dwordx4 s[12:15], s[0:1], 32")
        k.raw("  s_load_dwordx4 s[16:19], s[0:1], 48")
        k.raw("  s_load_dwordx2 s[20:21], s[0:1], 64")
        g = sa.get
        self.sTag = g(2); self.sM0 = g(2); self.sM1 = g(2); self.sPad = g(2); self.sHi = g(2)
        self.sT = [g() for _ in range(6)]
        (self.sWv, self.sRt, self.sGrp, self.sI, self.sIdx, self.sIsH, self.sIsRed, self.sRho, self.sI2, self.sC,
         self.sRot2, self.sSpin, self.sXb, self.sMx, self.sMw, self.sRS) = [g() for _ in range(16)]
        self.sAs = [g() for _ in range(7)]
        self.sCol = [g() for _ in range(4)]
        self.sMp = [g() for _ in range(2)]
        self.sUW = [g() for _ in range(3)]
        T = self.sT
        lane, tmp = self.lane, self.tmp
        if c['codepf']:
            k.comment("pull this kernel's code into L2: 1/32 of its lines per workgroup")
            k.raw("  s_getpc_b64 s[48:49]")
            k.label("L_pc")
            k.S("s_and_b32", s(49), s(49), 0xffff)
            k.raw("  s_mov_b32 s50, L_end-L_pc")
            k.S("s_mov_b32", s(51), 0x20000)
            k.S("s_lshr_b32", T[0], s(2), 3)
            k.S("s_lshl_b32", T[0], T[0], 7)
            k.V("v_lshlrev_b32", tmp[0], 12, v(0))
            k.V("v_cmp_gt_u32", VCC, 16, v(0))
            k.V("v_mov_b32", tmp[1], OOB)
            k.V("v_cndmask_b32", tmp[0], tmp[1], tmp[0])
            k.gload(self.vDummy, tmp[0], self.sTMP, T[0])
        k.V("v_lshrrev_b32", tmp[0], 6, v(0))
        k.V("v_and_b32", lane, 63, v(0))
        k.V("v_readfirstlane_b32", self.sWv, tmp[0])
        xcd, n, q, sub = T[0], T[1], T[2], T[3]
        k.S("s_and_b32", xcd, s(2), 7)
        k.S("s_lshr_b32", n, s(2), 3)
        k.S("s_lshr_b32", q, xcd, 1)
        k.S("s_lshr_b32", sub, n, 3)
        k.S("s_and_b32", T[4], xcd, 1)
        k.S("s_lshl_b32", T[4], T[4], 3)
        k.S("s_and_b32", T[5], n, 7)
        k.S("s_add_u32", self.sI, T[4], T[5])
        k.S("s_lshr_b32", self.sIsH, sub, 1)
        k.S("s_and_b32", T[4], sub, 1)
        k.S("s_lshl_b32", self.sIdx, q, 1)
        k.S("s_add_u32", self.sIdx, self.sIdx, T[4])
        if c.get('local'):
            k.S("s_lshl_b32", self.sI, xcd, 1); k.S("s_and_b32", T[4], n, 1); k.S("s_add_u32", self.sI, self.sI, T[4])
            k.S("s_lshr_b32", self.sIdx, n, 1); k.S("s_and_b32", self.sIdx, self.sIdx, 7)
            k.S("s_lshr_b32", self.sIsH, n, 4)
            k.S("s_lshr_b32", T[5], n, 1); k.S("s_xor_b32", T[5], T[5], n)
        k.S("s_and_b32", self.sRt, self.sWv, 3)
        k.S("s_lshr_b32", self.sGrp, self.sWv, 2)
        if c['rot'] == 7:
            k.S("s_lshl_b32", T[4], sub, 1)
            k.S("s_add_u32", T[4], T[4], T[5])
            k.S("s_cmp_ge_u32", T[4], 7); k.S("s_cselect_b32", T[5], 7, 0); k.S("s_sub_u32", T[4], T[4], T[5])
            k.S("s_cmp_ge_u32", T[4], 7); k.S("s_cselect_b32", T[5], 7, 0); k.S("s_sub_u32", self.sAs[0], T[4], T[5])
        elif c['rot'] == 1:
            k.S("s_mov_b32", self.sAs[0], 0)
        else:
            k.S("s_add_u32", T[4], sub, T[5]); k.S("s_and_b32", T[4], T[4], c['rot'] - 1); k.S("s_mul_i32", self.sAs[0], T[4], 7 // c['rot'] + (c['rot'] == 4))
        k.S("s_cmp_eq_u32", self.sIsH, 1); k.S("s_cselect_b32", self.sRS, 3584, 2688)
        k.S("s_lshl_b32", T[4], self.sI, 2); k.S("s_add_u32", T[4], T[4], self.sRt)
        k.S("s_mul_i32", self.sXb, T[4], 32 * 896)
        k.S("s_lshl_b32", self.sMx, self.sRt, 12); k.S("s_lshl_b32", T[4], self.sGrp, 11); k.S("s_add_u32", self.sMx, self.sMx, T[4])
        k.S("s_lshl_b32", self.sMw, self.sWv, 10)
        l3, c7, l4, cs = tmp[0], tmp[1], tmp[2], tmp[3]
        k.V("v_lshrrev_b32", l3, 3, lane)
        k.V("v_and_b32", c7, 7, lane)
        k.V("v_lshrrev_b32", l4, 4, lane)
        k.V("v_xor_b32", tmp[4], c7, l4)
        k.V("v_lshlrev_b32", tmp[4], 4, tmp[4])
        k.S("s_movk_i32", T[4], 896)
        k.V("v_mad_u32_u24", tmp[5], l3, T[4], tmp[4])
        k.S("s_mul_i32", T[5], self.sGrp, 14336)
        k.V("v_add_u32", self.vXD[0], T[5], tmp[5])
        k.V("v_xor_b32", tmp[4], 64, tmp[4])
        k.V("v_mad_u32_u24", tmp[5], l3, T[4], tmp[4])
        k.S("s_add_u32", T[5], T[5], 6144)
        k.V("v_add_u32", self.vXD[1], T[5], tmp[5])
        k.V("v_and_b32", tmp[4], 1, l4)
        k.V("v_lshlrev_b32", tmp[4], 2, tmp[4])
        k.V("v_xor_b32", cs, c7, tmp[4])
        k.S("s_cmp_eq_u32", self.sIsH, 1); k.S("s_cselect_b32", T[5], 7, 6)
        k.V("v_min_u32", tmp[4], T[5], cs)
        k.V("v_lshlrev_b32", tmp[4], 4, tmp[4])
        k.S("s_lshl_b32", T[5], self.sWv, 3)
        k.V("v_add_u32", tmp[5], T[5], l3)
        k.V("v_mad_u32_u24", self.vWD, tmp[5], self.sRS, tmp[4])
        col = self.sCol
        k.S("s_mul_i32", col[2], self.sIdx, 112); k.S("s_add_u32", col[1], col[2], 1792); k.S("s_add_u32", T[4], col[2], 896)
        k.S("s_and_b32", T[5], self.sIdx, 1); k.S("s_lshl_b32", T[5], T[5], 6); k.S("s_lshl_b32", col[0], col[2], 2); k.S("s_add_u32", col[0], col[0], T[5])
        k.S("s_cmp_eq_u32", self.sIsH, 1); k.S("s_cselect_b32", col[0], col[0], T[4])
        k.S("s_cselect_b32", col[3], W0R, KVR); k.S("s_cselect_b32", self.sMp[0], OOB, col[1]); k.S("s_cselect_b32", self.sMp[1], WB, KVR + 8192)
        k.S("s_add_u32", col[3], col[3], self.sMw); k.S("s_add_u32", self.sMp[1], self.sMp[1], self.sMw)
        k.hard_wait("s_waitcnt lgkmcnt(0)")
        if c['stamps'] and 'karg' in c['stamps']: k.raw("  s_memtime s[98:99]")
        def srd(d, lo, hi, size):
            k.S("s_mov_b32", d[0], lo); k.S("s_and_b32", d[1], hi, 0xffff)
            k.S("s_mov_b32", d[2], size); k.S("s_mov_b32", d[3], 0x20000)
        srd(self.sX, s(4), s(5), 2048 * 896)
        k.S("s_cmp_eq_u32", self.sIsH, 1)
        k.S("s_cselect_b32", self.sW[0], s(12), s(6)); k.S("s_cselect_b32", self.sW[1], s(13), s(7))
        k.S("s_cselect_b32", self.sW[2], 448 * 3584, 448 * 2688)
        k.S("s_and_b32", self.sW[1], self.sW[1], 0xffff); k.S("s_mov_b32", self.sW[3], 0x20000)
        self.sRS64 = self.sRS
        k.S("s_lshl_b32", self.sRS64, self.sRS, 6)
        self.job_x(0)()
        k.S("s_mov_b32", M0, col[3]); k.S("s_mul_i32", self.sUW[0], self.sAs[0], self.sRS64); k.S("s_add_u32", T[4], self.sUW[0], col[0])
        k.dma(self.vWD, self.sW, T[4], 0, ('w0', 0)); k.vm[-1]['toks'] = {('k', 0)}
        k.S("s_mov_b32", M0, self.sMp[1]); k.S("s_add_u32", T[4], self.sUW[0], self.sMp[0])
        k.dma(self.vWD, self.sW, T[4], 0, ('v', 0))
        if c['s1']:
            k.S("s_lshl_b32", T[4], self.sIsH, 3); k.S("s_add_u32", T[4], T[4], self.sIdx); k.S("s_lshl_b32", T[5], self.sI, 4); k.S("s_add_u32", T[4], T[4], T[5])
            k.S("s_lshl_b32", self.sUW[1], T[4], 7)
            k.S("s_lshl_b32", T[4], T[4], 3); k.S("s_add_u32", T[4], T[4], self.sWv); k.S("s_mul_i32", T[4], T[4], 896)
            k.V("v_lshlrev_b32", tmp[4], 4, lane); k.V("v_mov_b32", tmp[5], OOB); k.V("v_cmp_gt_u32", VCC, 56, lane); k.V("v_cndmask_b32", tmp[4], tmp[5], tmp[4])
            k.gload(self.xt[0:4], tmp[4], self.sX, T[4])
        k.raw("  s_load_dwordx2 %s, s[20:21], %d" % (self.sTag, EPOCH))
        k.S("s_mov_b32", self.sSpin, c['spin'])
        xcd, n, q = T[0], T[1], T[2]
        k.S("s_and_b32", xcd, s(2), 7); k.S("s_lshr_b32", n, s(2), 3); k.S("s_lshr_b32", q, xcd, 1)
        for p in range(1, 7):
            k.S("s_add_u32", self.sAs[p], self.sAs[p - 1], 1)
            k.S("s_cmp_eq_u32", self.sAs[p], 7)
            k.S("s_cselect_b32", self.sAs[p], 0, self.sAs[p])
        if c.get('local'): k.S("s_mov_b32", T[4], 4)
        else: k.S("s_cmp_eq_u32", q, 3); k.S("s_cselect_b32", T[4], 0, 8)
        k.S("s_sub_u32", T[5], n, T[4])
        k.S("s_cmp_lt_u32", T[5], 4); k.S("s_cselect_b32", self.sIsRed, 1, 0)
        k.S("s_add_u32", self.sRho, xcd, c['redoff']); k.S("s_and_b32", self.sRho, self.sRho, 7)
        k.S("s_lshl_b32", self.sRho, self.sRho, 2); k.S("s_and_b32", T[5], n, 3); k.S("s_add_u32", self.sRho, self.sRho, T[5])
        k.S("s_add_u32", T[4], T[4], 4)
        k.S("s_cmp_ge_u32", n, T[4]); k.S("s_cselect_b32", T[4], 4, 0); k.S("s_sub_u32", T[4], n, T[4])
        k.S("s_lshr_b32", self.sC, T[4], 2)
        k.S("s_and_b32", T[4], T[4], 3)
        if c['xmap'] and not c.get('local'):
            k.S("s_and_b32", self.sI2, xcd, 6); k.S("s_lshl_b32", self.sI2, self.sI2, 1); k.S("s_add_u32", self.sI2, self.sI2, T[4])
            k.S("s_bitcmp1_b32", xcd, 0); k.S("s_cselect_b32", T[5], 0, 16); k.S("s_add_u32", self.sI2, self.sI2, T[5])
        else:
            k.S("s_lshl_b32", self.sI2, xcd, 2); k.S("s_add_u32", self.sI2, self.sI2, T[4])
        k.S("s_add_u32", self.sRot2, T[4], self.sC); k.S("s_and_b32", self.sRot2, self.sRot2, 0 if 'rot0' in c.get('exp', '') else 3)
        k.S("s_movk_i32", T[4], 896)
        k.V("v_lshlrev_b32", tmp[4], 4, cs)
        k.V("v_mad_u32_u24", tmp[4], l3, T[4], tmp[4])
        k.S("s_lshl_b32", T[5], self.sC, 7)
        k.V("v_add_u32", self.vP2d[0], T[5], tmp[4])
        k.V("v_add_u32", self.vP2d[1], 6144, self.vP2d[0])
        k.V("v_add_u32", self.vP2d[2], 14336, self.vP2d[0])
        k.V("v_add_u32", self.vP2d[3], 14336 + 6144, self.vP2d[0])
        if c['wo28']:
            k.S("s_cmp_eq_u32", self.sGrp, 0); k.S("s_cselect_b32", T[5], 64, 32)
            k.V("v_cmp_gt_u32", VCC, T[5], lane); k.V("v_mov_b32", tmp[4], OOB); k.V("v_cndmask_b32", self.vP2d[3], tmp[4], self.vP2d[3])
        self.sOnes, self.sLn2 = s(22), s(23)
        k.S("s_mov_b32", self.sOnes, ONES); k.S("s_mov_b32", self.sLn2, LN2)

    def prologue2(self):
        k, c, T, tmp, lane = self.k, self.c, self.sT, self.tmp, self.lane
        def srd(d, lo, hi, size):
            k.S("s_mov_b32", d[0], lo); k.S("s_and_b32", d[1], hi, 0xffff)
            k.S("s_mov_b32", d[2], size); k.S("s_mov_b32", d[3], 0x20000)
        self.warm_setup()
        k.S("s_cmp_eq_u32", self.sGrp, 0)
        k.S("s_cselect_b32", self.sP2[0], s(14), s(8)); k.S("s_cselect_b32", self.sP2[1], s(15), s(9))
        k.S("s_cselect_b32", self.sP2[2], 1792 * 896, 448 * 896)
        k.S("s_and_b32", self.sP2[1], self.sP2[1], 0xffff); k.S("s_mov_b32", self.sP2[3], 0x20000)
        k.S("s_xor_b32", T[0], self.sIsH, 1); k.S("s_and_b32", self.sIsRed, self.sIsRed, T[0])
        if not c['qpf'] and not c['rpf']: k.S("s_cmp_eq_u32", self.sIsRed, 1); k.S("s_cselect_b32", self.sP2[2], 0, self.sP2[2])
        srd(self.sWS, s(20), s(21), WSEND)
        srd(self.sOUT, s(16), s(17), 2048 * 896)
        if c.get('prio0'):
            lab = k.newlabel("Lpr")
            k.S("s_cmp_eq_u32", self.sGrp, c['prio0'] - 1); k.branch("s_cbranch_scc0", lab); k.sraw("s_setprio 1"); k.label(lab)
        k.S("s_mov_b32", self.sPad[0], 0xf0000000); k.S("s_mov_b32", self.sPad[1], 0xf0000000)
        k.S("s_mov_b32", self.sHi[0], 0); k.S("s_mov_b32", self.sHi[1], -1)
        if c['stamps']:
            for p in self.STAMP_PAIRS[:11]: k.S("s_mov_b32", s(p), 0)
            if 'early' in c['stamps']: k.S("s_mov_b32", s(self.STAMP_PAIRS[c['stamps'].index('early')]), s(100))
            if 'karg' in c['stamps']: k.S("s_mov_b32", s(self.STAMP_PAIRS[c['stamps'].index('karg')]), s(98))
        row, hf, gx, base = tmp[0], tmp[1], tmp[2], tmp[3]
        k.V("v_and_b32", row, 31, lane)
        k.V("v_lshrrev_b32", hf, 5, lane)
        k.V("v_bfe_u32", gx, lane, 1, 3)
        k.S("s_lshl_b32", T[0], self.sRt, 12)
        k.V("v_lshl_add_u32", base, row, 7, T[0])
        def xaddr(dst, sp_reg_or_int):
            k.S("s_add_u32", T[1], self.sRt, sp_reg_or_int); k.S("s_and_b32", T[1], T[1], 3); k.S("s_lshl_b32", T[1], T[1], 1)
            k.V("v_add_u32", tmp[4], T[1], hf); k.V("v_xor_b32", tmp[4], tmp[4], gx)
            k.V("v_lshl_add_u32", dst, tmp[4], 4, base)
        for sp in range(4): xaddr(self.vXR[sp], sp)
        k.S("s_lshl_b32", T[2], self.sGrp, 1); xaddr(self.vXT[0], T[2])
        k.S("s_add_u32", T[2], T[2], 1); xaddr(self.vXT[1], T[2])
        k.S("s_lshl_b32", T[0], self.sGrp, 9); k.S("s_add_u32", T[0], T[0], CSA)
        k.V("v_lshl_add_u32", self.vCSR, row, 4, T[0])
        k.S("s_lshl_b32", T[0], self.sRt, 2)
        k.V("v_add_u32", self.vCSW, T[0], self.vCSR)
        k.V("v_lshrrev_b32", tmp[4], 4, lane); k.V("v_lshrrev_b32", tmp[5], 2, lane)
        k.V("v_xor_b32", tmp[4], tmp[4], tmp[5]); k.V("v_and_b32", tmp[4], 1, tmp[4])
        k.V("v_cmp_eq_u32", VCC, 0, tmp[4]); k.V("v_mov_b32", tmp[5], ONES)
        k.V("v_cndmask_b32", self.IND[0], 0, tmp[5])
        for i in range(1, 4): k.V("v_mov_b32", self.IND[i], self.IND[0])
        k.V("v_bfe_u32", tmp[4], lane, 2, 2)
        k.V("v_lshl_add_u32", self.vRowp, hf, 3, tmp[4])
        k.V("v_bfe_u32", tmp[4], lane, 4, 1); k.V("v_lshlrev_b32", tmp[4], 5, tmp[4])
        k.V("v_and_b32", tmp[5], 3, lane); k.V("v_lshl_add_u32", tmp[4], tmp[5], 3, tmp[4])
        k.V("v_bfe_u32", tmp[5], lane, 3, 1); k.V("v_lshl_add_u32", self.vColb, tmp[5], 6, tmp[4])
        k.V("v_mov_b32", self.sum, 0); k.V("v_mov_b32", self.sq, 0)
        self.cnt_init = True
        k.hard_wait("s_waitcnt lgkmcnt(0)")
        self.cnt_zero()
        k.S("s_and_b32", self.sTag[0], self.sTag[0], -16); k.S("s_add_u32", self.sTag[0], self.sTag[0], 16)
        k.V("v_mov_b32", self.vFV[1], self.sTag[1])

    def warm_setup(self):
        k, c, T, tmp, lane = self.k, self.c, self.sT, self.tmp, self.lane
        if c['warm']:
            k.comment("touch the weights once, spread over all workgroups, so later misses are served on-die")
            k.S("s_and_b32", T[0], self.sWv, 3)
            k.S("s_cmp_eq_u32", T[0], 0); k.S("s_cselect_b32", s(48), s(14), s(12)); k.S("s_cselect_b32", s(49), s(15), s(13))
            k.S("s_cmp_eq_u32", T[0], 2); k.S("s_cselect_b32", s(48), s(8), s(48)); k.S("s_cselect_b32", s(49), s(9), s(49))
            k.S("s_cselect_b32", T[1], 13, 49); k.S("s_cselect_b32", s(50), 448 * 896, 1792 * 896)
            k.S("s_cmp_eq_u32", T[0], 3); k.S("s_cselect_b32", s(48), s(6), s(48)); k.S("s_cselect_b32", s(49), s(7), s(49))
            k.S("s_cselect_b32", T[1], 37, T[1]); k.S("s_cselect_b32", s(50), 448 * 2688, s(50))
            k.S("s_and_b32", s(49), s(49), 0xffff); k.S("s_mov_b32", s(51), 0x20000)
            k.S("s_cmp_eq_u32", self.sGrp, 0); k.S("s_cselect_b32", T[2], T[1], 0)
            k.S("s_mul_i32", T[1], T[1], s(2)); k.S("s_lshl_b32", T[1], T[1], 7)
            k.V("v_lshlrev_b32", tmp[4], 7, lane)
            k.V("v_cmp_gt_u32", VCC, T[2], lane)
            k.V("v_mov_b32", tmp[5], OOB)
            k.V("v_cndmask_b32", tmp[4], tmp[5], tmp[4])
            k.V("v_add_u32", self.vWH2, T[1], tmp[4])
    def warm_issue(self):
        if self.c['warm']: self.k.gload(self.vDummy2, self.vWH2, self.sTMP, 0)
        if self.c.get('pagetouch'):
            k, T, tmp, lane = self.k, self.sT, self.tmp, self.lane
            st = self.c['pagetouch']
            k.S("s_cmp_eq_u32", self.sGrp, 0); k.S("s_cselect_b32", T[0], 0, OOB)
            k.S("s_cmp_eq_u32", self.sRt, 0); k.S("s_cselect_b32", T[1], T[0], OOB)
            k.S("s_mov_b32", T[2], st); k.V("v_mul_lo_u32", tmp[5], lane, T[2]); k.V("v_add_u32", tmp[5], 0x180000 % st + 64, tmp[5])
            k.gload(self.vDummy, tmp[5], self.sWS, T[1])
            k.S("s_cmp_eq_u32", self.sRt, 1); k.S("s_cselect_b32", T[1], T[0], OOB)
            k.V("v_lshlrev_b32", tmp[5], 15, lane)
            k.gload(self.vDummy, tmp[5], self.sOUT, T[1])

    def l2pf_job(self, q):
        k, T, tmp, lane = self.k, self.sT, self.tmp, self.lane
        def f():
            if q == 0:
                k.S("s_lshr_b32", T[0], s(2), 3); k.S("s_and_b32", T[0], T[0], 15); k.S("s_lshl_b32", T[0], T[0], 2); k.S("s_add_u32", T[0], T[0], self.sRt)
                k.S("s_cmp_eq_u32", self.sGrp, 0); k.S("s_cselect_b32", T[1], 196 * 128, 49 * 128); k.S("s_mul_i32", T[0], T[0], T[1])
                k.V("v_lshl_add_u32", self.vPFa, lane, 7, T[0]); k.V("v_mov_b32", tmp[5], OOB)
                k.V("v_cmp_gt_u32", VCC, 49, lane); k.V("v_cndmask_b32", self.vPFa, tmp[5], self.vPFa)
                k.gload(self.vDummy2, self.vPFa, self.sP2, 0)
            else:
                k.S("s_cmp_eq_u32", self.sGrp, 0); k.S("s_cselect_b32", T[0], q * 49 * 128, OOB)
                k.gload(self.vDummy2, self.vPFa, self.sP2, T[0])
        return f

    def tr_addrs(self, dst, omul, base, extra=0):
        k, T, tmp = self.k, self.sT, self.tmp
        items = []
        if omul: items.append((8, lambda: (k.S("s_mul_i32", T[3], self.sGrp, omul), k.V("v_add_u32", tmp[6], T[3], self.vColb))))
        else: items.append((4, lambda: k.V("v_add_u32", tmp[6], extra, self.vColb)))
        items.append((4, lambda: k.V("v_and_b32", tmp[6], 127, tmp[6])))
        items.append((4, lambda: k.V("v_lshl_add_u32", tmp[6], self.vRowp, 7, tmp[6])))
        for sp in range(4):
            def f(sp=sp):
                k.S("s_add_u32", T[3], self.sRt, sp); k.S("s_and_b32", T[3], T[3], 3); k.S("s_lshl_b32", T[3], T[3], 11)
                k.S("s_add_u32", T[3], T[3], base)
                k.V("v_add_u32", dst[sp], T[3], tmp[6])
            items.append((20, f))
        return items

    def job_x(self, p):
        k, T = self.k, self.sT
        def f():
            k.S("s_add_u32", M0, self.sMx, XR + (p % 4) * 16384)
            k.S("s_lshl_b32", T[5], self.sAs[p], 7); k.S("s_add_u32", T[5], T[5], self.sXb)
            k.dma(self.vXD[0], self.sX, T[5], 0, ('x', p)); k.dma(self.vXD[1], self.sX, T[5], 1024, ('x', p))
        return f
    def job_w(self, name, p, col, lds):
        k, T = self.k, self.sT
        def f():
            k.S("s_add_u32", M0, self.sMw, lds)
            k.S("s_mul_i32", T[0], self.sAs[p], self.sRS64); k.S("s_add_u32", T[0], T[0], col)
            k.dma(self.vWD, self.sW, T[0], 0, (name, p))
        return f
    def unit_ra(self, pos):
        k, T = self.k, self.sT
        G, q = pos // 4, pos % 4
        k.S("s_add_u32", T[1], self.sRot2, q); k.S("s_and_b32", T[1], T[1], 3 if G < 3 else 1)
        k.S("s_lshr_b32", T[2], T[1], 1); k.S("s_add_u32", T[2], T[2], 2 * G)
        k.S("s_and_b32", T[1], T[1], 1)
    def unit_w(self, pos):
        k, T, U = self.k, self.sT, self.sUW
        self.unit_ra(pos)
        k.S("s_add_u32", T[2], T[2], T[1])
        k.S("s_cmp_eq_u32", T[2], 7); k.S("s_cselect_b32", T[2], 0, T[2])
        k.S("s_mul_i32", T[1], T[1], 7); k.S("s_add_u32", T[2], T[2], T[1])
        k.S("s_mul_i32", T[1], self.sRt, 14); k.S("s_add_u32", T[2], T[2], T[1])
        if 'w2x' in self.c.get('exp', ''): k.S("s_and_b32", T[2], T[2], 1)
        k.S("s_mul_i32", U[0], T[2], 32 * 896)
    def unit_a(self, pos):
        k, T, U = self.k, self.sT, self.sUW
        self.unit_ra(pos)
        k.S("s_mul_i32", T[1], T[1], 7); k.S("s_add_u32", T[2], T[2], T[1]); k.S("s_lshl_b32", U[1], T[2], 11)
    def a_slot(self, n):
        p = n % self.c['ring']
        return (0, p * 2048) if p < 6 else (1, (p - 6) * 2048)
    def a_pos(self, n):
        assert n < 6
        return n * 2048
    def p2_bases(self):
        k, T = self.k, self.sT
        k.S("s_mul_i32", T[1], self.sRt, 14336); k.S("s_add_u32", T[1], T[1], WB)
        k.S("s_lshl_b32", T[2], self.sRt, 14)
        k.S("s_cmp_eq_u32", self.sGrp, 0)
        k.S("s_cselect_b32", self.sMp[0], T[1], T[2])
        k.S("s_lshl_b32", T[2], self.sRt, 13); k.S("s_add_u32", self.sMp[1], T[2], W0R)

    def x_reads(self, p):
        k = self.k
        off = XR + (p % 4) * 16384
        for t in range(0 if ('nodots' in self.c.get('exp', '') or self.c['s1']) else 2): k.ds_read("ds_read_b128", self.xt[4 * t:4 * t + 4], self.vXT[t], off)
        for sp in range(4): k.ds_read("ds_read_b128", a(16 * p + 4 * sp, 4), self.vXR[sp], off)
    def dots(self):
        k = self.k
        if 'nodots' in self.c.get('exp', '') or self.c['s1']: return
        for i in range(8):
            k.V("v_dot2c_f32_bf16", self.sq, self.xt[i], self.xt[i])
            k.V("v_dot2c_f32_bf16", self.sum, self.sOnes, self.xt[i])
    def s1_compute(self):
        k, T, tmp = self.k, self.sT, self.tmp
        x, sm, sq, t = self.xt, self.sum, self.sq, self.sp
        it = [(80, lambda: [(k.V("v_dot2c_f32_bf16", sq, x[i], x[i]), k.V("v_dot2c_f32_bf16", sm, self.sOnes, x[i])) for i in range(4)])]
        for r in (8, 4, 2, 1):
            it.append((8, lambda r=r: [k.emit(f"v_add_f32_dpp {a_}, {a_}, {a_} row_ror:{r} row_mask:0xf bank_mask:0xf", 'perm', rd=[a_], wr=[a_]) for a_ in (sm, sq)]))
        for op in ("v_permlane16_swap_b32", "v_permlane32_swap_b32"):
            it.append((8, lambda: (k.V("v_mov_b32", t[0], sm), k.V("v_mov_b32", t[1], sq))))
            it.append((8, lambda op=op: (k.V(op, sm, t[0]), k.V(op, sq, t[1]))))
            it.append((8, lambda: (k.V("v_add_f32", sm, sm, t[0]), k.V("v_add_f32", sq, sq, t[1]))))
        it.append((8, lambda: (k.V("v_mul_f32", t[0], -1.0 / 448, sm), k.V("v_mul_f32", sq, 1.0 / 448, sq))))
        it.append((4, lambda: k.Vneg("v_fma_f32", sq, t[0], t[0], sq, (True, False, False))))
        it.append((8, lambda: (k.V("v_max_f32", sq, 0, sq), k.V("v_add_f32", sq, 1e-5, sq))))
        it.append((8, lambda: k.V("v_sqrt_f32", t[1], sq)))
        def wr():
            k.S("s_lshl_b32", T[3], self.sWv, 3); k.S("s_add_u32", T[3], T[3], STA); k.V("v_mov_b32", tmp[4], T[3])
            k.ds_write("ds_write_b64", tmp[4], t, 0, tok='st')
        it.append((16, wr))
        return it
    def s1_publish(self):
        k, T, tmp, x = self.k, self.sT, self.tmp, self.xt
        def a0():
            k.V("v_lshlrev_b32", tmp[4], 3, self.lane); k.V("v_and_b32", tmp[4], 63, tmp[4]); k.V("v_add_u32", tmp[4], STA, tmp[4]); k.ds_read("ds_read_b64", self.sp, tmp[4], 0)
            k.V("v_lshlrev_b32", tmp[4], 4, self.lane); k.V("v_mov_b32", tmp[5], OOB); k.V("v_cmp_gt_u32", VCC, 8, self.lane); k.V("v_cndmask_b32", tmp[4], tmp[5], tmp[4])
            k.V("v_mov_b32", x[1], self.sTag[0]); k.V("v_mov_b32", x[3], self.sTag[1])
        def a1():
            k.V("v_mov_b32", x[0], self.sp[0]); k.V("v_mov_b32", x[2], self.sp[1])
            k.S("s_add_u32", T[3], self.sUW[1], STATS); k.S("s_cmp_eq_u32", self.sWv, 0); k.S("s_cselect_b32", T[3], T[3], OOB)
            k.gstore(x[0:4], tmp[4], self.sWS, T[3], mod=" sc1")
        return [(36, a0), (0, 1), (24, a1)]
    def s1_fetch(self):
        k, T, tmp = self.k, self.sT, self.tmp
        k.S("s_lshl_b32", T[3], self.sI, 2); k.S("s_add_u32", T[3], T[3], self.sRt); k.S("s_lshl_b32", T[3], T[3], 9); k.S("s_add_u32", T[3], T[3], STATS)
        k.V("v_and_b32", self.sum, 31, self.lane); k.V("v_lshl_add_u32", self.sum, self.sum, 4, T[3])
        k.gload(self.xt[4:8], self.sum, self.sWS, 0, mod=" sc1")
    def s1_finish(self):
        k, st = self.k, self.xt[4:8]
        def chk():
            top, done = k.newlabel("Ls1"), k.newlabel("Ls1ok")
            k.wait_regs(st)
            k.label(top)
            k.V("v_cmp_eq_u32", VCC, self.sTag[0], st[1]); k.V("v_cmp_eq_u32_e64", self.sM0, self.sTag[1], st[3])
            k.S("s_and_b64", self.sM0, self.sM0, VCC); k.S("s_cmp_eq_u64", self.sM0, -1)
            k.branch("s_cbranch_scc1", done)
            k.S("s_sub_u32", self.sSpin, self.sSpin, 1)
            k.branch("s_cbranch_scc1", done + "x")
            k.raw(f"  s_sleep 2\n  buffer_load_dwordx4 {st}, {self.sum}, {self.sWS}, 0 offen sc1\n  s_waitcnt vmcnt(0)\n  s_branch {top}")
            k.label(done + "x"); k.raw(f"  s_mov_b32 {self.sSpin}, 0"); k.label(done)
            self.stamp('s1ok')
        it = [(24, chk)]
        mean = st[0]
        it.append((8, lambda: k.V("v_rcp_f32", self.cc, st[2])))
        it.append((4, lambda: k.V("v_cvt_pk_bf16_f32", self.sp[0], mean, mean)))
        it.append((4, lambda: k.V("v_mov_b32", self.irs, st[2])))
        it.append((4, lambda: k.V("v_and_b32", self.sp[1], 0xffff0000, self.sp[0])))
        it.append((4, lambda: k.V("v_sub_f32", self.sp[1], mean, self.sp[1])))
        it.append((4, lambda: k.V("v_mul_f32", self.cc, self.ccmul, self.cc)))
        it.append((4, lambda: k.V("v_cvt_pk_bf16_f32", self.sp[1], self.sp[1], self.sp[1])))
        for i in range(4):
            it.append((4, lambda i=i: k.V("v_cndmask_b32_e64", self.mneg[i], self.sp[0], self.sp[1], self.sHi)))
        return it
    def run_slots(self, slots, pre_read, pre_mfma, post_mfma, fill, dq, first_ring=0, tail_reads=None):
        k, LA = self.k, self.c['LA']
        NF = 6
        assert 2 <= LA <= 4
        if 'm16b' in self.c.get('exp', '') and all(sl['cs'] is not None for sl in slots):
            for n, sl in enumerate(slots):
                if n % 4: sl['cs'] = None
        dq.sort(key=lambda e: e[0])
        def frag(n): return a(112 + 4 * ((n + first_ring) % NF), 4)
        def read(n):
            if n in pre_read: pre_read[n]()
            sl = slots[n]
            k.ds_read("ds_read_b64_tr_b16", frag(n)[0:2], sl['addr'], sl['off'])
            k.ds_read("ds_read_b64_tr_b16", frag(n)[2:4], sl['addr'], sl['off'] + sl['second'])
        for n in range(min(LA, len(slots))): read(n)
        for n, sl in enumerate(slots):
            if n in pre_mfma: pre_mfma[n]()
            x = a(4 * sl['xi'], 4)
            C = 0 if sl['first'] else sl['acc']
            if n % 2 == 0 and n + 1 < len(slots): k.wait_regs(frag(n), frag(n + 1), x)
            if sl['wfirst']: k.mfma(True, sl['acc'], frag(n), x, C)
            else: k.mfma(True, sl['acc'], x, frag(n), C)
            if sl['cs'] is not None and not ('nom16' in self.c.get('exp', '') and not sl['csfirst']): k.mfma(False, sl['cs'], self.IND, frag(n), 0 if sl['csfirst'] else sl['cs'])
            if n + LA < len(slots): read(n + LA)
            if n in post_mfma: post_mfma[n]()
            while dq and dq[0][0] <= n: dq.pop(0)[1]()
            fill.run(sl.get('bud', self.c['bud']))
    def cnt_zero(self):
        k, tmp = self.k, self.tmp
        z = v(96, 4)
        for i in range(4): k.V("v_mov_b32", z[i], 0)
        k.V("v_mov_b32", tmp[4], CNT); k.ds_write("ds_write_b128", tmp[4], z, 0); k.wait_lg_all()
    def cnt_add(self, which=0, wait=True):
        k, tmp = self.k, self.tmp
        if wait: k.wait_lg_all()
        k.V("v_mov_b32", tmp[4], CNT + 4 * which); k.V("v_mov_b32", tmp[5], 64)
        k.S("s_mov_b64", EXEC, 1)
        k.ds_write("ds_add_u32", tmp[4], tmp[5], 0)
        k.S("s_mov_b64", EXEC, -1)
    def cnt_wait(self, target, which=0):
        k, tmp, T = self.k, self.tmp, self.sT
        top = k.newlabel("Lcnt")
        k.wait_lg_all()
        k.V("v_mov_b32", tmp[4], CNT + 4 * which)
        k.S("s_mov_b32", T[1], self.c['spin'] * 8)
        k.label(top)
        k.raw(f"  ds_read_b32 {tmp[5]}, {tmp[4]}\n  s_waitcnt lgkmcnt(0)\n  v_readfirstlane_b32 {T[0]}, {tmp[5]}\n  s_sub_u32 {T[1]}, {T[1]}, 1\n  s_cbranch_scc1 {top}d\n  s_cmp_ge_u32 {T[0]}, {target}\n  s_cbranch_scc0 {top}")
        k.label(top + "d")
    def bar_wait(self, *toks, lg=False):
        def f():
            self.k.wait_tok(*toks)
            if lg: self.k.wait_lg_all()
            self.k.barrier()
        return f
    def stats_part1(self):
        k, T, tmp = self.k, self.sT, self.tmp
        if self.c['s1']: return []
        it = []
        def a0():
            k.S("s_lshl_b32", T[3], self.sWv, 9); k.S("s_add_u32", T[3], T[3], STA)
            k.V("v_lshl_add_u32", tmp[4], self.lane, 3, T[3])
        it.append((12, a0))
        def a1():
            k.V("v_mov_b32", self.sp[0], self.sum); k.V("v_mov_b32", self.sp[1], self.sq)
        it.append((8, a1))
        it.append((4, lambda: k.ds_write("ds_write_b64", tmp[4], self.sp, 0, tok='st')))
        it.append((4, lambda: k.V("v_xor_b32", tmp[4], 2048, tmp[4])))
        return it
    def stats_part2(self):
        k, T, tmp = self.k, self.sT, self.tmp
        if self.c['s1']: return []
        it = []
        it.append((4, lambda: k.ds_read("ds_read_b64", self.sp, tmp[4], 0)))
        it.append((0, self.c['dly']))
        it.append((4, lambda: k.V("v_add_f32", self.sum, self.sum, self.sp[0])))
        it.append((4, lambda: k.V("v_add_f32", self.sq, self.sq, self.sp[1])))
        it.append((8, lambda: (k.V("v_mov_b32", self.sp[0], self.sum), k.V("v_mov_b32", self.sp[1], self.sq))))
        it.append((8, lambda: (k.V("v_permlane32_swap_b32", self.sum, self.sp[0]), k.V("v_permlane32_swap_b32", self.sq, self.sp[1]))))
        it.append((8, lambda: (k.V("v_add_f32", self.sum, self.sum, self.sp[0]), k.V("v_add_f32", self.sq, self.sq, self.sp[1]))))
        mean, var = self.sum, self.sq
        it.append((8, lambda: (k.V("v_mul_f32", mean, -1.0 / 448, mean), k.V("v_mul_f32", var, 1.0 / 448, var))))
        it.append((4, lambda: k.Vneg("v_fma_f32", var, mean, mean, var, (True, False, False))))
        it.append((8, lambda: (k.V("v_max_f32", var, 0, var), k.V("v_add_f32", var, 1e-5, var))))
        it.append((8, lambda: k.V("v_sqrt_f32", self.irs, var)))
        it.append((4, lambda: k.V("v_cvt_pk_bf16_f32", self.sp[0], mean, mean)))
        it.append((8, lambda: k.V("v_rcp_f32", self.cc, self.irs)))
        it.append((4, lambda: k.V("v_and_b32", self.sp[1], 0xffff0000, self.sp[0])))
        it.append((4, lambda: k.V("v_sub_f32", self.sp[1], mean, self.sp[1])))
        it.append((4, lambda: k.V("v_mul_f32", self.cc, self.ccmul, self.cc)))
        it.append((4, lambda: k.V("v_cvt_pk_bf16_f32", self.sp[1], self.sp[1], self.sp[1])))
        for i in range(4):
            it.append((4, lambda i=i: k.V("v_cndmask_b32_e64", self.mneg[i], self.sp[0], self.sp[1], self.sHi)))
        return it
    def cs_pack(self, cs, idx, dst=None):
        k = self.k
        it = []
        it.append((4, lambda: k.V("v_cvt_pk_bf16_f32", cs[1], cs[0], cs[0])))
        it.append((4, lambda: k.V("v_and_b32", cs[1], 0xffff0000, cs[1])))
        it.append((4, lambda: k.V("v_sub_f32", cs[1], cs[0], cs[1])))
        if dst is None:
            it.append((4, lambda: k.V("v_cvt_pk_bf16_f32", cs[1], cs[0], cs[1])))
            it.append((4, lambda: k.ds_write("ds_write_b32", self.vCSW, cs[1], idx * 1024, tok='cs')))
        else:
            it.append((4, lambda: k.V("v_cvt_pk_bf16_f32", dst[0], cs[0], cs[1])))
            it.append((12, lambda: [k.V("v_mov_b32", dst[i], 0) for i in (1, 2, 3)]))
        return it
    def cs_apply(self, cs, idx, acc, wfirst, read=True):
        k = self.k
        it = []
        if read: it.append((4, lambda: k.ds_read("ds_read_b128", cs, self.vCSR, idx * 1024)))
        it.append((8, (lambda: k.mfma(True, acc, cs, self.mneg, acc)) if wfirst else (lambda: k.mfma(True, acc, self.mneg, cs, acc))))
        return it
    def epi_silu(self, acc, sbyte, tok):
        k, T = self.k, self.sT
        it = []; t = self.et; O = self.eo
        for g4 in range(4):
            A = [acc[4 * g4 + i] for i in range(4)]
            for i in range(4): it.append((4, lambda i=i, A=A: k.V("v_mul_f32", t[i], self.cc, A[i])))
            if 'nosilu' not in self.c.get('exp', ''):
                for i in range(4): it.append((8, lambda i=i: k.V("v_exp_f32", t[i], t[i])))
                for i in range(4): it.append((4, lambda i=i: k.V("v_fma_f32", t[i], t[i], self.irs, self.irs)))
                for i in range(4): it.append((8, lambda i=i: k.V("v_rcp_f32", t[i], t[i])))
            for i in range(4): it.append((4, lambda i=i, A=A: k.V("v_mul_f32", t[i], t[i], A[i])))
            for i in range(2): it.append((4, lambda i=i, g4=g4: k.V("v_cvt_pk_bf16_f32", O[2 * g4 + i], t[2 * i], t[2 * i + 1])))
            if g4 % 2 == 1:
                h = g4 // 2
                def st(h=h):
                    k.S("s_mov_b32", T[3], sbyte)
                    k.gstore(O[4 * h:4 * h + 4], self.vST, self.sWS, T[3], imm=1024 * h, mod=self.c.get('hmod', " sc1"), tok=tok)
                it.append((8, st))
        return it
    def phi4(self, A, sc, dst2):
        k, t = self.k, self.et
        it = []
        for i in range(4): it.append((4, lambda i=i: k.V("v_mul_f32", A[i], sc[i], A[i])))
        for i in range(4): it.append((8, lambda i=i: k.V("v_exp_f32_e64", t[i], A[i], mod="clamp")))
        for i in range(4): it.append((4, lambda i=i: k.V("v_max_f32", A[i], 1e-6 * LOG2E, A[i])))
        for i in range(4): it.append((4, lambda i=i: k.V("v_fmac_f32", t[i], self.sLn2, A[i])))
        for i in range(2): it.append((4, lambda i=i: k.V("v_cvt_pk_bf16_f32", dst2[i], t[2 * i], t[2 * i + 1])))
        return it

    QOFF = [49152, 57344, 0, 8192, 16384, 24576, 32768]
    def flag_addr(self, base, sline, shift, sidx):
        k, T, tmp = self.k, self.sT, self.tmp
        k.S("s_lshl_b32", T[1], sline, shift + 7); k.S("s_lshl_b32", T[2], sidx, 7); k.S("s_add_u32", T[1], T[1], T[2]); k.S("s_add_u32", T[1], T[1], base)
        k.V("v_mov_b32", tmp[4], OOB); k.V("v_mov_b32", tmp[5], T[1])
        k.V("v_cmp_eq_u32", VCC, 0, self.lane); k.V("v_cndmask_b32", self.vFA, tmp[4], tmp[5])

    def role_h(self):
        k, T, tmp, c = self.k, self.sT, self.tmp, self.c
        k.label("L_roleH")
        self.vPFa = v(116)
        self.ccmul = -LOG2E
        col = self.sCol
        k.S("s_add_u32", col[1], col[0], 128); k.S("s_add_u32", col[2], col[0], 256)
        k.S("s_and_b32", T[1], self.sIdx, 1); k.S("s_mul_i32", T[2], self.sIdx, 448)
        k.S("s_xor_b32", T[1], T[1], 1); k.S("s_mul_i32", T[1], T[1], 384); k.S("s_add_u32", col[3], T[2], T[1])
        acc = self.blk[0:2]; cs = self.cs; vWH = self.vWH
        for f in (self.job_x(1), self.job_w('w0', 1, col[0], W0R + 8192)): f()
        for _, f in self.tr_addrs(self.vTX, 64, W0R): f()
        k.V("v_lshrrev_b32", tmp[4], 2, self.lane); k.S("s_lshl_b32", T[1], self.sRt, 4); k.V("v_add_u32", tmp[4], T[1], tmp[4])
        k.V("v_and_b32", tmp[5], 3, self.lane); k.V("v_lshlrev_b32", tmp[5], 4, tmp[5])
        k.S("s_movk_i32", T[1], 3584); k.V("v_mad_u32_u24", vWH, tmp[4], T[1], tmp[5])
        k.S("s_lshl_b32", T[1], self.sI, 2); k.S("s_add_u32", T[1], T[1], self.sRt)
        k.S("s_mul_i32", T[2], T[1], 112 * 1024); k.S("s_mul_i32", T[3], self.sIdx, 14 * 1024); k.S("s_add_u32", T[2], T[2], T[3])
        k.S("s_lshl_b32", T[3], self.sGrp, 11); k.S("s_add_u32", T[2], T[2], T[3]); k.S("s_add_u32", T[2], T[2], HB)
        k.V("v_lshl_add_u32", self.vST, self.lane, 4, T[2])
        k.S("s_mov_b32", T[0], T[1]); k.S("s_lshl_b32", T[3], self.sIdx, 1); k.S("s_add_u32", T[3], T[3], self.sGrp)
        self.flag_addr(FLH, T[0], 4, T[3])
        self.p2_bases()
        for _, f in self.tr_addrs(self.vTY, 64, WB): f()
        for f in (self.job_x(2), self.job_w('w0', 2, col[0], W0R + 16384)): f()

        def job_h(m):
            def f():
                k.S("s_cmp_eq_u32", self.sGrp, 0)
                k.S("s_cselect_b32", T[0], self.sAs[2 * m], self.sAs[min(2 * m + 1, 6)])
                k.S("s_mul_i32", T[0], T[0], self.sRS64); k.S("s_add_u32", T[0], T[0], col[3])
                k.S("s_add_u32", M0, self.sMw, W0R + ((3 + m) % 4) * 8192) if m < 3 else (
                    k.S("s_lshl_b32", T[1], self.sRt, 10), k.S("s_add_u32", M0, T[1], W0R + 2 * 8192))
                k.dma(vWH, self.sW, T[0], 0, ('wh', m))
            return f
        if c['ea'] == 1: return self.role_h3(acc, cs, col, job_h)
        slots = []
        for ps in range(2):
            for n in range(28):
                p, sp = divmod(n, 4)
                slots.append(dict(acc=acc[ps], wfirst=True, addr=(self.vTX, self.vTY)[ps][sp], off=[(p % 4) * 8192, p * 8192][ps], second=512, xi=n,
                                  cs=cs[ps] if sp == 0 else None, csfirst=p == 0, first=n == 0))
        fill = Fill(); dq = []
        pre_read, pre_mfma, post = {}, {}, {}
        assert c['LA'] == 3
        for p in range(7):
            def br(p=p): self.bar_wait(('x', p), ('w0', p))(); self.stamp(f'B{p}'); self.x_reads(p)
            pre_read[4 * p] = br
            pre_mfma[4 * p] = self.dots
        for p in range(4):
            nb = 4 * (p + 1) - c['LA']
            dq.append((nb, self.job_x(p + 3))); dq.append((nb + 1, self.job_w('w0', p + 3, col[0], W0R + ((p + 3) % 4) * 8192)))
        dq.insert(2, (3, self.warm_issue))
        for p, n in enumerate((17, 18, 19, 21, 22, 23, 25)): dq.append((n, self.job_w('w1', p, col[1], WB + p * 8192)))
        for p, n in enumerate((26, 27, 29, 31, 33, 35, 37)): dq.append((n, self.job_w('w2', p, col[2], XR + self.QOFF[p])))
        for m in range(4): dq.append((39 + 2 * m, job_h(m)))
        now, dly = self.now, c['dly']
        def lgbar(*toks):
            k.wait_tok(*toks); k.wait_lg_tok('st', 'cs'); k.barrier()
        post[24] = lambda: now(self.stats_part1() + self.cs_pack(cs[0], 0))
        ap0, ap1 = self.cs_apply(cs[0], 0, acc[0], True), self.cs_apply(cs[1], 1, acc[1], True)
        def a2():
            lgbar(('w1', 0), ('w1', 1))
            fill.extend(ap0[:1]); fill.extend(self.stats_part2())
        pre_read[28] = a2
        def end1():
            self.stamp('p1end')
            e0 = self.epi_silu(acc[0], 0, ('h', 0))
            fill.extend(ap0[1:]); fill.add(0, dly); fill.extend(e0); fill.extend(self.tr_addrs(self.vTX, 0, XR))
        post[27] = end1
        pre_read[36] = self.bar_wait(('w1', 2), ('w1', 3), ('w1', 4))
        pre_read[48] = self.bar_wait(('w1', 5), ('w1', 6))
        post[52] = lambda: now(self.cs_pack(cs[1], 1))
        def y():
            lgbar(*[('w2', p) for p in range(4)])
            now(ap1[:1])
        post[53] = y
        self.run_slots(slots, pre_read, pre_mfma, post, fill, dq)
        fill.drain(); self.stamp('p2end')
        rest = [('w2', 4), ('w2', 5), ('w2', 6)] + [('wh', m) for m in range(4)]
        k.S("s_cmp_eq_u32", self.sGrp, 1)
        k.branch("s_cbranch_scc1", "L_hB")
        st = self.save()
        self.cnt_add(2)
        now(ap1[1:])
        def xa():
            k.wait_tok(*rest); k.barrier()
        self.p2a_preamble(self.epi_silu(acc[1], 4096, ('fin',)), xa, lambda: self.flag_store(1, [('h', 0)]))
        k.S("s_add_u32", T[4], self.sTag[0], 2); k.V("v_mov_b32", self.vFV[0], T[4])
        self.stamp('tail')
        self.joinA.append(self.exit_state()); k.branch("s_branch", "L_p2a")
        self.restore(st)
        k.label("L_hB")
        if c['prio']: k.sraw(f"s_setprio {c['prio']}")
        hoff = [3 * 8192, 3 * 8192 + 4096, 0, 4096, 8192, 8192 + 4096, 2 * 8192]
        slots = []
        for ps in range(3):
            for n in range(28):
                p, sp = divmod(n, 4)
                slots.append(dict(acc=acc[ps % 2], wfirst=True, addr=(self.vTX, self.vTY, self.vTX)[ps][sp], off=self.QOFF[p] if ps < 2 else hoff[p],
                                  second=512 if ps < 2 else 256, xi=n, cs=cs[ps % 2], csfirst=n == 0, first=n == 0))
        fill = Fill()
        fill.extend(ap1[1:]); fill.extend(self.tr_addrs(self.vTY, 64, XR)); fill.extend(self.epi_silu(acc[1], 4096, ('h', 1)))
        def vth():
            it = [(12, lambda: (k.V("v_lshlrev_b32", tmp[6], 6, self.vRowp), k.V("v_and_b32", tmp[5], 63, self.vColb), k.V("v_add_u32", tmp[6], tmp[6], tmp[5])))]
            for sp in range(4):
                def f(sp=sp):
                    k.S("s_add_u32", T[3], self.sRt, sp); k.S("s_and_b32", T[3], T[3], 3); k.S("s_lshl_b32", T[3], T[3], 10)
                    k.S("s_add_u32", T[3], T[3], W0R); k.V("v_add_u32", self.vTX[sp], T[3], tmp[6])
                it.append((20, f))
            return it
        def nextepi(ps, sbyte, tok, extra=()):
            def f():
                fill.drain()
                fill.add(0, 2); fill.extend(self.cs_pack(cs[ps % 2], 0, dst=cs[2])); fill.extend(list(extra))
                fill.extend(self.cs_apply(cs[2], 0, acc[ps % 2], True, read=False)); fill.add(0, 2)
                fill.extend(self.epi_silu(acc[ps % 2], sbyte, tok))
            return f
        def xb():
            k.wait_tok(*rest); k.barrier()
        def e4():
            self.stamp('p3end'); nextepi(0, 6144, ('h', 2), vth())()
        def e5():
            self.stamp('p4end'); nextepi(1, 8192, ('h', 3))(); self.cnt_add(0, wait=False)
        post = {27: e4, 55: e5, c['f1n']: lambda: self.flag_store(1, [('h', 0)]), 28 + c['f2n']: lambda: self.flag_store(2, [('h', 1)]),
                56 + c['f2n']: lambda: self.flag_store(3, [('h', 2)]), 56 + c['wo0'] - 1: lambda: self.cnt_wait(256, 0)}
        dq = [(56 + c['wo0'] + 2 * n, self.job_p2_b(n)) for n in range(8)]
        self.run_slots(slots, {16: xb}, {}, post, fill, dq)
        fill.drain(); self.stamp('p5end')
        self.cnt_add(2)
        now(self.cs_pack(cs[0], 0, dst=cs[2])); now(self.cs_apply(cs[2], 0, acc[0], True, read=False))
        epi = self.epi_silu(acc[0], 10240, ('fin',))
        half = len(epi) // 2
        now(epi[:half - 1])
        self.flag_store(4, [('h', 3)])
        now(epi[half - 1:])
        k.S("s_add_u32", T[4], self.sTag[0], 5); k.V("v_mov_b32", self.vFV[0], T[4])
        self.stamp('tail')
        self.joinB.append(self.exit_state()); k.branch("s_branch", "L_p2b")

    def role_h3(self, acc, cs, col, job_h):
        k, T, tmp, c = self.k, self.sT, self.tmp, self.c
        slots = []
        for ps in range(3):
            for n in range(28):
                p, sp = divmod(n, 4)
                off = [(p % 4) * 8192, p * 8192, self.QOFF[p]][ps]
                slots.append(dict(acc=acc[ps % 2], wfirst=True, addr=(self.vTY if ps == 1 else self.vTX)[sp], off=off, second=512, xi=n,
                                  cs=cs[ps % 2] if sp == 0 else None, csfirst=p == 0, first=n == 0))
        fill = Fill(); dq = []
        pre_read, pre_mfma, post = {}, {}, {}
        assert c['LA'] == 3
        for p in range(7):
            def br(p=p): self.bar_wait(('x', p), ('w0', p))(); self.stamp(f'B{p}'); self.x_reads(p)
            pre_read[4 * p] = br
            pre_mfma[4 * p] = self.dots
        for p in range(4):
            nb = 4 * (p + 1) - c['LA']
            dq.append((nb, self.job_x(p + 3))); dq.append((nb + 1, self.job_w('w0', p + 3, col[0], W0R + ((p + 3) % 4) * 8192)))
        dq.insert(2, (3, self.warm_issue))
        for p, n in enumerate(c['w1sched']): dq.append((n, self.job_w('w1', p, col[1], WB + p * 8192)))
        for p, n in enumerate(c['w2sched']): dq.append((n, self.job_w('w2', p, col[2], XR + self.QOFF[p])))
        for m in range(0 if 'nor6' in c.get('exp', '') else 4): dq.append((c['wh0'] + 3 * m, job_h(m)))
        def job_a_only(n):
            def f():
                if n % 2 == 0:
                    self.unit_w(n // 2)
                    k.S("s_cmp_eq_u32", self.sGrp, 0); k.S("s_cselect_b32", self.sUW[0], self.sUW[0], OOB)
                k.S("s_cmp_eq_u32", self.sGrp, 0); k.S("s_cselect_b32", T[2], self.a_pos(n), 12288)
                k.S("s_mul_i32", T[1], self.sRt, 14336); k.S("s_add_u32", T[1], T[1], T[2]); k.S("s_add_u32", M0, T[1], WB)
                b = 2 * (n % 2)
                k.dma(self.vP2d[b], self.sP2, self.sUW[0], 0, ('p2', n)); k.dma(self.vP2d[b + 1], self.sP2, self.sUW[0], 1024, ('p2', n))
            return f
        for n in range(c['shw']): dq.append((c['shw0'] + c['shwd'] * n, job_a_only(n)))
        if c['s1']:
            post[0] = lambda: fill.extend(self.s1_compute())
            for n in range(0, 8): slots[n]['bud'] = 60
            b2_ = pre_read[8]
            def b2x():
                fill.drain(); k.wait_lg_tok('st'); b2_(); fill.extend(self.s1_publish())
            pre_read[8] = b2x
            post[c['s1f']] = self.s1_fetch
            post[c['s1c']] = lambda: fill.extend(self.s1_finish())
        now, dly = self.now, c['dly']
        def lgbar(*toks):
            k.wait_tok(*toks); k.wait_lg_tok('st', 'cs'); k.barrier()
        post[24] = lambda: now(self.stats_part1() + self.cs_pack(cs[0], 0))
        ap0, ap1, ap2 = self.cs_apply(cs[0], 0, acc[0], True), self.cs_apply(cs[1], 1, acc[1], True), self.cs_apply(cs[0], 3, acc[0], True)
        def a2():
            lgbar(('w1', 0), ('w1', 1))
            fill.extend(ap0[:1]); fill.extend(self.stats_part2())
        pre_read[28] = a2
        def end1():
            self.stamp('p1end')
            e0 = self.epi_silu(acc[0], 0, ('h', 0))
            fill.extend(ap0[1:]); fill.add(0, dly); fill.extend(e0[:len(e0) // 2 - 1]); fill.extend(self.tr_addrs(self.vTX, 64, XR)); fill.extend(e0[len(e0) // 2 - 1:])
        post[27] = end1
        pre_read[36] = self.bar_wait(('w1', 2), ('w1', 3), ('w1', 4))
        pre_read[48] = self.bar_wait(('w1', 5), ('w1', 6))
        post[52] = lambda: now(self.cs_pack(cs[1], 1))
        def a3():
            lgbar(*[('w2', p) for p in range(4)])
            now(ap1[:1])
        pre_read[56] = a3
        def end2():
            fill.drain(); self.stamp('p2end')
            fill.extend(ap1[1:]); fill.add(0, dly); fill.extend(self.epi_silu(acc[1], 4096, ('h', 1)))
        post[55] = end2
        pre_read[64] = self.bar_wait(('w2', 4), ('w2', 5), ('w2', 6))
        post[c['f1h']] = lambda: self.flag_store(1, [('h', 0)])
        for n in range(28, 84): slots[n]['bud'] = c['budE']
        f2s = c['f2s']
        if f2s:
            def pf2():
                fill.drain(); self.flag_store(2, [('h', 1)])
            post[f2s] = pf2
        post[80] = lambda: now(self.cs_pack(cs[0], 3))
        def p81():
            k.wait_tok(*[('wh', m) for m in range(4)]); k.wait_lg_all(); k.barrier()
            now(ap2[:1])
        post[81] = p81
        self.run_slots(slots, pre_read, pre_mfma, post, fill, dq)
        fill.drain(); self.stamp('p3end')
        k.S("s_cmp_eq_u32", self.sGrp, 1)
        k.branch("s_cbranch_scc1", "L_hB")
        st = self.save()
        self.cnt_add(2); self.cnt_add(0, wait=False)
        for n in range(c['shw'], c['preh']): self.job_p2_a(n)()
        now(ap2[1:])
        self.p2a_preamble(self.epi_silu(acc[0], 8192, ('fin',)), None, None if f2s else (lambda: self.flag_store(2, [('h', 1)])), first=max(c['preh'], c['shw']))
        k.S("s_add_u32", T[4], self.sTag[0], 3); k.V("v_mov_b32", self.vFV[0], T[4])
        self.stamp('tail')
        self.joinA.append(self.exit_state()); k.branch("s_branch", "L_p2a")
        self.restore(st)
        k.label("L_hB")
        if c['prio']: k.sraw(f"s_setprio {c['prio']}")
        if 'nor6' in c.get('exp', ''):
            self.cnt_add(0); self.cnt_add(2)
            now(ap2[1:]); epi = self.epi_silu(acc[0], 8192, ('fin',))
            now(epi[:44]); self.flag_store(2, [('h', 1)]); now(epi[44:])
            self.cnt_wait(512, 0)
            for n in range(c['nwo']): self.job_p2_b(n)()
            k.S("s_add_u32", T[4], self.sTag[0], 4); k.V("v_mov_b32", self.vFV[0], T[4])
            self.stamp('tail')
            self.joinB.append(self.exit_state()); k.branch("s_branch", "L_p2b")
            return
        vTH = self.vTY
        k.V("v_lshlrev_b32", tmp[6], 6, self.vRowp); k.V("v_and_b32", tmp[5], 63, self.vColb); k.V("v_add_u32", tmp[6], tmp[6], tmp[5])
        for sp in range(4):
            k.S("s_add_u32", T[3], self.sRt, sp); k.S("s_and_b32", T[3], T[3], 3); k.S("s_lshl_b32", T[3], T[3], 10)
            k.S("s_add_u32", T[3], T[3], W0R); k.V("v_add_u32", vTH[sp], T[3], tmp[6])
        hoff = [3 * 8192, 3 * 8192 + 4096, 0, 4096, 8192, 8192 + 4096, 2 * 8192]
        slots = [dict(acc=acc[1], wfirst=True, addr=vTH[n % 4], off=hoff[n // 4], second=256, xi=n, cs=cs[1], csfirst=n == 0, first=n == 0) for n in range(28)]
        fill = Fill()
        fill.extend(ap2[1:]); fill.add(0, dly); fill.extend(self.epi_silu(acc[0], 8192, ('h', 2)))
        nwo = c['nwo']
        self.cnt_add(0, wait=False)
        post = {} if f2s else {c['f2n']: lambda: self.flag_store(2, [('h', 1)])}
        if nwo: post[c['xn']] = lambda: self.cnt_wait(512, 0)
        self.run_slots(slots, {}, {}, post, fill, [(c['xn'] + 1 + c['wod'] * n, self.job_p2_b(n)) for n in range(nwo)])
        fill.drain(); self.stamp('p4end')
        self.cnt_add(2)
        now(self.cs_pack(cs[1], 0, dst=cs[0])); now(self.cs_apply(cs[0], 0, acc[1], True, read=False))
        epi = self.epi_silu(acc[1], 10240, ('fin',))
        half = len(epi) // 2
        now(epi[:half - 1])
        self.flag_store(3, [('h', 2)])
        now(epi[half - 1:])
        k.S("s_add_u32", T[4], self.sTag[0], 4); k.V("v_mov_b32", self.vFV[0], T[4])
        self.stamp('tail')
        self.joinB.append(self.exit_state()); k.branch("s_branch", "L_p2b")

    def now(self, items):
        for _, f in items:
            if not isinstance(f, int): f()
    def save(self):
        import copy
        k = self.k
        return (copy.deepcopy(k.vm), copy.deepcopy(k.lg), list(k.hist), k.pos)
    def restore(self, st):
        k = self.k
        k.vm, k.lg, k.hist, k.pos = [dict(e) for e in st[0]], [dict(e) for e in st[1]], list(st[2]), st[3]
    def exit_state(self):
        self.k.wait_lg_all()
        self.k.flush_hazards()
        return [dict(e) for e in self.k.vm]
    def merge(self, states):
        k = self.k
        young = {}
        for st in states:
            for i, e in enumerate(st):
                y = len(st) - 1 - i
                keys = [('t', e['tok'])] + [('r', r) for r in e['regs']]
                for key in keys: young[key] = min(young.get(key, 99), y)
        L = max(young.values()) + 1 if young else 0
        q = []
        for key, y in young.items(): q.append((L - 1 - y, key))
        k.vm = []
        for pos in range(L):
            es = [key for p_, key in q if p_ == pos]
            k.vm.append(dict(regs={x[1] for x in es if x[0] == 'r'}, tok=None, toks={x[1] for x in es if x[0] == 't'}))
        k.lg = []; k.hist = []

    def role_qkv(self):
        k, T, tmp, c = self.k, self.sT, self.tmp, self.c
        k.label("L_roleQ")
        self.vPFa = v(23)
        self.ccmul = LOG2E
        col = self.sCol
        def slab(p):
            for f in (self.job_x(p), self.job_w('k', p, col[0], KVR + p * 16384), self.job_w('v', p, col[1], KVR + p * 16384 + 8192)): f()
        accQ, accK, accV = self.blk
        csK, csV, csQ = self.cs
        R2 = [v(44), v(45), v(46), v(47), v(48), v(49), v(50), v(51), v(52), v(53), v(54), v(55), v(112), v(113), v(114), v(115)]
        R2q = [v(44, 4), v(48, 4), v(52, 4), v(112, 4)]
        slab(1)
        for _, f in self.tr_addrs(self.vTX, 56, KVR): f()
        for _, f in self.tr_addrs(self.vTY, 0, XR): f()
        head = col[3]
        k.S("s_lshl_b32", head, self.sIdx, 1); k.S("s_add_u32", head, head, self.sGrp)
        k.S("s_lshl_b32", T[1], head, 4); k.S("s_add_u32", T[1], T[1], self.sI); k.S("s_lshl_b32", T[1], T[1], 2); k.S("s_add_u32", T[1], T[1], self.sRt)
        k.S("s_lshl_b32", T[1], T[1], 10); k.S("s_add_u32", T[1], T[1], PB)
        k.V("v_lshl_add_u32", self.vST, self.lane, 4, T[1])
        k.S("s_lshl_b32", T[0], head, 1); k.S("s_lshr_b32", T[3], self.sRt, 1); k.S("s_add_u32", T[0], T[0], T[3])
        k.S("s_lshl_b32", T[3], self.sI, 1); k.S("s_and_b32", T[4], self.sRt, 1); k.S("s_add_u32", T[3], T[3], T[4])
        self.flag_addr(FLP, T[0], 5, T[3])
        self.p2_bases()
        slots = []
        for n in range(56):
            p, r = divmod(n, 8); sp, sub = divmod(r, 2)
            slots.append(dict(acc=(accK, accV)[sub], wfirst=False, addr=self.vTX[sp], off=(p % 4) * 16384 + 8192 * sub, second=512, xi=4 * p + sp,
                              cs=(csK, csV)[sub] if sp == 0 else None, csfirst=p == 0, first=n < 2))
        fill = Fill(); dq = []
        pre_read, pre_mfma, post = {}, {}, {}
        for p in range(7):
            def br(p=p): self.bar_wait(('x', p), ('k', p), ('v', p))(); self.stamp(f'B{p}'); self.x_reads(p)
            pre_read[8 * p] = br
            pre_mfma[8 * p] = self.dots
        assert c['LA'] == 3
        slab(2)
        for p in range(4):
            o = KVR + ((p + 3) % 4) * 16384
            nb = 8 * (p + 1) - c['LA']
            dq += [(nb, self.job_x(p + 3)), (nb + 1, self.job_w('k', p + 3, col[0], o)), (nb + 2, self.job_w('v', p + 3, col[1], o + 8192))]
        dq.insert(3, (9, self.warm_issue))
        for p, n in enumerate(c['qsched']): dq.append((n, self.job_w('q', p, col[2], XR + self.QOFF[p])))
        pk = self.xt; pv = accV[0:8]
        def kv_epilogue():
            it = list(self.stats_part2())
            def r2w():
                k.S("s_lshl_b32", T[3], self.sWv, 7); k.S("s_add_u32", T[3], T[3], R2A)
                k.V("v_and_b32", tmp[4], 31, self.lane); k.V("v_lshl_add_u32", tmp[4], tmp[4], 2, T[3])
                k.ds_write("ds_write_b32", tmp[4], self.cc, 0)
                k.V("v_lshrrev_b32", tmp[4], 5, self.lane); k.V("v_lshl_add_u32", tmp[4], tmp[4], 4, T[3])
                for q in range(4): k.ds_read("ds_read_b128", R2q[q], tmp[4], 32 * q)
            it.append((40, r2w))
            ak, av = self.cs_apply(csK, 0, accK, False), self.cs_apply(csQ, 1, accV, False)
            it = [ak[0], av[0]] + it[:-1] + [ak[1], av[1]] + it[-1:]
            vmul = [(4, lambda i=i: k.V("v_mul_f32", accV[i], R2[i], accV[i])) for i in range(16)]
            for g4 in range(4):
                it += self.phi4([accK[4 * g4 + i] for i in range(4)], [R2[4 * g4 + i] for i in range(4)], pk[2 * g4:2 * g4 + 2])
            it.append((4, lambda: k.V("v_mov_b32", self.et[0], ONES)))
            it += vmul
            for i in range(8): it.append((4, lambda i=i: k.V("v_cvt_pk_bf16_f32", pv[i], accV[2 * i], accV[2 * i + 1])))
            for i in range(8): it.append((4, lambda i=i: k.V("v_cndmask_b32_e64", pv[i], pv[i], self.et[0], self.sPad)))
            it.append((8, lambda: k.mfma(True, accK, pk[0:4], pv[0:4], 0)))
            it.append((8, lambda: k.mfma(True, accK, pk[4:8], pv[4:8], accK)))
            def addrs():
                k.S("s_lshl_b32", T[3], self.sGrp, 14); k.S("s_lshl_b32", T[4], self.sRt, 10); k.S("s_add_u32", T[4], T[4], T[3]); k.S("s_add_u32", T[4], T[4], EXA)
                k.V("v_lshl_add_u32", tmp[4], self.lane, 4, T[4])
                k.S("s_lshl_b32", T[4], self.sRt, 12); k.S("s_add_u32", T[4], T[4], T[3]); k.S("s_add_u32", T[4], T[4], EXA)
                k.V("v_lshl_add_u32", tmp[5], self.lane, 4, T[4])
            it.append((40, addrs))
            for d in range(4): it.append((4, lambda d=d: k.ds_write("ds_write_b128", tmp[4], accK[4 * d:4 * d + 4], d * 4096)))
            return it
        def kv_publish():
            it = [(4, lambda sw=sw: k.ds_read("ds_read_b128", accV[4 * sw:4 * sw + 4], tmp[5], sw * 1024)) for sw in range(4)]
            for i in range(4): it.append((8, lambda i=i: (k.V("v_add_f32", accV[i], accV[i], accV[4 + i]), k.V("v_add_f32", accV[8 + i], accV[8 + i], accV[12 + i]))))
            for i in range(4): it.append((4, lambda i=i: k.V("v_add_f32", accV[i], accV[i], accV[8 + i])))
            it.append((4, lambda: k.gstore(accV[0:4], self.vST, self.sWS, 0, mod=" sc1", tok=('pst',))))
            it.append((0, lambda: self.stamp('pst')))
            return it
        now = self.now
        epi = kv_epilogue()
        nst = len(self.stats_part2())
        for n in range(50, 56): slots[n]['bud'] = 70
        post = {}
        if c['s1']:
            r2w_ = epi[4 + nst]
            post[0] = lambda: fill.extend(self.s1_compute())
            for n in range(0, 5): slots[n]['bud'] = 70
            b1_ = pre_read[8]
            def b1x():
                fill.drain(); k.wait_lg_tok('st'); b1_(); fill.extend(self.s1_publish())
            pre_read[8] = b1x
            post[32] = self.s1_fetch
            post[40] = lambda: fill.extend(self.s1_finish())
        def p49(): now(self.cs_pack(csK, 0) + self.stats_part1() + self.cs_pack(csV, 1))
        def p50():
            k.wait_lg_tok('st', 'cs'); k.barrier()
            fill.extend(epi[:2 + nst])
        post.update({49: p49, 50: p50, 52: lambda: fill.extend(epi[4 + nst:5 + nst])})
        self.run_slots(slots, pre_read, pre_mfma, post, fill, dq)
        fill.drain()
        self.stamp('p1end')
        now(epi[2 + nst:4 + nst] + epi[-5:-4] + epi[5 + nst:-5] + epi[-4:])
        self.bar_wait(*[('q', p) for p in range(7)], lg=True)()
        pub = kv_publish()
        now(pub[:4])
        k.S("s_cmp_eq_u32", self.sGrp, 1)
        k.branch("s_cbranch_scc1", "L_qB")
        st = self.save()
        now(pub[4:])
        k.vm[-1]['toks'] = {('fin',)}
        self.cnt_add(2)
        if c['ea'] == 1: self.cnt_add(0, wait=False)
        k.S("s_add_u32", T[4], self.sTag[0], 1); k.V("v_mov_b32", self.vFV[0], T[4])
        k.S("s_cmp_eq_u32", self.sIsRed, 1)
        k.branch("s_cbranch_scc1", "L_red")
        st2 = self.save()
        def pf():
            self.flag_hook(); k.V("v_mov_b32", self.vFA, OOB)
        self.p2a_preamble([], None, pf if c['qpfirst'] else None)
        self.stamp('tail')
        self.joinA.append(self.exit_state()); k.branch("s_branch", "L_p2a")
        self.restore(st2)
        k.label("L_red")
        self.reducer()
        self.restore(st)
        k.label("L_qB")
        if c['prio']: k.sraw(f"s_setprio {c['prio']}")
        accQ1 = accK
        slots = []
        for ps in range(2):
            for n in range(28):
                p, sp = divmod(n, 4)
                slots.append(dict(acc=(accQ, accQ1)[ps], wfirst=True, addr=(self.vTY, self.vTX)[ps][sp], off=self.QOFF[p], second=512, xi=n,
                                  cs=(csK, csQ)[ps], csfirst=n == 0, first=n == 0))
        vSQ = self.vWH
        def qaddr():
            k.S("s_lshl_b32", T[1], self.sI, 2); k.S("s_add_u32", col[0], T[1], self.sRt); k.S("s_sub_u32", col[1], head, 1)
            k.S("s_lshl_b32", T[2], col[0], 4); k.S("s_add_u32", T[2], T[2], col[1]); k.S("s_lshl_b32", T[2], T[2], 11); k.S("s_add_u32", T[2], T[2], QB)
            k.V("v_lshl_add_u32", vSQ, self.lane, 4, T[2])
        def qepi(acc, hh, tok):
            it = []
            for g4 in range(4):
                it += self.phi4([acc[4 * g4 + i] for i in range(4)], [self.cc] * 4, pk[2 * g4:2 * g4 + 2])
                if g4 % 2 == 1:
                    h = g4 // 2
                    it.append((4, lambda h=h: k.gstore(pk[4 * h:4 * h + 4], vSQ, self.sWS, 0, imm=2048 * hh + 1024 * h, mod=" sc1", tok=tok)))
            return it
        fill = Fill()
        fill.add(0, 1); fill.extend(pub[4:]); fill.add(4, lambda: self.cnt_add(2, wait=False)); fill.extend(self.tr_addrs(self.vTX, 0, XR, extra=56)); fill.add(40, qaddr)
        def pflag():
            self.flag_store(1, [('pst',)], ' sc1')
            self.flag_addr(FLQ, col[0], 4, col[1])
        def e0():
            self.stamp('p2end')
            fill.drain()
            fill.add(0, 2); fill.extend(self.cs_pack(csK, 0, dst=csV)); fill.extend(self.cs_apply(csV, 0, accQ, True, read=False)); fill.add(0, 2)
            fill.extend(qepi(accQ, 0, ('q0',)))
        self.run_slots(slots, {}, {}, {c['pflagn']: pflag, 27: e0}, fill, [])
        fill.drain(); self.stamp('p3end')
        self.cnt_add(0)
        now(self.cs_pack(csQ, 0, dst=csV)); now(self.cs_apply(csV, 0, accQ1, True, read=False))
        epi = qepi(accQ1, 1, ('fin',))
        now(epi[:len(epi) // 2 - 1])
        self.flag_store(1, [('q0',)])
        k.V("v_add_u32", self.vFA, 128, self.vFA)
        now(epi[len(epi) // 2 - 1:])
        k.S("s_cmp_eq_u32", self.sIsRed, 1)
        k.branch("s_cbranch_scc0", "L_qB2")
        st3 = self.save()
        self.flag_hook()
        k.branch("s_branch", "L_fin")
        self.restore(st3)
        k.label("L_qB2")
        if c['ea'] == 2 or c['nwo']: self.cnt_wait(256 if c['ea'] == 2 else 512, 0)
        for n in range(c['nwo'] if c['ea'] == 1 else 8): self.job_p2_b(n)()
        self.stamp('tail')
        self.joinB.append(self.exit_state()); k.branch("s_branch", "L_p2b")

    def red_prefetch(self):
        k, T, tmp, lane, c = self.k, self.sT, self.tmp, self.lane, self.c
        k.S("s_and_b32", T[0], self.sRho, 3); k.S("s_lshl_b32", T[0], T[0], 2); k.S("s_add_u32", T[0], T[0], self.sRt)
        k.S("s_lshr_b32", T[1], T[0], 1); k.S("s_and_b32", T[0], T[0], 1)
        k.V("v_lshlrev_b32", tmp[4], 7, lane); k.V("v_mov_b32", tmp[5], OOB); k.V("v_cmp_gt_u32", VCC, 56, lane); k.V("v_cndmask_b32", tmp[4], tmp[5], tmp[4])
        k.S("s_mul_i32", T[2], T[1], 7); k.S("s_and_b32", T[1], T[1], 1)
        rounds = c['rpf']; di = 0
        for r0 in rounds:
            if r0 == 6:
                k.S("s_cmp_eq_u32", T[1], 1); k.S("s_cselect_b32", T[3], 0, 6); k.S("s_add_u32", T[3], T[3], T[2]); k.S("s_mul_i32", T[3], T[3], 32 * 896)
                k.S("s_mul_i32", T[4], T[0], 14336); k.S("s_add_u32", T[3], T[3], T[4]); n = 2
            else:
                k.S("s_add_u32", T[3], T[2], T[1]); k.S("s_add_u32", T[3], T[3], T[0]); k.S("s_add_u32", T[3], T[3], r0); k.S("s_mul_i32", T[3], T[3], 32 * 896); n = 4
            for q in range(n):
                k.gload(v(76 + di), tmp[4], self.sP2, T[3]); di += 1
                if q + 1 < n: k.S("s_add_u32", T[3], T[3], 7168)

    def reducer(self):
        k, T, tmp, lane, c = self.k, self.sT, self.tmp, self.lane, self.c
        vP, vPA, vD = v(44, 2), v(46), v(47)
        k.S("s_lshl_b32", T[1], self.sRho, 12); k.S("s_add_u32", T[1], T[1], FLP)
        k.V("v_lshl_add_u32", tmp[4], lane, 7, T[1]); k.V("v_mov_b32", tmp[5], OOB)
        k.V("v_cmp_gt_u32", VCC, 32, lane); k.V("v_cndmask_b32", vPA, tmp[5], tmp[4])
        k.S("s_lshr_b32", T[1], self.sRho, 1); k.S("s_lshl_b32", T[1], T[1], 16); k.S("s_and_b32", T[2], self.sRho, 1); k.S("s_lshl_b32", T[2], T[2], 11)
        k.S("s_add_u32", T[1], T[1], T[2]); k.S("s_lshl_b32", T[2], self.sRt, 8); k.S("s_add_u32", T[1], T[1], T[2]); k.S("s_add_u32", T[1], T[1], PB)
        vDA, vOA, f0, f1 = v(48), v(49), v(50), v(51)
        k.V("v_lshrrev_b32", tmp[4], 4, lane); k.V("v_and_b32", tmp[5], 15, lane)
        k.V("v_lshlrev_b32", tmp[4], 12, tmp[4]); k.V("v_lshl_add_u32", tmp[4], tmp[5], 4, tmp[4]); k.V("v_add_u32", vDA, T[1], tmp[4])
        k.S("s_bitcmp1_b32", self.sRt, 0); k.S("s_cselect_b32", T[3], 12, 16)
        k.V("v_cmp_gt_u32", VCC, T[3], tmp[5]); k.V("v_mov_b32", f0, 1.0); k.V("v_mov_b32", f1, self.sLn2)
        k.V("v_cndmask_b32", f0, f0, f1)
        k.S("s_lshr_b32", T[3], self.sRt, 1); k.S("s_and_b32", T[3], T[3], self.sRho); k.S("s_and_b32", T[3], T[3], 1); k.S("s_cmp_eq_u32", T[3], 1); k.S("s_cselect_b32", T[3], 0, 1.0)
        k.V("v_mul_f32", f1, T[3], f0)
        k.S("s_lshl_b32", T[1], self.sRho, 10); k.S("s_lshl_b32", T[2], self.sRt, 8); k.S("s_add_u32", T[1], T[1], T[2]); k.S("s_add_u32", T[1], T[1], KVB)
        k.V("v_lshl_add_u32", tmp[4], lane, 4, T[1]); k.V("v_mov_b32", tmp[5], OOB)
        k.V("v_cmp_gt_u32", VCC, 16, lane); k.V("v_cndmask_b32", vOA, tmp[5], tmp[4])
        self.flag_hook()
        self.poll_issue(vP, vPA)
        self.flag_addr(FLK, self.sRho, 2, self.sRt)
        self.poll_check(vP, vPA, vD, 1, (-1, 0))
        self.stamp('c1')
        X = [v(60 + 8 * m, 8) for m in range(4)]
        for m in range(4):
            k.S("s_mov_b32", T[2], 16384 * m)
            for qq in range(2): k.gload(X[m][4 * qq:4 * qq + 4], vDA, self.sWS, T[2], imm=1024 * qq, mod=" sc1")
        self.tree(X)
        A, B = X[1], X[0]
        for op in ("v_permlane16_swap_b32", "v_permlane32_swap_b32"):
            for i in range(8): k.V("v_mov_b32", A[i], B[i])
            for i in range(8): k.V(op, A[i], B[i])
            for i in range(8): k.V("v_add_f32", B[i], A[i], B[i])
        for i in range(8): k.V("v_mul_f32", B[i], f0 if i < 4 else f1, B[i])
        for i in range(4): k.V("v_cvt_pk_bf16_f32", A[i], B[2 * i], B[2 * i + 1])
        k.gstore(A[0:4], vOA, self.sWS, 0, mod=" sc1", tok=('kv',))
        self.flag_store(1, [('kv',)], ' sc1')
        self.stamp('c2')
        if c['rpf']: self.red_prefetch()
        k.S("s_add_u32", T[0], self.sRho, self.sRt); k.S("s_cmp_eq_u32", T[0], 0)
        k.branch("s_cbranch_scc0", "L_fin")
        k.V("v_lshlrev_b32", tmp[4], 7, lane)
        for h in range(2):
            k.V("v_add_u32", vPA, FLK + 8192 * h, tmp[4])
            self.poll_issue(vP, vPA); self.poll_check(vP, vPA, vD, 1, (-1, -1))
        k.V("v_lshrrev_b32", tmp[4], 2, lane); k.V("v_lshlrev_b32", tmp[4], 13, tmp[4]); k.V("v_and_b32", tmp[5], 3, lane)
        k.V("v_lshl_add_u32", tmp[4], tmp[5], 8, tmp[4])
        for h in range(0 if c.get('local') else 2):
            k.V("v_add_u32", vPA, FLH + 128 + 1024 * h, tmp[4])
            self.poll_issue(vP, vPA); self.poll_check(vP, vPA, vD, 1, (-1, -1))
        k.V("v_mov_b32", tmp[4], 0); k.V("v_mov_b32", tmp[5], OOB); k.V("v_cmp_eq_u32", VCC, 0, lane); k.V("v_cndmask_b32", tmp[4], tmp[5], tmp[4])
        k.V("v_mov_b32", self.vFV[0], self.sTag[0])
        k.gstore(self.vFV, tmp[4], self.sWS, 0, imm=EPOCH, mod=" sc1")
        k.branch("s_branch", "L_fin")

    def t2_base(self, dst0, dst1, base):
        k, tmp = self.k, self.tmp
        return [(4, lambda: k.V("v_bfe_u32", tmp[4], self.lane, 2, 2)),
                (4, lambda: k.V("v_lshrrev_b32", tmp[5], 5, self.lane)),
                (4, lambda: k.V("v_lshl_add_u32", tmp[4], tmp[5], 2, tmp[4])),
                (4, lambda: k.V("v_lshl_add_u32", tmp[4], tmp[4], 7, base)),
                (4, lambda: k.V("v_add_u32", dst0, tmp[4], self.vColb)),
                (4, lambda: k.V("v_xor_b32", tmp[5], 64, self.vColb)),
                (4, lambda: k.V("v_add_u32", dst1, tmp[4], tmp[5]))]
    def job_p2_a(self, n):
        k = self.k
        def f():
            r, off = self.a_slot(n)
            k.S("s_add_u32", M0, self.sMp[r], off)
            if n % 2 == 0: self.unit_w(n // 2)
            b = 2 * (n % 2)
            if 'xW2' in self.c.get('exp', '') and n > 5: return
            k.dma(self.vP2d[b], self.sP2, self.sUW[0], 0, ('p2', n)); k.dma(self.vP2d[b + 1], self.sP2, self.sUW[0], 1024, ('p2', n))
        return f
    def job_p2_b(self, n):
        k, T = self.k, self.sT
        def f():
            k.S("s_add_u32", M0, self.sMp[0], n * 2048)
            k.S("s_mul_i32", T[1], self.sRt, 112 * 896); k.S("s_add_u32", T[1], T[1], (n // 2) * 28 * 896)
            b = 2 * (n % 2)
            k.dma(self.vP2d[b], self.sP2, T[1], 0, ('p2', n)); k.dma(self.vP2d[b + 1], self.sP2, T[1], 1024, ('p2', n))
        return f
    def act(self, n, rt): return a(8 * (n % 14) + 4 * rt, 4)
    def act_load(self, n):
        k = self.k
        if n % 2 == 0: self.unit_a(n // 2)
        x = self.c.get('exp', '')
        if 'actx' in x:
            for rt in range(2): k.gload(self.act(n, rt), self.vP2d[0], self.sX, self.sUW[1], imm=1024 * (n % 2) + 2048 * rt, mod=" sc1")
            return
        if 'nosc' in x:
            for rt in range(2): k.gload(self.act(n, rt), self.vAct[rt], self.sWS, self.sUW[1], imm=1024 * (n % 2))
            return
        for rt in range(2): k.gload(self.act(n, rt), self.vAct[rt], self.sWS, self.sUW[1], imm=1024 * (n % 2), mod=" sc1")
    def act_touch(self, G):
        k, T = self.k, self.sT
        if G < 3:
            k.S("s_lshr_b32", T[1], self.sC, 1); k.S("s_and_b32", T[2], T[1], 1); k.S("s_mul_i32", T[2], T[2], 14)
            k.S("s_and_b32", T[1], T[1], 2); k.S("s_add_u32", T[2], T[2], T[1]); k.S("s_and_b32", T[1], self.sC, 1); k.S("s_add_u32", T[2], T[2], T[1])
            k.S("s_add_u32", T[2], T[2], 4 * G)
        else:
            k.S("s_lshr_b32", T[1], self.sC, 1); k.S("s_and_b32", T[2], T[1], 1); k.S("s_mul_i32", T[2], T[2], 14)
            k.S("s_and_b32", T[1], self.sC, 1); k.S("s_add_u32", T[2], T[2], T[1]); k.S("s_add_u32", T[2], T[2], 12)
        k.S("s_lshl_b32", T[2], T[2], 10)
        k.gload(self.vDummy, self.vTch, self.sWS, T[2], mod=" sc1")
    def p2a_regs(self):
        self.vTch = v(102)
        self.vAct = [v(92), v(93)]; self.aP, self.aPA, self.aD = v(94, 2), v(96), v(97)
        self.vT2 = [v(98), v(99), v(100), v(101)]
    def p2a_preamble(self, epi, xbar, mid, first=0):
        k, T, tmp, lane, c = self.k, self.sT, self.tmp, self.lane, self.c
        self.p2a_regs()
        def addrs():
            k.V("v_and_b32", tmp[4], 1, lane); k.V("v_lshlrev_b32", tmp[4], 11, tmp[4])
            k.V("v_bfe_u32", tmp[5], lane, 1, 1); k.V("v_lshl_add_u32", tmp[4], tmp[5], 8, tmp[4])
            k.V("v_bfe_u32", tmp[5], lane, 2, 1); k.V("v_lshl_add_u32", tmp[4], tmp[5], 7, tmp[4])
            k.S("s_lshl_b32", T[1], self.sI2, 12); k.S("s_lshl_b32", T[2], self.sRt, 9); k.S("s_add_u32", T[1], T[1], T[2]); k.S("s_add_u32", T[1], T[1], FLH)
            k.V("v_add_u32", tmp[4], T[1], tmp[4]); k.V("v_mov_b32", tmp[5], OOB)
            k.V("v_cmp_gt_u32", VCC, 8, lane); k.V("v_cndmask_b32", self.aPA, tmp[5], tmp[4])
            k.S("s_mul_i32", T[1], self.sI2, 224 * 1024); k.S("s_mul_i32", T[2], self.sRt, 28 * 1024); k.S("s_add_u32", T[1], T[1], T[2]); k.S("s_add_u32", T[1], T[1], HB)
            k.V("v_lshl_add_u32", self.vAct[0], lane, 4, T[1]); k.V("v_add_u32", self.vAct[1], 112 * 1024, self.vAct[0])
            self.now(self.t2_base(self.vT2[0], self.vT2[1], self.sMp[0]))
            if c['ring'] > 6:
                k.S("s_sub_u32", T[1], self.sMp[1], self.sMp[0])
                for ct in range(2): k.V("v_add_u32", self.vT2[2 + ct], T[1], self.vT2[ct])
        early = bool(epi) and c['earlypoll']
        if epi:
            addrs()
            if early: self.poll_issue(self.aP, self.aPA)
            if early and c['earlyact']:
                h = max(i for i, (_, f) in enumerate(epi[:60]) if True) if False else len(epi) // 2 - 2
                self.now(epi[:h])
                if mid and c['midearly']: mid(); mid = None
                self.poll_check(self.aP, self.aPA, self.aD, 1, 0xff); self.stamp('G0')
                for n in range(4): self.act_load(n)
                self.now(epi[h:])
            else: self.now(epi)
        if xbar: xbar()
        self.stamp('X')
        for n in range(first, max(first, c['prew'])): self.job_p2_a(n)()
        if not epi: addrs()
        if mid: mid()
        if not early: self.poll_issue(self.aP, self.aPA)
        for n in range(max(first, c['prew']), 6): self.job_p2_a(n)()
        if not (early and c['earlyact']):
            self.poll_check(self.aP, self.aPA, self.aD, 1, 0xff)
            self.stamp('G0')
            for n in range(4): self.act_load(n)
        self.pre_acts = 4
    def final_write_addrs(self, regs, base):
        k, tmp = self.k, self.tmp
        k.V("v_and_b32", tmp[4], 31, self.lane); k.V("v_lshl_add_u32", tmp[4], tmp[4], 8, base)
        k.V("v_lshrrev_b32", tmp[5], 5, self.lane); k.V("v_and_b32", tmp[6], 7, self.lane); k.V("v_xor_b32", tmp[5], tmp[5], tmp[6])
        for q in range(4):
            k.V("v_xor_b32", tmp[6], 2 * q, tmp[5]); k.V("v_lshl_add_u32", regs[q], tmp[6], 4, tmp[4])
    def x_res_load(self):
        k, T, tmp = self.k, self.sT, self.tmp
        self.vXO, self.xres = v(4), v(8, 4)
        k.S("s_lshl_b32", T[1], self.sI2, 3); k.S("s_add_u32", T[1], T[1], self.sWv); k.S("s_mul_i32", T[1], T[1], 8 * 896)
        k.S("s_lshl_b32", T[2], self.sC, 7); k.S("s_add_u32", T[1], T[1], T[2])
        k.V("v_lshrrev_b32", tmp[4], 3, self.lane); k.V("v_and_b32", tmp[5], 7, self.lane); k.V("v_lshlrev_b32", tmp[5], 4, tmp[5])
        k.S("s_movk_i32", T[2], 896); k.V("v_mad_u32_u24", tmp[4], tmp[4], T[2], tmp[5]); k.V("v_add_u32", self.vXO, T[1], tmp[4])
        k.gload(self.xres, self.vXO, self.sX, 0)

    def phase2a(self):
        k, T, c = self.k, self.sT, self.c
        k.label("L_p2a")
        self.merge(self.joinA)
        if c.get('prio0'): k.sraw("s_setprio 0")
        self.p2a_regs()
        look, wl = c['look'], c['wl']
        accF = [[v(28, 16), v(44, 16)], [v(60, 16), v(76, 16)]]
        def wf(n, ct): return a(112 + 4 * ((2 * n + ct) % 6), 4)
        def wread(n):
            k.wait_tok(('p2', n))
            r, off = self.a_slot(n)
            for ct in range(2):
                k.ds_read("ds_read_b64_tr_b16", wf(n, ct)[0:2], self.vT2[2 * r + ct], off)
                k.ds_read("ds_read_b64_tr_b16", wf(n, ct)[2:4], self.vT2[2 * r + ct], off + 1024)
        wd = c['wd']
        for n in range(wd): wread(n)
        if c['hookn'] < 0: self.flag_hook(); self.stamp('hook')
        nw, na = 6, self.pre_acts
        checks = {8: (2, 0xff), 16: (4, 0xf0), 24: (5, 0xf0)} if c['ea'] == 2 else {8: (2, 0xff), 16: (3, 0xff), 24: (4, 0xf0)}; polled = set()
        W = [[v(108 + i) for i in range(4)], [v(112 + i) for i in range(4)]]
        NK = 24 if c['tilemajor'] else 28
        for n in range(NK):
            k.wait_regs(wf(n, 0), wf(n, 1), self.act(n, 0), self.act(n, 1))
            i = 0
            for rt in range(2):
                for ct in range(2):
                    k.mfma(True, accF[ct][rt], wf(n, ct), self.act(n, rt), 0 if n == 0 else accF[ct][rt])
                    if i == 0 and n + wd < NK: wread(n + wd)
                    if i == 1:
                        cnt = 0
                        while na < 28 and na <= n + look and cnt < (2 if (n % 2 == 0 or c['ramp'] == 2) else 1):
                            if na in checks:
                                self.stamp(f'b{na // 8}')
                                self.poll_check(self.aP, self.aPA, self.aD, *checks[na])
                                self.stamp(f'c{na // 8}')
                                if c['touch'] & (1 << (na // 8)): self.act_touch(na // 8)
                            self.act_load(na); na += 1; cnt += 1
                        if (na + 2 in checks or na + 1 in checks) and na not in polled and na - 1 not in polled: self.poll_issue(self.aP, self.aPA); polled.add(na)
                    if i == 3:
                        cnt = 0
                        while nw < 28 and nw <= n + wl and nw - c['ring'] <= n and cnt < (2 if (n % 2 == 1 or c['ramp'] == 2) else 1):
                            if nw == 6 and c['ring'] > 6: self.cnt_wait(512, 2)
                            self.job_p2_a(nw)(); nw += 1; cnt += 1
                    i += 1
            if n == c['hookn']:
                self.flag_hook(); self.stamp('hook')
                if c['J']: k.barrier(); self.stamp('J')
            self.stamp(f'n{n}')
            if c.get('aprio') and n == c['aprio'][0]: k.sraw(f"s_setprio {c['aprio'][1]}")
            if n == 18:
                self.final_write_addrs(W[0], self.sMp[0]); k.S("s_sub_u32", T[1], self.sMp[1], self.sMp[0])
                for q in range(4): k.V("v_add_u32", W[1][q], T[1], W[0][q])
            if n == 20: self.final_read_addrs(WB)
            if n == 22:
                self.x_res_load()
                if c['ring'] == 6: self.cnt_wait(512, 2)
        assert na == 28 and nw == 28
        def writes(ct, rt):
            return [(lambda q=q: k.ds_write("ds_write_b128", W[rt][q], accF[ct][rt][4 * q:4 * q + 4], 128 * ct)) for q in range(4)]
        if c['tilemajor']:
            fr = lambda i: a(112 + 4 * (i % 6), 4)
            def rd(i):
                ct, n = divmod(i, 4); n += 24
                k.wait_tok(('p2', n))
                r, off = self.a_slot(n)
                k.ds_read("ds_read_b64_tr_b16", fr(i)[0:2], self.vT2[2 * r + ct], off)
                k.ds_read("ds_read_b64_tr_b16", fr(i)[2:4], self.vT2[2 * r + ct], off + 1024)
            for i in range(6): rd(i)
            pend = []
            for ct in range(2):
                for rt in range(2):
                    for j in range(4):
                        k.mfma(True, accF[ct][rt], fr(4 * ct + j), self.act(24 + j, rt), accF[ct][rt])
                        if ct == 0 and rt == 1 and j < 2: rd(6 + j)
                        if pend and j >= 2: pend.pop(0)(); pend.pop(0)()
                    pend = writes(ct, rt)
            self.stamp('mainend')
            for f in pend: f()
        else:
            self.stamp('mainend')
            for rt in range(2):
                for ct in range(2):
                    for f in writes(ct, rt): f()
        f_ = self.vFin
        k.S("s_add_u32", T[1], self.sMp[0], 12288); k.V("v_lshl_add_u32", f_[2], self.lane, 4, T[1])
        k.wait_lg_all()
        k.barrier()
        self.stamp('Z')
        S = v(92, 8)
        for h in range(2): k.ds_read("ds_read_b128", S[4 * h:4 * h + 4], f_[2], 1024 * h)
        self.final_tail(S, 14336)
        k.branch("s_branch", "L_fin")
    def flag_hook(self):
        k = self.k
        self.stamp('h0')
        k.wait_tok(('fin',))
        self.stamp('h1')
        k.gstore(self.vFV, self.vFA, self.sWS, 0, mod=self.c.get('fmod', " sc1"), tok=('flag',))

    def phase2b(self):
        k, T, tmp, lane, c = self.k, self.sT, self.tmp, self.lane, self.c
        k.label("L_p2b")
        self.merge(self.joinB)
        vPQ, vKV, vP, vPA, vD, vPK = [v(10), v(11)], v(15), v(16, 2), v(18), v(19), v(110)
        vT2 = [v(20), v(23)]
        rc, rc2, den = v(12), v(13), v(14)
        kv = lambda hh, s_: v(24 + 8 * hh + 4 * s_, 4)
        pq = lambda hh, rt, s_: a(64 + 16 * hh + 8 * rt + 4 * s_, 4)
        N = [v(56, 16), v(72, 16)]; O = [v(88, 8), v(96, 8)]
        accS = [[a(0, 16), a(16, 16)], [a(32, 16), a(48, 16)]]
        k.V("v_and_b32", tmp[4], 1, lane); k.V("v_lshlrev_b32", tmp[4], 11, tmp[4])
        k.V("v_bfe_u32", tmp[5], lane, 1, 2); k.V("v_lshl_add_u32", tmp[4], tmp[5], 7, tmp[4])
        k.S("s_lshl_b32", T[1], self.sI2, 12); k.S("s_lshl_b32", T[2], self.sRt, 9); k.S("s_add_u32", T[1], T[1], T[2]); k.S("s_add_u32", T[1], T[1], FLQ)
        k.V("v_add_u32", tmp[4], T[1], tmp[4])
        k.V("v_mov_b32", tmp[5], OOB); k.V("v_cmp_gt_u32", VCC, 8, lane); k.V("v_cndmask_b32", vPA, tmp[5], tmp[4])
        k.S("s_lshl_b32", T[1], self.sRt, 12); k.S("s_add_u32", T[1], T[1], FLK)
        k.V("v_lshl_add_u32", tmp[4], lane, 7, T[1]); k.V("v_cmp_gt_u32", VCC, 8 if 'kv8' in c.get('exp', '') else 32, lane); k.V("v_cndmask_b32", vPK, tmp[5], tmp[4])
        k.S("s_lshl_b32", T[1], self.sI2, 16); k.S("s_lshl_b32", T[2], self.sRt, 13); k.S("s_add_u32", T[1], T[1], T[2]); k.S("s_add_u32", T[1], T[1], QB)
        k.V("v_lshl_add_u32", vPQ[0], lane, 4, T[1]); k.V("v_add_u32", vPQ[1], 32768, vPQ[0])
        k.S("s_add_u32", T[1], T[2], KVB); k.V("v_lshl_add_u32", vKV, lane, 4, T[1])
        self.flag_hook(); self.stamp('hook')
        k.sraw(f"s_setprio {c['prioL']}")
        def wo_rest():
            if c['ea'] != 1: return
            if not c['nwo']: self.cnt_wait(512, 0)
            for n in range(c['nwo'], 8): self.job_p2_b(n)()
        if not c['wolate']: wo_rest()
        vP2 = v(112, 2)
        def pq_loads():
            k.S("s_movk_i32", T[0], 4096)
            for hh in range(4):
                for rt in range(2):
                    for s_ in range(2):
                        if 'nopq' not in c.get('exp', ''): k.gload(pq(hh, rt, s_), vPQ[rt], self.sWS, T[0] if hh >= 2 else 0, imm=2048 * (hh % 2) + 1024 * s_, mod=" sc1")
        def kv_loads():
            k.S("s_movk_i32", T[0], 4096)
            for hh in range(4):
                for s_ in range(2):
                    k.gload(kv(hh, s_), vKV, self.sWS, T[0] if hh >= 2 else 0, imm=2048 * (hh % 2) + 1024 * s_, mod=" sc1")
        first, second = ((vPK, kv_loads, (-1, 0)), (vPA, pq_loads, 0xff)) if c['kvfirst'] else ((vPA, pq_loads, 0xff), (vPK, kv_loads, 0xff if 'kv8' in c.get('exp', '') else (-1, 0)))
        self.poll_issue(vP, first[0])
        if c['wolate'] == 1: wo_rest()
        self.now(self.t2_base(vT2[0], vT2[1], self.sMp[0]))
        self.poll_check(vP, first[0], vD, 1, first[2])
        self.stamp('c1')
        self.poll_issue(vP2, second[0])
        if c.get('prio1') is not None: k.sraw(f"s_setprio {c['prio1']}")
        first[1]()
        if c.get('prio1') is not None: k.sraw(f"s_setprio {c['prioL']}")
        self.poll_check(vP2, second[0], vD, 1, second[2])
        self.stamp('c2')
        second[1]()
        if c['wolate'] == 2: wo_rest()
        self.x_res_load()
        k.sraw(f"s_setprio {c['prioM']}")
        Wf = [v(104, 4), v(112, 4), v(116, 4), v(4 + 0, 4)]
        Wf = [v(104, 4), v(112, 4), v(116, 4), v(16, 4)]
        def wread(hh, f):
            s_, ct = divmod(f, 2); n = 2 * hh + s_
            k.wait_tok(('p2', n))
            k.ds_read("ds_read_b64_tr_b16", Wf[f][0:2], vT2[ct], n * 2048)
            k.ds_read("ds_read_b64_tr_b16", Wf[f][2:4], vT2[ct], n * 2048 + 1024)
        def num(u):
            hh, rt = divmod(u, 2)
            k.mfma(True, N[u % 2], kv(hh, 0), pq(hh, rt, 0), 0)
            k.mfma(True, N[u % 2], kv(hh, 1), pq(hh, rt, 1), N[u % 2])
        def val(u):
            n_, o_ = N[u % 2], O[u % 2]
            it = [(4, lambda: k.V("v_mov_b32", den, n_[12])),
                  (4, lambda: k.V("v_permlane32_swap_b32", n_[12], den)),
                  (4, lambda: k.V("v_add_f32", den, 1e-6, den)),
                  (8, lambda: k.V("v_rcp_f32", rc, den)),
                  (4, lambda: k.V("v_cndmask_b32_e64", rc2, rc, 0, self.sHi))]
            for i in range(8):
                it.append((8, lambda i=i: [k.V("v_mul_f32", n_[j], rc if j < 12 else rc2, n_[j]) for j in (2 * i, 2 * i + 1)]))
                it.append((4, lambda i=i: k.V("v_cvt_pk_bf16_f32", o_[i], n_[2 * i], n_[2 * i + 1])))
            return it
        for f in range(4): wread(0, f)
        num(0); num(1)
        self.stamp('c3')
        for _, f in val(0): f()
        for u in range(8):
            hh, rt = divmod(u, 2)
            fill = Fill()
            if u + 1 < 8: fill.extend(val(u + 1))
            for f in range(4):
                s_, ct = divmod(f, 2)
                k.mfma(True, accS[ct][rt], Wf[f], O[u % 2][4 * s_:4 * s_ + 4], 0 if (hh == 0 and s_ == 0) else accS[ct][rt])
                if rt == 1 and hh < 3: wread(hh + 1, f)
                if f == 0 and u + 2 < 8: num(u + 2)
                fill.run(30)
            fill.drain()
        self.stamp('mainend')
        W = [v(24), v(25), v(26), v(27)]
        self.final_write_addrs(W, self.sMp[0])
        for rt in range(2):
            for ct in range(2):
                for q in range(4): k.ds_write("ds_write_b128", W[q], accS[ct][rt][4 * q:4 * q + 4], 8192 * rt + 128 * ct)
        self.final_read_addrs(XR)
        f_ = self.vFin
        vS = [v(24), v(25)]
        for h in range(2):
            k.V("v_mov_b32", vS[h], f_[h]); k.V("v_add_u32", f_[h], W0R, f_[h])
        k.S("s_mul_i32", T[1], self.sRt, 14336); k.S("s_add_u32", T[1], T[1], WB + 12288); k.V("v_lshl_add_u32", f_[2], lane, 4, T[1])
        self.cnt_add(1); self.cnt_wait(256, 1)
        X = [[v(28 + 32 * g + 8 * i, 8) for i in range(4)] for g in range(2)]
        for g in range(2):
            for src in range(4):
                for h in range(2): k.ds_read("ds_read_b128", X[g][src][4 * h:4 * h + 4], vS[h], src * 16384 + 8192 * g)
        self.tree(X[0])
        for h in range(2): k.ds_write("ds_write_b128", f_[2], X[0][0][4 * h:4 * h + 4], 1024 * h)
        self.tree(X[1])
        k.wait_lg_all()
        k.barrier()
        self.stamp('Z')
        self.final_tail(X[1][0], 8192)

    def tree(self, X):
        k = self.k
        for i in range(8): k.V("v_add_f32", X[0][i], X[0][i], X[1][i])
        for i in range(8): k.V("v_add_f32", X[2][i], X[2][i], X[3][i])
        for i in range(8): k.V("v_add_f32", X[0][i], X[0][i], X[2][i])
    def final_read_addrs(self, base):
        k, T, tmp, lane = self.k, self.sT, self.tmp, self.lane
        self.vFin = [v(20), v(21), v(22)]
        k.V("v_lshrrev_b32", tmp[4], 3, lane); k.V("v_and_b32", tmp[5], 7, lane); k.V("v_lshlrev_b32", tmp[5], 1, tmp[5])
        k.V("v_xor_b32", tmp[5], tmp[5], tmp[4]); k.S("s_lshl_b32", T[1], self.sRt, 11); k.S("s_add_u32", T[1], T[1], base); k.V("v_lshl_add_u32", tmp[4], tmp[4], 8, T[1])
        k.V("v_lshl_add_u32", self.vFin[0], tmp[5], 4, tmp[4]); k.V("v_xor_b32", tmp[5], 1, tmp[5]); k.V("v_lshl_add_u32", self.vFin[1], tmp[5], 4, tmp[4])
    def final_tail(self, S, stride):
        k = self.k
        vF = self.vFin
        F = [v(28 + 8 * i, 8) for i in range(4)]
        for src in range(4):
            for h in range(2): k.ds_read("ds_read_b128", F[src][4 * h:4 * h + 4], vF[h], src * stride)
        xu = v(100, 8)
        for i in range(4):
            k.V("v_lshlrev_b32", xu[2 * i], 16, self.xres[i]); k.V("v_and_b32", xu[2 * i + 1], 0xffff0000, self.xres[i])
        self.tree(F)
        t = F[1]
        for i in range(8): k.V("v_mul_f32", t[i], -LOG2E, F[0][i])
        for i in range(8): k.V("v_exp_f32", t[i], t[i])
        for i in range(8): k.V("v_mul_f32", F[0][i], S[i], F[0][i])
        for i in range(8): k.V("v_add_f32", t[i], 1.0, t[i])
        for i in range(8): k.V("v_rcp_f32", t[i], t[i])
        for i in range(8): k.V("v_fmac_f32", xu[i], F[0][i], t[i])
        for i in range(4): k.V("v_cvt_pk_bf16_f32", self.xres[i], xu[2 * i], xu[2 * i + 1])
        k.gstore(self.xres, self.vXO, self.sOUT, 0, mod=self.c.get('outmod', ''))

    def build(self):
        k = self.k
        self.joinF = []
        self.prologue()
        if self.c.get('p2only'):
            self.prologue2(); self.stamp('start')
            k.S("s_cmp_eq_u32", self.sIsRed, 1); k.branch("s_cbranch_scc1", "L_fin")
            self.p2_bases()
            k.barrier()
            k.S("s_cmp_eq_u32", self.sGrp, 1); k.branch("s_cbranch_scc1", "L_qB")
            st = self.save()
            k.V("v_mov_b32", self.vFA, OOB)
            self.p2a_preamble([], None)
            self.stamp('tail')
            self.joinA.append(self.exit_state()); k.branch("s_branch", "L_p2a")
            self.restore(st)
            k.label("L_qB")
            k.V("v_mov_b32", self.vFA, OOB)
            self.job_p2_b(3)()
            self.stamp('tail')
            self.joinB.append(self.exit_state()); k.branch("s_branch", "L_p2b")
        else:
            self.prologue2(); self.stamp('start')
            k.S("s_cmp_eq_u32", self.sIsH, 1)
            if self.c.get('qfirstcode'):
                k.branch("s_cbranch_scc1", "L_roleH")
                st = self.save(); self.role_qkv(); self.restore(st); self.role_h()
            else:
                k.branch("s_cbranch_scc0", "L_roleQ")
                st = self.save(); self.role_h(); self.restore(st); self.role_qkv()
        self.phase2a()
        self.phase2b()
        k.label("L_fin")
        if not self.c.get('nofinalwait'): k.raw("  s_waitcnt vmcnt(0)")
        pr = self.c.get('probe')
        if pr:
            T = self.sT; top = k.newlabel("Lprobe")
            k.raw(f"  s_lshl_b32 {T[1]}, s2, 3\n  s_add_u32 {T[1]}, {T[1]}, {self.sWv}\n  s_cmp_eq_u32 {T[1]}, {pr[1]}\n  s_cbranch_scc0 L_end")
            k.raw("  s_memrealtime s[46:47]\n  s_waitcnt lgkmcnt(0)")
            if pr[0] == 'end': k.raw("  s_mov_b32 s44, s46")
            k.raw(f"  s_sub_u32 {T[0]}, s44, s100\n  s_mul_i32 {T[0]}, {T[0]}, {pr[2]}\n  s_min_u32 {T[0]}, {T[0]}, 20000")
            k.label(top)
            k.raw(f"  s_memrealtime s[44:45]\n  s_waitcnt lgkmcnt(0)\n  s_sub_u32 {T[1]}, s44, s46\n  s_cmp_lt_u32 {T[1]}, {T[0]}\n  s_cbranch_scc1 {top}")
        self.stamp_flush()
        k.label("L_end")
        k.raw("  s_endpgm")
        head = open(__file__.rsplit('/', 1)[0] + "/header.txt").read() if '/' in __file__ else open("header.txt").read()
        head = head.replace("@LDS@", str(LDS_BYTES))
        tail = f""".section .rodata,"a"
.p2align 6
.amdhsa_kernel {NAME}_kernel
  .amdhsa_next_free_vgpr {NV + NA}
  .amdhsa_next_free_sgpr 102
  .amdhsa_accum_offset {NV}
  .amdhsa_group_segment_fixed_size 0
  .amdhsa_kernarg_size 72
  .amdhsa_user_sgpr_count 2
  .amdhsa_user_sgpr_kernarg_segment_ptr 1
  .amdhsa_system_sgpr_workgroup_id_x 1
  .amdhsa_float_denorm_mode_32 3
.end_amdhsa_kernel
"""
        if self.c['stamps']: head += '; stamps: ' + ','.join(self.c['stamps']) + '\n'
        return head + k.text() + tail

if __name__ == "__main__":
    import json
    out = sys.argv[1]
    cfg = json.loads(sys.argv[2]) if len(sys.argv) > 2 else {}
    g = Gen(**cfg)
    txt = g.build()
    open(out, "w").write(txt)
    n = sum(1 for l in g.k.out if l.startswith("  ") and not l.startswith("  ;"))
    print(f"{out}: {n} instructions, {g.k.nops} nop states, {g.k.waits} auto waits", file=sys.stderr)
    if cfg.get('verbose'):
        for l in g.k.log: print(l, file=sys.stderr)
```
